```python
import torch

def _softmax(x, axis=-1):
    return torch.softmax(x, dim=axis)
def _gelu(x):
    return torch.nn.functional.gelu(x, approximate="tanh")
def _silu(x):
    return torch.nn.functional.silu(x)
def _sigmoid(x):
    return torch.sigmoid(x)
def _layernorm(x, axis=-1, eps=1e-5):
    m = x.mean(dim=axis, keepdim=True)
    v = x.var(dim=axis, keepdim=True, unbiased=False)
    return (x - m) / torch.sqrt(v + eps)
def _scatter_add(tgt, idx, src, axis=0):
    return tgt.clone().index_add_(axis, idx, src)
def _segment_sum(src, seg, n):
    out = torch.zeros((n,) + src.shape[1:], dtype=src.dtype)
    return out.index_add_(0, seg, src)
def _pad(x, pw):
    flat = tuple(v for pair in reversed(pw) for v in pair)
    return torch.nn.functional.pad(x, flat)

kernel_name = 'recurrent_scan__ssm_conv_s5__dense_activation_gelu__prompt'

def setup_inputs():

    _w = (lambda a: (lambda t: t.to(torch.bfloat16) if t.is_floating_point() else t)(torch.as_tensor(a)))
    def _A_setup():
        B, S, D = 1, 2048, 640
        P = D
        Lambda_re = -0.5 * (lambda _x: torch.exp(torch.as_tensor(_x)))((lambda *s: torch.randn(*s, dtype=torch.bfloat16) * 0.4)(P))
        Lambda_im = (lambda *s: torch.randn(*s, dtype=torch.bfloat16) * 0.4)(P) * 1.0
        B_re = (lambda *s: torch.randn(*s, dtype=torch.bfloat16) * 0.4)(P, D) * (D ** -0.5)
        B_im = (lambda *s: torch.randn(*s, dtype=torch.bfloat16) * 0.4)(P, D) * (D ** -0.5)
        C_re = (lambda *s: torch.randn(*s, dtype=torch.bfloat16) * 0.4)(D, P) * (P ** -0.5)
        C_im = (lambda *s: torch.randn(*s, dtype=torch.bfloat16) * 0.4)(D, P) * (P ** -0.5)
        log_dt = (lambda *s: torch.randn(*s, dtype=torch.bfloat16) * 0.4)(P) * 0.3 - 2.0
        Dskip = (lambda *s: torch.randn(*s, dtype=torch.bfloat16) * 0.2)(D)
        return {
            "x": _w((lambda *s: torch.randn(*s, dtype=torch.bfloat16) * 0.05)(B, S, D)),
            "Lambda_re": _w(Lambda_re),
            "Lambda_im": _w(Lambda_im),
            "B_re": _w(B_re),
            "B_im": _w(B_im),
            "C_re": _w(C_re),
            "C_im": _w(C_im),
            "log_dt": _w(log_dt),
            "Dskip": _w(Dskip),
        }
    _A_in = _A_setup()

    def _B_setup():
        B, S, D, F = 1, 2048, 640, 1728
        return {
            "x": _w((lambda *s: torch.randn(*s, dtype=torch.bfloat16) * 0.05)(B, S, D)),
            "w1": _w((lambda *s: torch.randn(*s, dtype=torch.bfloat16) * 0.8)(D, F) * (D ** -0.5)),
            "b1": _w((lambda *s: torch.randn(*s, dtype=torch.bfloat16) * 12.8)(F) * 0.01),
            "w2": _w((lambda *s: torch.randn(*s, dtype=torch.bfloat16) * 0.8)(F, D) * (F ** -0.5)),
            "b2": _w((lambda *s: torch.randn(*s, dtype=torch.bfloat16) * 12.8)(D) * 0.01),
        }
    _B_in = _B_setup()

    return {
        "A_x": _A_in["x"],
        "A_Lambda_re": _A_in["Lambda_re"],
        "A_Lambda_im": _A_in["Lambda_im"],
        "A_B_re": _A_in["B_re"],
        "A_B_im": _A_in["B_im"],
        "A_C_re": _A_in["C_re"],
        "A_C_im": _A_in["C_im"],
        "A_log_dt": _A_in["log_dt"],
        "A_Dskip": _A_in["Dskip"],
        "B_x": _B_in["x"],
        "B_w1": _B_in["w1"],
        "B_b1": _B_in["b1"],
        "B_w2": _B_in["w2"],
        "B_b2": _B_in["b2"],
    }

def reference(A_x, A_Lambda_re, A_Lambda_im, A_B_re, A_B_im, A_C_re, A_C_im, A_log_dt, A_Dskip, B_x, B_w1, B_b1, B_w2, B_b2):
    def _A_ref(x, Lambda_re, Lambda_im, B_re, B_im, C_re, C_im, log_dt, Dskip):
        Bsz, L, H = x.shape
        Lam = Lambda_re + 1j * Lambda_im
        Bmat = B_re + 1j * B_im
        Cmat = C_re + 1j * C_im
        dt = torch.exp(log_dt)
        Lam_bar = torch.exp(dt * Lam)
        B_bar = ((Lam_bar - 1.0) / Lam)[:, None] * Bmat
        Bu = torch.einsum("bld,pd->blp", x + 0j, B_bar)
        h = torch.zeros_like(Bu[:, 0, :])
        hs = []
        for t in range(L):
            h = Lam_bar[None, :] * h + Bu[:, t, :]
            hs.append(h)
        hseq = torch.stack(hs, 1)
        y = 2.0 * torch.einsum("blp,dp->bld", hseq, Cmat).real + x * Dskip[None, None, :]
        return y

    def _B_ref(x, w1, b1, w2, b2):
        h = torch.einsum("bsd,df->bsf", x, w1) + b1
        h = _gelu(h)
        return torch.einsum("bsf,fd->bsd", h, w2) + b2

    x = A_x
    xn = _layernorm(x, axis=-1)
    s = _A_ref(xn, A_Lambda_re, A_Lambda_im, A_B_re, A_B_im, A_C_re, A_C_im, A_log_dt, A_Dskip)
    g = _silu(_B_ref(xn, B_w1, B_b1, B_w2, B_b2))
    return x + s * g
```

```python
import re

REG_RE = re.compile(r'(?<![\w.])([vas])(\d+)(?![\w\[])|(?<![\w.])([vas])\[(\d+):(\d+)\]|(?<![\w.])(vcc|exec|m0|scc)(?![\w])')


def regs_of(tok):
    out = []
    for m in REG_RE.finditer(tok):
        if m.group(1):
            out.append((m.group(1), int(m.group(2))))
        elif m.group(3):
            out += [(m.group(3), i) for i in range(int(m.group(4)), int(m.group(5)) + 1)]
        else:
            out.append((m.group(6), 0))
    return out


TRANS = ('v_exp_f32', 'v_log_f32', 'v_rcp_f32', 'v_rsq_f32', 'v_sqrt_f32', 'v_sin_f32', 'v_cos_f32')
RMW = ('v_fmac_f32', 'v_dot2c_f32_bf16', 'v_writelane_b32')
NODST_S = ('s_cmp', 's_waitcnt', 's_barrier', 's_branch', 's_cbranch', 's_nop', 's_endpgm', 's_sleep', 's_setprio', 's_bitcmp')


class I:
    __slots__ = ('text', 'op', 'kind', 'defs', 'uses', 'tag', 'passes', 'srcc', 'srcab', 'wide_store', 'need', 'data')

    def __init__(self, text, tag=None, need=None):
        self.text = text.strip()
        self.tag = tag
        self.need = need
        self.passes = 0
        self.srcc = []
        self.srcab = []
        self.wide_store = False
        self.data = []
        t = self.text
        if t.endswith(':') or t.startswith('.') or t.startswith(';'):
            self.op = t
            self.kind = 'label' if t.endswith(':') else 'dir'
            self.defs = []
            self.uses = []
            return
        sp = t.split(None, 1)
        op = sp[0]
        rest = sp[1] if len(sp) > 1 else ''
        self.op = op
        ops = []
        depth = 0
        cur = ''
        for ch in rest:
            if ch in '[(':
                depth += 1
            if ch in '])':
                depth -= 1
            if ch == ',' and depth == 0:
                ops.append(cur.strip())
                cur = ''
            else:
                cur += ch
        if cur.strip():
            ops.append(cur.strip())
        R = [regs_of(o) for o in ops]
        flat = lambda l: [r for x in l for r in x]
        base = re.sub(r'_(e32|e64|dpp|sdwa)$', '', op)
        if op.startswith('v_mfma'):
            self.kind = 'mfma'
            self.defs = R[0]
            self.srcab = R[1] + R[2]
            self.srcc = R[3]
            self.uses = self.srcab + self.srcc
            self.passes = 8 if '32x32' in op else (2 if '4x4' in op else 4)
        elif op.startswith('v_'):
            self.kind = 'valu'
            self.defs = list(R[0])
            self.uses = flat(R[1:])
            if base in RMW:
                self.uses += R[0]
            if 'permlane' in op and 'swap' in op:
                self.defs = R[0] + R[1]
                self.uses = R[0] + R[1]
            if op.endswith('_dpp'):
                self.uses += R[0]
            if base in ('v_add_co_u32', 'v_addc_co_u32', 'v_sub_co_u32'):
                self.defs = R[0] + R[1]
                self.uses = flat(R[2:])
            if base == 'v_nop':
                self.defs = []
                self.uses = []
        elif op.startswith('ds_'):
            self.kind = 'ds'
            if 'read' in op or 'permute' in op or 'swizzle' in op:
                self.defs = R[0]
                self.uses = flat(R[1:])
            else:
                self.defs = []
                self.uses = flat(R)
        elif op.startswith('buffer_') or op.startswith('global_'):
            self.kind = 'vmem'
            if op in ('buffer_inv', 'buffer_wbl2'):
                self.defs = []
                self.uses = []
            elif 'store' in op or 'atomic' in op:
                self.defs = []
                self.uses = flat(R)
                self.data = R[0] if op.startswith('buffer_') else R[1]
                self.wide_store = op.endswith('x4') or op.endswith('x3')
            elif re.search(r'\blds\b', rest):
                self.defs = []
                self.uses = flat(R) + [('m0', 0)]
            else:
                self.defs = R[0]
                self.uses = flat(R[1:])
        elif op.startswith('s_load') or op.startswith('s_memtime') or op.startswith('s_memrealtime') or op.startswith('s_buffer_load'):
            self.kind = 'smem'
            self.defs = R[0]
            self.uses = flat(R[1:])
        elif op.startswith('s_'):
            self.kind = 'salu'
            if any(op.startswith(x) for x in NODST_S):
                self.defs = []
                self.uses = flat(R)
            else:
                self.defs = R[0] if R else []
                self.uses = flat(R[1:])
                if 'saveexec' in op:
                    self.defs = self.defs + [('exec', 0)]
        else:
            raise ValueError('unknown instr ' + t)

    @property
    def base(self):
        return re.sub(r'_(e32|e64|dpp|sdwa)$', '', self.op)

    def states(self):
        if self.kind in ('label', 'dir'):
            return 0
        if self.op == 's_nop':
            return int(self.text.split()[1]) + 1
        return 1


def mk(x):
    return x if isinstance(x, I) else I(x)


class Wait:
    def __init__(self, *tags):
        self.tags = tags


class Reset:
    pass


def add_waits(seq, vm=None, lg=None):
    vm = [] if vm is None else vm
    lg = [] if lg is None else lg
    out = []

    def emit_wait(nv, nl):
        parts = []
        if nv is not None:
            parts.append(f'vmcnt({min(nv, 63)})')
            del vm[:max(0, len(vm) - nv)]
        if nl is not None:
            parts.append(f'lgkmcnt({min(nl, 15)})')
            del lg[:max(0, len(lg) - nl)]
        if parts:
            out.append(I('s_waitcnt ' + ' '.join(parts)))

    def need_for(pred):
        nv = nl = None
        for i in range(len(vm) - 1, -1, -1):
            if pred(vm[i]):
                nv = len(vm) - 1 - i
                break
        for i in range(len(lg) - 1, -1, -1):
            if pred(lg[i]):
                nl = len(lg) - 1 - i
                if lg[i].kind == 'smem':
                    nl = 0
                break
        if nl is not None and nl > 0 and any(x.kind == 'smem' for x in lg):
            nl = sum(1 for x in lg[len(lg) - nl:] if x.kind != 'smem')
            nl = 0
        return nv, nl

    for x in seq:
        if isinstance(x, Reset):
            del vm[:]
            del lg[:]
            continue
        if isinstance(x, Wait):
            tags = set(x.tags)
            emit_wait(*need_for(lambda o: o.tag in tags))
            continue
        x = mk(x)
        if x.kind in ('label', 'dir'):
            out.append(x)
            continue
        touched = set(x.uses) | set(x.defs)
        tags = set(x.need or [])
        emit_wait(*need_for(lambda o: (o.tag is not None and o.tag in tags) or any(r in touched for r in o.defs)))
        if x.op == 's_waitcnt':
            m = re.search(r'vmcnt\((\d+)\)', x.text)
            if m:
                del vm[:max(0, len(vm) - int(m.group(1)))]
            m = re.search(r'lgkmcnt\((\d+)\)', x.text)
            if m:
                n = int(m.group(1))
                if n == 0 or not any(o.kind == 'smem' for o in lg):
                    del lg[:max(0, len(lg) - n)]
        out.append(x)
        if x.kind == 'vmem':
            vm.append(x)
        elif x.kind in ('ds', 'smem'):
            lg.append(x)
    return out


def hazard_need(p, c):
    need = 0
    pd = set(p.defs)
    cu = set(c.uses)
    cd = set(c.defs)
    vg = lambda s: {r for r in s if r[0] in 'va'}
    sg = lambda s: {r for r in s if r[0] == 's' or r[0] == 'vcc'}
    if p.kind == 'valu':
        if c.kind == 'mfma' and vg(pd) & cu:
            need = max(need, 2)
        if c.kind == 'valu':
            if p.base in TRANS and vg(pd) & cu:
                need = max(need, 1)
            if (c.op.endswith('_dpp') or 'permlane' in c.op) and vg(pd) & cu:
                need = max(need, 2)
            if c.base in ('v_readlane_b32', 'v_readfirstlane_b32') and vg(pd) & cu:
                need = max(need, 1)
            if sg(pd) & cu:
                need = max(need, 4 if c.base in ('v_readlane_b32', 'v_writelane_b32') else 2)
            if c.base == 'v_cndmask_b32' and ('vcc', 0) in pd:
                need = max(need, 2)
        if c.kind == 'vmem' and sg(pd) & cu:
            need = max(need, 5)
        if c.kind in ('salu', 'smem') and sg(pd) & cu:
            need = max(need, 1)
    if p.kind == 'mfma':
        big = {2: 5, 4: 8, 8: 12}[p.passes]
        if c.kind == 'mfma':
            if pd & set(c.srcab):
                need = max(need, big)
            if pd & set(c.srcc):
                if list(p.defs) == list(c.srcc) and p.passes == c.passes:
                    need = max(need, 2 if p.passes == 2 else 0)
                else:
                    need = max(need, {2: 4, 4: 6, 8: 10}[p.passes])
            elif pd & cd:
                need = max(need, big)
        elif c.kind in ('valu', 'ds', 'vmem'):
            if pd & (cu | cd):
                need = max(need, big)
            if c.kind == 'valu' and set(p.srcc) & cd:
                need = max(need, {2: 1, 4: 3, 8: 7}[p.passes])
    if p.kind == 'salu' and ('m0', 0) in pd and c.kind == 'vmem' and ('m0', 0) in cu:
        need = max(need, 1)
    if p.kind == 'vmem' and p.wide_store and set(p.data) & cd:
        need = max(need, 2 if c.kind in ('valu', 'mfma') else 1)
    return need


def add_nops(seq, stats=None):
    out = []
    for x in seq:
        if x.kind in ('label', 'dir'):
            out.append(x)
            continue
        dist = 0
        pad = 0
        for p in reversed(out):
            if dist >= 12:
                break
            n = hazard_need(p, x) if p.kind not in ('label', 'dir') else 0
            if n > dist:
                pad = max(pad, n - dist)
            dist += p.states()
        if pad:
            if stats is not None:
                stats.append((pad, x.text))
            out.append(I(f's_nop {pad - 1}'))
        out.append(x)
    return out


def finalize(seq, stats=None):
    return add_nops(add_waits(seq), stats)


def render(seq):
    return '\n'.join((x.text if x.kind == 'label' else '    ' + x.text) for x in seq)


def weave(main, side, per_gap=3, start=0, is_slot=lambda x: isinstance(x, I) and x.kind == 'mfma'):
    main = [x if isinstance(x, (Wait, Reset)) else mk(x) for x in main]
    side = [x if isinstance(x, (Wait, Reset)) else mk(x) for x in side]
    out = []
    si = 0
    slot = 0
    for x in main:
        out.append(x)
        if is_slot(x):
            if slot >= start:
                cost = 0
                while si < len(side):
                    y = side[si]
                    c = 0 if isinstance(y, (Wait, Reset)) else (2 if y.base in TRANS else 1)
                    if cost + c > per_gap and cost > 0:
                        break
                    out.append(y)
                    cost += c
                    si += 1
            slot += 1
    out += side[si:]
    return out
```

```python
KN = "recurrent_scan__ssm_conv_s5__dense_activation_gelu__prompt_kernel"
def kd(name, vgpr, sgpr=102, accum=None, extra=""):
    if accum is None: accum = min(256, (vgpr+3)//4*4)
    return f""".section .rodata,"a"
.p2align 6
.amdhsa_kernel {name}
  .amdhsa_next_free_vgpr {vgpr}
  .amdhsa_next_free_sgpr {sgpr}
  .amdhsa_accum_offset {accum}
  .amdhsa_group_segment_fixed_size 0
  .amdhsa_kernarg_size 136
  .amdhsa_user_sgpr_count 2
  .amdhsa_user_sgpr_kernarg_segment_ptr 1
  .amdhsa_system_sgpr_workgroup_id_x 1
{extra}.end_amdhsa_kernel
"""
def single(body, grid, block, lds, vgpr, sgpr=102, accum=None):
    return f"""; @launch grid=({grid},1,1) block=({block},1,1) lds={lds}
.amdgcn_target "amdgcn-amd-amdhsa--gfx950"
.text
.globl {KN}
.p2align 8
.type {KN},@function
{KN}:
{body}
s_endpgm
""" + kd(KN, vgpr, sgpr, accum)
def multi(kernels, order=None):
    order = order or list(range(len(kernels)))
    s = ""
    for i in order:
        k = kernels[i]
        s += f"; @launch kernel={k['name']} grid=({k['grid']},1,1) block=({k['block']},1,1) lds={k['lds']}\n"
    s += '.amdgcn_target "amdgcn-amd-amdhsa--gfx950"\n.text\n'
    for k in kernels:
        s += f".globl {k['name']}\n.p2align 8\n.type {k['name']},@function\n{k['name']}:\n{k['body']}\ns_endpgm\n"
    for k in kernels:
        s += kd(k['name'], k['vgpr'], k.get('sgpr',102), k.get('accum'))
    return s
```

```python
import sys, struct, math
from asmlib import *
import kg

def fbits(x): return '0x%08x' % struct.unpack('<I', struct.pack('<f', x))[0]

K_X, K_LRE, K_LIM, K_BRE, K_BIM, K_CRE, K_CIM, K_LDT, K_DSK, K_W1, K_B1, K_W2, K_B2, K_OUT, K_DBG, K_WS = \
    0, 8, 16, 24, 32, 40, 48, 56, 64, 80, 88, 96, 104, 112, 120, 128
ACT = 0; ACT_SZ = 32 * 94 * 4096
W2F = 0xC00000
STAT = 0x1000000
CS = 0x1010000
EST = 0x1040000; EST_STRIDE = 768 * 16
WS_USED = 0x1100000
OOB = 0x40000000
TAG = 0x13579BDF
LOG2E = 1.4426950408889634

def srd(s, koff, size):
    return [f's_load_dwordx2 s[{s}:{s+1}], s[0:1], {koff}', f's_mov_b32 s{s+2}, {size}', f's_mov_b32 s{s+3}, 0x20000']

sW, sRB, sCG, sTAG = 36, 37, 38, 39
def ids(lbl_end):
    return [
        's_cmp_ge_u32 s2, 256', f's_cbranch_scc1 {lbl_end}',
        'v_lshrrev_b32 v1, 6, v0', 'v_and_b32 v0, 63, v0',
        's_and_b32 s40, s2, 7', 's_lshr_b32 s41, s2, 3',
        f'v_readfirstlane_b32 s{sW}, v1',
        's_and_b32 s42, s40, 1', 's_lshl_b32 s42, s42, 3', 's_and_b32 s43, s41, 7', f's_add_u32 s{sRB}, s42, s43',
        's_lshr_b32 s42, s40, 1', 's_lshl_b32 s42, s42, 2', 's_lshr_b32 s43, s41, 3', f's_add_u32 s{sCG}, s42, s43',
        f's_mov_b32 s{sTAG}, {TAG}',
    ]

def dpp_row_sum(v):
    return [f'v_add_f32_dpp v{v}, v{v}, v{v} row_ror:{n} row_mask:0xf bank_mask:0xf' for n in (8, 4, 2, 1)]

def prep():
    P = []
    A = P.append
    P += srd(4, K_X, 2621440) + srd(8, K_WS, WS_USED)
    P += srd(12, K_W1, 640 * 3456) + srd(16, K_W2, 1728 * 1280)
    P += srd(20, K_BRE, 819200) + srd(24, K_BIM, 819200) + srd(28, K_CRE, 819200) + srd(32, K_CIM, 819200)
    P += ids('L_prep_end')
    A(f's_mul_i32 s44, s2, 768'); A(f's_add_u32 s44, s44, {EST}')
    A('v_lshlrev_b32 v2, 2, v0'); A(f's_lshl_b32 s45, s{sW}, 8'); A('v_add_u32 v2, s45, v2'); A('v_mov_b32 v3, 0')
    A(f's_cmp_lt_u32 s{sW}, 3'); A(f's_cselect_b32 s44, s44, {OOB}')
    A('buffer_store_dword v3, v2, s[8:11], s44 offen')
    A(f's_lshl_b32 s44, s{sRB}, 7'); A(f's_lshl_b32 s45, s{sCG}, 3'); A('s_add_u32 s44, s44, s45')
    A(f's_lshl_b32 s45, s{sW}, 1'); A('s_add_u32 s44, s44, s45')
    A('v_lshrrev_b32 v2, 5, v0'); A('v_add_u32 v2, s44, v2')
    A('v_mul_u32_u24 v3, 1280, v2'); A('v_and_b32 v4, 31, v0'); A('v_lshl_add_u32 v3, v4, 3, v3')
    for i in range(5): A(f'buffer_load_dwordx2 v[{10+2*i}:{11+2*i}], v3, s[4:7], 0 offen offset:{256*i}')
    A('v_mov_b32 v5, 0'); A('v_mov_b32 v6, 0')
    for i in range(10):
        A(f'v_lshlrev_b32 v7, 16, v{10+i}'); A(f'v_and_b32 v8, 0xffff0000, v{10+i}')
        A('v_add_f32 v5, v5, v7'); A('v_fmac_f32 v6, v7, v7'); A('v_add_f32 v5, v5, v8'); A('v_fmac_f32 v6, v8, v8')
    for a, b in zip(dpp_row_sum(5), dpp_row_sum(6)): A(a); A(b)
    A('v_mov_b32 v7, v5'); A('v_mov_b32 v8, v6')
    A('v_permlane16_swap_b32 v5, v7'); A('v_permlane16_swap_b32 v6, v8')
    A('v_add_f32 v5, v5, v7'); A('v_add_f32 v6, v6, v8')
    A(f'v_mul_f32 v5, {fbits(1/640)}, v5'); A(f'v_mul_f32 v6, {fbits(1/640)}, v6')
    A('v_fma_f32 v6, -v5, v5, v6'); A('v_max_f32 v6, 0, v6')
    A('v_cvt_pk_bf16_f32 v6, v6, v6'); A('v_and_b32 v6, 0xffff0000, v6')
    A(f'v_add_f32 v6, {fbits(1e-5)}, v6'); A('v_cvt_pk_bf16_f32 v6, v6, v6'); A('v_and_b32 v6, 0xffff0000, v6')
    A('v_sqrt_f32 v6, v6')
    A('v_cvt_pk_bf16_f32 v8, -v5, v6'); A(f'v_mov_b32 v9, s{sTAG}')
    A('v_lshlrev_b32 v2, 3, v2')
    A(f's_mov_b32 s44, {STAT}')
    A('s_mov_b32 exec_lo, 1'); A('s_mov_b32 exec_hi, 1')
    A('buffer_store_dwordx2 v[8:9], v2, s[8:11], s44 offen')
    A('s_mov_b64 exec, -1')
    A(f's_cmp_ge_u32 s{sCG}, 9'); A('s_cbranch_scc1 L_prep_s5')
    F = fin(P)
    P = []; A = P.append
    A('v_lshrrev_b32 v2, 3, v0'); A('v_lshrrev_b32 v3, 4, v0'); A('v_lshlrev_b32 v3, 1, v3'); A('v_and_b32 v4, 7, v0')
    A('v_xor_b32 v3, v3, v4'); A('v_lshlrev_b32 v3, 4, v3')
    A('v_mul_u32_u24 v4, 3456, v2'); A('v_add_u32 v4, v4, v3')
    A('v_mul_u32_u24 v5, 1280, v2'); A('v_add_u32 v5, v5, v3')
    A(f's_mul_i32 s44, s{sRB}, 86'); A('s_lshr_b32 s44, s44, 8')
    A('s_mul_i32 s45, s44, 3'); A(f's_sub_u32 s45, s{sRB}, s45'); A(f's_mul_i32 s46, s{sCG}, 3'); A('s_add_u32 s45, s45, s46')
    A(f's_mul_i32 s46, s44, {160*3456}'); A('s_lshl_b32 s47, s45, 7'); A('s_add_u32 s46, s46, s47')
    A(f's_mul_i32 s47, s{sW}, {8*3456}'); A('s_add_u32 s46, s46, s47')
    A(f's_cmp_lt_u32 s{sRB}, 12'); A(f's_cselect_b32 s46, s46, {OOB}')
    A(f's_lshl_b32 s48, s{sW}, 10')
    for i in range(5):
        A(f's_add_u32 m0, s48, {i*4096}')
        P.append(I('buffer_load_dwordx4 v4, s[12:15], s46 offen lds', tag='cs'))
        A(f's_add_u32 s46, s46, {32*3456}')
    A(f's_lshl_b32 s49, s{sCG}, 4'); A(f's_add_u32 s49, s49, s{sRB}'); A('s_lshl_b32 s49, s49, 2'); A(f's_add_u32 s49, s49, s{sW}')
    A('s_mul_i32 s50, s49, 6554'); A('s_lshr_b32 s50, s50, 16')
    A('s_mul_i32 s51, s50, 10'); A('s_sub_u32 s51, s49, s51')
    A(f's_mul_i32 s46, s50, {32*1280}'); A('s_lshl_b32 s47, s51, 7'); A('s_add_u32 s46, s46, s47')
    A(f's_lshl_b32 s48, s{sW}, 12')
    for i in range(4):
        A(f's_add_u32 m0, s48, {20480 + i*1024}')
        P.append(I('buffer_load_dwordx4 v5, s[16:19], s46 offen lds', tag='rl'))
        A(f's_add_u32 s46, s46, {8*1280}')
    A('v_lshrrev_b32 v6, 5, v0'); A('v_lshlrev_b32 v6, 4, v6')
    A('v_bfe_u32 v7, v0, 2, 3'); A('v_add_u32 v6, v6, v7')
    A('v_lshrrev_b32 v7, 1, v7'); A('v_lshlrev_b32 v7, 5, v7')
    A('v_lshl_add_u32 v6, v6, 7, v7'); A('v_and_b32 v7, 3, v0'); A('v_lshl_add_u32 v6, v7, 3, v6')
    A(f's_lshl_b32 s47, s{sW}, 5'); A('v_xor_b32 v8, s47, v6')
    P.append(Wait('cs', 'rl')); A('s_barrier')
    for ks in range(5):
        for u in range(2):
            A(f'ds_read_b64_tr_b16 v[{20+4*ks+2*u}:{21+4*ks+2*u}], v8 offset:{ks*4096+u*1024}')
    for i in range(4): A(f'v_mov_b32 v{12+i}, 0x3f803f80')
    for ks in range(5):
        A(f'v_mfma_f32_16x16x32_bf16 v[16:19], v[12:15], v[{20+4*ks}:{23+4*ks}], ' + ('0' if ks == 0 else 'v[16:19]'))
    A(f'v_mov_b32 v17, s{sTAG}')
    A('s_lshl_b32 s46, s45, 6'); A(f's_lshl_b32 s47, s{sW}, 4'); A('s_add_u32 s46, s46, s47'); A('s_lshl_b32 s46, s46, 5')
    A('s_lshl_b32 s47, s44, 3'); A('s_add_u32 s46, s46, s47'); A(f's_add_u32 s46, s46, {CS}')
    A(f's_cmp_lt_u32 s{sRB}, 12'); A(f's_cselect_b32 s46, s46, {OOB}')
    A('v_lshlrev_b32 v9, 5, v0')
    A('s_mov_b64 exec, 0xffff')
    A('buffer_store_dwordx2 v[16:17], v9, s[8:11], s46 offen')
    A('s_mov_b64 exec, -1')
    A('v_add_u32 v6, s48, v6'); A('v_lshlrev_b32 v9, 4, v0')
    for jj in range(4):
        A(f'v_xor_b32 v8, {jj*32}, v6')
        for u in range(2):
            A(f'ds_read_b64_tr_b16 v[{40+4*jj+2*u}:{41+4*jj+2*u}], v8 offset:{20480+u*1024}')
    for jj in range(4):
        A('s_lshl_b32 s46, s51, 2'); A(f's_add_u32 s46, s46, {jj}')
        A('s_mul_i32 s47, s46, 52'); A('s_lshr_b32 s47, s47, 8')
        A('s_mul_i32 s52, s47, 465'); A('s_add_u32 s46, s46, s52')
        A('s_mul_i32 s52, s50, 5'); A('s_add_u32 s46, s46, s52'); A('s_lshl_b32 s46, s46, 10'); A(f's_add_u32 s46, s46, {W2F}')
        A('s_cmp_lt_u32 s49, 540'); A(f's_cselect_b32 s46, s46, {OOB}')
        A(f'buffer_store_dwordx4 v[{40+4*jj}:{43+4*jj}], v9, s[8:11], s46 offen')
    A('s_branch L_prep_end')
    F += fin(P)
    P = ['L_prep_s5:']; A = P.append
    A(f's_sub_u32 s44, s{sCG}, 9')
    A(f's_cmp_ge_u32 s{sRB}, 6'); A('s_cselect_b32 s20, s24, s20'); A('s_cselect_b32 s21, s25, s21'); A('s_cselect_b32 s45, 1, 0')
    A('s_mul_i32 s46, s45, 6'); A(f's_sub_u32 s46, s{sRB}, s46'); A('s_lshl_b32 s46, s46, 4'); A('s_mul_i32 s47, s44, 96'); A('s_add_u32 s46, s46, s47')
    A(f's_lshl_b32 s47, s{sW}, 2'); A('s_add_u32 s46, s46, s47')
    A(f's_cmp_lt_u32 s{sRB}, 12'); A('s_cselect_b32 s46, s46, 1000')
    A('v_lshrrev_b32 v2, 4, v0'); A('v_add_u32 v2, s46, v2')
    A('v_mul_u32_u24 v3, 1280, v2'); A('v_and_b32 v4, 15, v0'); A('v_lshl_add_u32 v3, v4, 4, v3')
    for i in range(5): A(f'buffer_load_dwordx4 v[{12+4*i}:{15+4*i}], v3, s[20:23], 0 offen offset:{256*i}')
    A('s_lshl_b32 s49, s44, 4'); A(f's_add_u32 s49, s49, s{sRB}'); A('s_lshl_b32 s49, s49, 2'); A(f's_add_u32 s49, s49, s{sW}')
    A('s_mul_i32 s50, s49, 3277'); A('s_lshr_b32 s50, s50, 16')
    A('s_mul_i32 s51, s50, 20'); A('s_sub_u32 s51, s49, s51')
    A('v_mul_u32_u24 v5, 1280, v4'); A('v_lshrrev_b32 v6, 4, v0'); A('v_lshl_add_u32 v5, v6, 4, v5')
    A(f's_mul_i32 s46, s51, {32*1280}'); A('s_lshl_b32 s47, s50, 6'); A('s_add_u32 s46, s46, s47')
    A('s_cmp_lt_u32 s49, 400'); A(f's_cselect_b32 s46, s46, {OOB}')
    A(f's_add_u32 s47, s46, {16*1280}')
    A('buffer_load_dwordx4 v[40:43], v5, s[28:31], s46 offen'); A('buffer_load_dwordx4 v[44:47], v5, s[32:35], s46 offen')
    A('buffer_load_dwordx4 v[48:51], v5, s[28:31], s47 offen'); A('buffer_load_dwordx4 v[52:55], v5, s[32:35], s47 offen')
    A('v_mov_b32 v8, 0')
    for i in range(20):
        A(f'v_lshlrev_b32 v6, 16, v{12+i}'); A(f'v_and_b32 v7, 0xffff0000, v{12+i}'); A('v_add_f32 v8, v8, v6'); A('v_add_f32 v8, v8, v7')
    P += dpp_row_sum(8)
    A(f'v_mov_b32 v9, s{sTAG}')
    A('s_mul_i32 s46, s45, 640'); A('s_add_u32 s46, s46, 1728'); A('s_lshl_b32 s46, s46, 5'); A(f's_add_u32 s46, s46, {CS}')
    A('v_lshlrev_b32 v3, 5, v2')
    A('v_cmp_gt_u32 vcc, 640, v2'); A(f'v_mov_b32 v6, {OOB}'); A('v_cndmask_b32 v3, v6, v3, vcc')
    A('s_mov_b32 exec_lo, 0x10001'); A('s_mov_b32 exec_hi, 0x10001')
    A('buffer_store_dwordx2 v[8:9], v3, s[8:11], s46 offen')
    A('s_mov_b64 exec, -1')
    A('v_lshlrev_b32 v9, 4, v0')
    for jj in range(2):
        for part in range(2):
            A('s_lshl_b32 s46, s51, 1'); A(f's_add_u32 s46, s46, {jj}')
            A('s_mul_i32 s47, s46, 52'); A('s_lshr_b32 s47, s47, 8')
            A('s_mul_i32 s52, s47, 465'); A('s_add_u32 s46, s46, s52')
            A('s_mul_i32 s52, s50, 10'); A('s_add_u32 s46, s46, s52'); A(f's_add_u32 s46, s46, {(54+part)*5}')
            A('s_lshl_b32 s46, s46, 10'); A(f's_add_u32 s46, s46, {W2F}')
            A('s_cmp_lt_u32 s49, 400'); A(f's_cselect_b32 s46, s46, {OOB}')
            r = 40 + 8 * jj + 4 * part
            A(f'buffer_store_dwordx4 v[{r}:{r+3}], v9, s[8:11], s46 offen')
    A('L_prep_end:')
    F += fin(P)
    return F

NOPSTATS = []
def fin(P):
    return finalize(P, NOPSTATS)

SLOT0 = 40960; SLOT = 40960; WOFF = 16384
ACC = 16; FR = 112
sC1, sC2, sC3, sWL, sWK = 44, 45, 46, 47, 48

def dma_chunk(role, c):
    slot = SLOT0 + SLOT * (c % 3)
    G = []
    soff = ['0', f's{sC1}', f's{sC2}', f's{sC3}']
    xs = [[f's_add_u32 m0, s{sWL}, {slot + 4096*n - 128*c}',
           I(f'buffer_load_dwordx4 v1, s[4:7], {soff[n]} offen offset:{128*c} lds', tag=f'c{c}')] for n in range(4)]
    ws = []
    if role == 's5':
        for n in range(6):
            s = 12 if n % 2 == 0 else 16
            ws.append([f's_add_u32 m0, s{sWL}, {slot + WOFF + 4096*n - 128*c}',
                       I(f'buffer_load_dwordx4 v2, s[{s}:{s+3}], {soff[n//2]} offen offset:{128*c} lds', tag=f'c{c}')])
    else:
        for hi in range(2):
            for cb in range(3):
                g = [f's_add_u32 m0, s{sWL}, {slot + WOFF + 8192*cb + 4096*hi - 128*cb}',
                     I(f'buffer_load_dwordx4 v2, s[12:15], s{sWK} offen offset:{128*cb} lds', tag=f'c{c}')]
                if cb == 2: g.append(f's_add_u32 s{sWK}, s{sWK}, {32*3456}')
                ws.append(g)
    order = [xs[0], ws[0], ws[1], xs[1], ws[2], xs[2], ws[3], ws[4], xs[3], ws[5]]
    return order

def reads(role, sig):
    c, s = divmod(sig, 4)
    bump = 40960 if c % 3 != 2 else -81920
    def bmp(v): return f'v_add_u32 v{v}, {bump}, v{v}' if bump > 0 else f'v_subrev_u32 v{v}, {-bump}, v{v}'
    R = []
    if role == 's5':
        f = FR + 28 * (sig & 1)
        R.append(f'ds_read_b128 v[{f}:{f+3}], v{3+s}')
        for n in range(6):
            R.append(f'ds_read_b128 v[{f+4+4*n}:{f+7+4*n}], v{7+s} offset:{WOFF + 4096*n}')
        R += [bmp(3+s), bmp(7+s)]
    else:
        f = FR + 20 * (sig & 1)
        x = lambda tb: f'ds_read_b128 v[{f+4*tb}:{f+4*tb+3}], v{3+s} offset:{4096*tb}'
        w = lambda b, u: f'ds_read_b64_tr_b16 v[{f+8+4*b+2*u}:{f+9+4*b+2*u}], v{7+b} offset:{(16*s+4*u)*128}'
        R += [x(0), w(0, 0), w(0, 1), x(1), w(1, 0), w(1, 1), w(2, 0), w(2, 1), bmp(3+s)]
        if s == 3: R += [bmp(7), bmp(8), bmp(9)]
    return R

def mfmas(role, f, first):
    M = []
    for t in range(6):
        d = ACC + 16 * t
        if role == 's5':
            a, b = f, f + 4 + 4 * t
        else:
            a, b = f + 8 + 4 * (t // 2), f + 4 * (t % 2)
        M.append(f'v_mfma_f32_32x32x16_bf16 v[{d}:{d+15}], v[{a}:{a+3}], v[{b}:{b+3}], ' + ('0' if first else f'v[{d}:{d+15}]'))
    return M

def mainloop(role, side):
    P = []
    fsz = 28 if role == 's5' else 20
    P += [Wait('c0'), 's_barrier'] + reads(role, 0)
    pend = []
    gapno = 0
    side = list(side)
    for sig in range(40):
        c, s = divmod(sig, 4)
        M = mfmas(role, FR + fsz * (sig & 1), sig == 0)
        R = reads(role, sig + 1) if sig < 39 else []
        bar = (s == 3 and c < 9)
        first_gap = 1 if bar else 0
        for t in range(6):
            P.append(M[t])
            used = 0
            if bar and t == 1:
                P += [Wait(f'c{c+1}'), 's_waitcnt lgkmcnt(0)', 's_barrier']
                used += 2
                if c + 3 < 10:
                    assert not pend
                    pend = dma_chunk(role, c + 3); gapno = 0
            if t >= first_gap:
                n = 2 if t < 5 else len(R)
                if role != 's5' and s == 2 and t >= 3: n = 3 if t < 5 else len(R)
                P += R[:n]; used += len(R[:n]); R = R[n:]
            if pend:
                done = 10 - len(pend)
                if done * 23 <= gapno * 10:
                    g = pend.pop(0); P += g; used += len(g)
                gapno += 1
            if sig >= 6:
                while side and used < 5:
                    y = side.pop(0)
                    P.append(y)
                    if not isinstance(y, Wait):
                        used += 2 if mk(y).base in TRANS else 1
    P += side
    return P

def p1_common_prologue():
    P = []
    P += srd(4, K_X, 2621440) + srd(8, K_WS, WS_USED)
    P += ids('L_p1_end')
    P += [f's_mov_b32 s{sC1}, 40960', f's_mov_b32 s{sC2}, 81920', f's_mov_b32 s{sC3}, 122880', f's_lshl_b32 s{sWL}, s{sW}, 10']
    P += [f's_cmp_ge_u32 s{sCG}, 9', 's_cbranch_scc1 L_p1_s5']
    return P

def xswz(dst, tmp):
    return [f's_and_b32 s49, s{sW}, 1', 's_lshl_b32 s49, s49, 2', f'v_lshrrev_b32 v{tmp}, 4, v0', f'v_add_u32 v{tmp}, s49, v{tmp}',
            f'v_and_b32 v{dst}, 7, v0', f'v_xor_b32 v{dst}, v{dst}, v{tmp}', f'v_lshlrev_b32 v{dst}, 4, v{dst}']

def frag_read_base(dst, tmp):
    return [f'v_bfe_u32 v{tmp}, v0, 1, 3', f'v_lshrrev_b32 v{dst}, 5, v0', f'v_xor_b32 v{tmp}, v{tmp}, v{dst}',
            f'v_and_b32 v{dst}, 31, v0', f'v_lshlrev_b32 v{dst}, 7, v{dst}', f'v_lshl_add_u32 v{dst}, v{tmp}, 4, v{dst}']

def cs_split(cs, bias, f, t):
    L = [f'v_and_b32 v{t}, 0xffff0000, v{cs}', f'v_sub_f32 v{t}, v{cs}, v{t}', f'v_perm_b32 v{f}, v{t}, v{cs}, s52',
         f'v_and_b32 v{cs}, 0xffff0000, v{t}', f'v_sub_f32 v{t}, v{t}, v{cs}']
    if bias is None: L.append(f'v_lshrrev_b32 v{f+1}, 16, v{t}')
    else: L.append(f'v_perm_b32 v{f+1}, v{bias}, v{t}, s53')
    L += [f'v_mov_b32 v{f+2}, 0', f'v_mov_b32 v{f+3}, 0']
    return L

def x_ext(st, f):
    return [f'v_cndmask_b32 v{f+1}, 0, v{st}, s[50:51]', f'v_perm_b32 v{f}, v{f+1}, v{f+1}, s54', f'v_mov_b32 v{f+2}, 0', f'v_mov_b32 v{f+3}, 0']

EXT_CONSTS = ['s_mov_b32 s50, -1', 's_mov_b32 s51, 0', 's_mov_b32 s52, 0x07060302', 's_mov_b32 s53, 0x05040302', 's_mov_b32 s54, 0x01000100']

def p1_ffn():
    P = []; A = P.append
    P += srd(12, K_W1, 640 * 3456) + srd(20, K_B1, 3456)
    P += xswz(1, 11)
    A(f's_lshl_b32 s49, s{sRB}, 4'); A(f's_add_u32 s49, s49, s{sW}'); A('s_lshl_b32 s49, s49, 3')
    A('v_lshrrev_b32 v11, 3, v0'); A('v_add_u32 v12, s49, v11'); A('v_mul_u32_u24 v12, 1280, v12'); A('v_add_u32 v1, v1, v12')
    A(f's_lshl_b32 s49, s{sW}, 3'); A('v_add_u32 v12, s49, v11'); A('v_mul_u32_u24 v12, 3456, v12')
    A('v_bfe_u32 v13, v0, 4, 1'); A('v_lshlrev_b32 v13, 2, v13'); A('v_and_b32 v2, 7, v0'); A('v_xor_b32 v2, v2, v13'); A('v_lshl_add_u32 v2, v2, 4, v12')
    A(f's_mul_i32 s{sWK}, s{sCG}, 384')
    for c in range(3):
        for g in dma_chunk('ffn', c): P += g
    P += frag_read_base(3, 11)
    A(f's_and_b32 s55, s{sW}, 1'); A(f's_lshr_b32 s56, s{sW}, 1')
    A('s_lshl_b32 s49, s55, 13'); A(f's_add_u32 s49, s49, {SLOT0}'); A('v_add_u32 v3, s49, v3')
    for s in range(1, 4): A(f'v_xor_b32 v{3+s}, {s*32}, v3')
    A('v_lshrrev_b32 v11, 5, v0'); A('v_bfe_u32 v12, v0, 2, 2'); A('v_lshl_add_u32 v11, v11, 3, v12'); A('v_lshlrev_b32 v11, 7, v11')
    A('v_bfe_u32 v12, v0, 3, 1'); A('v_lshl_add_u32 v11, v12, 6, v11'); A('v_bfe_u32 v12, v0, 4, 1'); A('v_lshl_add_u32 v11, v12, 5, v11')
    A('v_and_b32 v12, 3, v0'); A('v_lshl_add_u32 v11, v12, 3, v11')
    for b in range(3):
        A('s_mul_i32 s49, s56, 3'); A(f's_add_u32 s49, s49, {b}')
        A('s_and_b32 s57, s49, 1'); A('s_lshl_b32 s57, s57, 6'); A('s_lshr_b32 s49, s49, 1'); A('s_lshl_b32 s49, s49, 13'); A(f's_add_u32 s49, s49, {SLOT0 + WOFF}')
        A(f'v_xor_b32 v{7+b}, s57, v11'); A(f'v_add_u32 v{7+b}, s49, v{7+b}')
    P += EXT_CONSTS
    A('v_and_b32 v11, 31, v0')
    A(f's_lshl_b32 s49, s{sRB}, 1'); A('s_add_u32 s58, s49, s55')
    A('s_lshl_b32 s49, s58, 9'); A(f's_add_u32 s49, s49, {STAT}'); A('v_lshlrev_b32 v12, 3, v11')
    A('buffer_load_dword v168, v12, s[8:11], s49 offen'); A('buffer_load_dword v169, v12, s[8:11], s49 offen offset:256')
    A(f's_mul_i32 s59, s{sCG}, 6'); A('s_mul_i32 s49, s56, 3'); A('s_add_u32 s59, s59, s49')
    A('s_lshl_b32 s49, s59, 10'); A(f's_add_u32 s49, s49, {CS}')
    A('v_lshrrev_b32 v12, 5, v0'); A('v_lshlrev_b32 v12, 4, v12'); A('v_lshl_add_u32 v12, v11, 5, v12')
    for b in range(3): A(f'buffer_load_dwordx4 v[{172+4*b}:{175+4*b}], v12, s[8:11], s49 offen offset:{1024*b}')
    A('s_lshl_b32 s49, s59, 6'); A('v_lshlrev_b32 v12, 1, v11')
    for b in range(3): A(f'buffer_load_ushort v{184+b}, v12, s[20:23], s49 offen offset:{64*b}')
    S = []
    EX = 188
    for tb in range(2): S += x_ext(168 + tb, EX + 4 * tb)
    for b in range(3):
        r = 172 + 4 * b
        S += [f'v_add_f32 v{r}, v{r}, v{r+2}', f'v_mov_b32 v{r+1}, v{r}', f'v_permlane32_swap_b32 v{r}, v{r+1}', f'v_add_f32 v{r}, v{r}, v{r+1}']
        S += cs_split(r, 184 + b, EX + 8 + 4 * b, r + 1)
    c1 = -2 * math.sqrt(2 / math.pi) * LOG2E; c3 = c1 * 0.044715
    for tb in range(2):
        S += [f'v_and_b32 v{212+tb}, 0xffff0000, v{168+tb}', f'v_rcp_f32 v{170}, v{212+tb}', f'v_mul_f32 v{208+tb}, {fbits(c1)}, v170',
              f'v_mul_f32 v171, v170, v170', f'v_mul_f32 v171, v171, v170', f'v_mul_f32 v{210+tb}, {fbits(c3)}, v171']
    S += ['v_bfe_u32 v11, v0, 4, 1', 'v_lshlrev_b32 v11, 10, v11', 'v_lshrrev_b32 v12, 5, v0', 'v_lshl_add_u32 v11, v12, 8, v11',
          'v_and_b32 v12, 15, v0', 'v_lshl_add_u32 v11, v12, 4, v11',
          's_mul_i32 s60, s58, 94', 's_add_u32 s60, s60, s59', 's_lshl_b32 s60, s60, 12']
    P += mainloop('ffn', S)
    P += mfmas('ffn', EX, False)
    T = 112
    n = 0
    for t in range(6):
        b, tb = divmod(t, 2)
        sel = f'op_sel:[0,{tb},{tb}] op_sel_hi:[1,{tb},{tb}]'
        for piece in range(2):
            o = 128 + 4 * (n % 2); n += 1
            a = lambda p: f'v[{ACC+16*t+8*piece+2*p}:{ACC+16*t+8*piece+2*p+1}]'
            tt = lambda p: f'v[{T+2*p}:{T+2*p+1}]'
            for p in range(4): A(f'v_pk_mul_f32 {tt(p)}, {a(p)}, {a(p)}')
            for p in range(4): A(f'v_pk_fma_f32 {tt(p)}, {tt(p)}, v[210:211], v[208:209] {sel}')
            for p in range(4): A(f'v_pk_mul_f32 {tt(p)}, {tt(p)}, {a(p)}')
            for p in range(8): A(f'v_exp_f32 v{T+p}, v{T+p}')
            for p in range(4): A(f'v_pk_fma_f32 {tt(p)}, {tt(p)}, v[212:213], v[212:213] {sel}')
            for p in range(8): A(f'v_rcp_f32 v{T+p}, v{T+p}')
            for p in range(4): A(f'v_pk_mul_f32 {tt(p)}, {tt(p)}, {a(p)}')
            for p in range(4): A(f'v_cvt_pk_bf16_f32 v{o+p}, v{T+2*p}, v{T+2*p+1}')
            A(f'buffer_store_dwordx4 v[{o}:{o+3}], v11, s[8:11], s60 offen offset:{tb*2048+piece*512} sc1')
        if tb == 1: A('s_add_u32 s60, s60, 4096')
    A('s_branch L_p1_end')
    return P

def cpow(dst, rho, th, n, t):
    if isinstance(n, str):
        L = [f'v_mul_f32 v{t}, {n}, v{rho}', f'v_mul_f32 v{t+1}, {n}, v{th}']
    else:
        L = [f'v_mul_f32 v{t}, {fbits(n)}, v{rho}', f'v_mul_f32 v{t+1}, {fbits(n)}, v{th}']
    L += [f'v_exp_f32 v{t}, v{t}', f'v_fract_f32 v{t+1}, v{t+1}', f'v_cos_f32 v{dst}, v{t+1}', f'v_sin_f32 v{dst+1}, v{t+1}',
          f'v_mul_f32 v{dst}, v{t}, v{dst}', f'v_mul_f32 v{dst+1}, v{t}, v{dst+1}']
    return L

BC_LO = 'op_sel:[0,0,0] op_sel_hi:[0,1,1]'
BC_HI = 'op_sel:[1,0,0] op_sel_hi:[1,1,1]'
NEG0 = 'neg_lo:[1,0,0] neg_hi:[1,0,0]'
def pr(r): return f'v[{r}:{r+1}]'
def cmul_add(dst, a, x, add):
    return [f'v_pk_fma_f32 {pr(dst)}, {pr(a)}, {pr(x)}, {pr(add)} {BC_LO}',
            f'v_pk_fma_f32 {pr(dst)}, {pr(a)}, {pr(x)}, {pr(dst)} op_sel:[1,1,0] op_sel_hi:[1,0,1] neg_lo:[1,0,0]']

def p1_s5():
    P = ['L_p1_s5:']; A = P.append
    P += srd(12, K_BRE, 819200) + srd(16, K_BIM, 819200) + srd(20, K_LRE, 1280) + srd(24, K_LIM, 1280) + srd(28, K_LDT, 1280)
    A(f's_sub_u32 s55, s{sCG}, 9')
    P += xswz(2, 11)
    A('v_lshrrev_b32 v11, 5, v0'); A('v_lshlrev_b32 v11, 4, v11'); A('v_bfe_u32 v12, v0, 3, 1'); A('v_lshl_add_u32 v11, v12, 3, v11')
    A('v_bfe_u32 v12, v0, 4, 1'); A('v_add_u32 v11, v11, v12')
    A(f's_lshl_b32 s49, s{sRB}, 6'); A(f's_add_u32 s49, s49, s{sW}'); A('s_lshl_b32 s49, s49, 1')
    A('v_add_u32 v11, s49, v11'); A('v_mul_u32_u24 v11, 1280, v11'); A('v_add_u32 v1, v2, v11')
    A('s_mul_i32 s56, s55, 96'); A(f's_lshl_b32 s49, s{sW}, 3'); A('s_add_u32 s49, s49, s56')
    A('v_lshrrev_b32 v11, 3, v0'); A('v_add_u32 v11, s49, v11'); A('v_mul_u32_u24 v11, 1280, v11'); A('v_add_u32 v2, v2, v11')
    for c in range(3):
        for g in dma_chunk('s5', c): P += g
    P += frag_read_base(7, 11)
    A(f'v_add_u32 v7, {SLOT0}, v7')
    A(f's_lshl_b32 s49, s{sW}, 12'); A('v_add_u32 v3, s49, v7')
    for s in range(1, 4): A(f'v_xor_b32 v{3+s}, {s*32}, v3'); A(f'v_xor_b32 v{7+s}, {s*32}, v7')
    P += EXT_CONSTS
    A('v_and_b32 v11, 31, v0')
    A('v_bfe_u32 v12, v0, 2, 1'); A('v_lshlrev_b32 v12, 4, v12'); A('v_and_b32 v13, 1, v0'); A('v_lshl_add_u32 v12, v13, 3, v12')
    A('v_lshrrev_b32 v13, 3, v11'); A('v_lshl_add_u32 v12, v13, 1, v12'); A('v_bfe_u32 v13, v0, 1, 1'); A('v_add_u32 v12, v12, v13')
    A('v_lshlrev_b32 v12, 3, v12')
    A(f's_lshl_b32 s49, s{sRB}, 2'); A(f's_add_u32 s49, s49, s{sW}'); A('s_lshl_b32 s49, s49, 8'); A(f's_add_u32 s49, s49, {STAT}')
    A('buffer_load_dword v226, v12, s[8:11], s49 offen')
    A('v_lshlrev_b32 v12, 5, v11')
    for part in range(2):
        A(f's_add_u32 s49, s56, {1728 + 640*part}'); A('s_lshl_b32 s49, s49, 5'); A(f's_add_u32 s49, s49, {CS}')
        for b in range(3):
            if b == 2: A('s_cmp_lt_u32 s55, 6'); A(f's_cselect_b32 s49, s49, {OOB}')
            A(f'buffer_load_dword v{228+2*b+part}, v12, s[8:11], s49 offen offset:{1024*b}')
    A('v_lshlrev_b32 v12, 1, v11'); A('s_lshl_b32 s49, s56, 1')
    for b in range(3):
        for k, s in enumerate((20, 24, 28)):
            A(f'buffer_load_ushort v{234+3*b+k}, v12, s[{s}:{s+3}], s49 offen offset:{64*b}')
    S = []
    A1, A8, A16, ASG, W0, W1, KC = 168, 174, 180, 186, 192, 198, 204
    T = 210
    S += ['v_lshrrev_b32 v13, 5, v0', f's_lshl_b32 s57, s{sW}, 1', 'v_add_u32 v13, s57, v13',
          'v_lshlrev_b32 v244, 4, v13', 'v_cvt_f32_u32 v244, v244',
          'v_lshlrev_b32 v14, 1, v13', f's_sub_u32 s49, s{sRB}, 1', 'v_sub_u32 v245, s49, v14', 'v_subrev_u32 v246, 1, v245',
          'v_max_i32 v245, 0, v245', 'v_max_i32 v246, 0, v246', 'v_lshlrev_b32 v245, 7, v245', 'v_lshlrev_b32 v246, 7, v246',
          'v_cvt_f32_u32 v245, v245', 'v_cvt_f32_u32 v246, v246']
    for b in range(3):
        lr, li, ld = 234 + 3 * b, 235 + 3 * b, 236 + 3 * b
        S += [f'v_lshlrev_b32 v{lr}, 16, v{lr}', f'v_lshlrev_b32 v{li}, 16, v{li}', f'v_lshlrev_b32 v{ld}, 16, v{ld}',
              f'v_mul_f32 v{ld}, {fbits(LOG2E)}, v{ld}', f'v_exp_f32 v{ld}, v{ld}', f'v_cvt_pk_bf16_f32 v{ld}, v{ld}, v{ld}', f'v_and_b32 v{ld}, 0xffff0000, v{ld}',
              f'v_mul_f32 v{T+2}, v{ld}, v{lr}', f'v_mul_f32 v{T+3}, v{ld}, v{li}',
              f'v_mul_f32 v{T+2}, {fbits(LOG2E)}, v{T+2}', f'v_mul_f32 v{T+3}, {fbits(1/(2*math.pi))}, v{T+3}']
        for dst, n in ((A1, 1.0), (A8, 8.0), (A16, 16.0), (ASG, 'v244'), (W0, 'v245'), (W1, 'v246')):
            S += cpow(dst + 2 * b, T + 2, T + 3, n, T)
        a = A1 + 2 * b; k = KC + 2 * b
        S += [f'v_add_f32 v{T}, -1.0, v{a}', f'v_mul_f32 v{T+1}, v{lr}, v{lr}', f'v_fmac_f32 v{T+1}, v{li}, v{li}', f'v_rcp_f32 v{T+1}, v{T+1}',
              f'v_mul_f32 v{k}, v{T}, v{lr}', f'v_fmac_f32 v{k}, v{a+1}, v{li}', f'v_mul_f32 v{k+1}, v{a+1}, v{lr}', f'v_fma_f32 v{k+1}, -v{T}, v{li}, v{k+1}',
              f'v_add_f32 v{T+1}, v{T+1}, v{T+1}', f'v_mul_f32 v{k}, v{k}, v{T+1}', f'v_mul_f32 v{k+1}, v{k+1}, v{T+1}']
    S += ['v_and_b32 v227, 0xffff0000, v226', 'v_rcp_f32 v227, v227',
          'v_bfe_u32 v14, v0, 2, 1', 'v_lshlrev_b32 v14, 4, v14', 'v_lshrrev_b32 v15, 3, v11', 'v_lshl_add_u32 v14, v15, 2, v14',
          'v_and_b32 v15, 3, v0', 'v_add_u32 v14, v14, v15', 'v_lshlrev_b32 v14, 2, v14', f's_lshl_b32 s49, s{sW}, 7', 'v_add_u32 v14, s49, v14',
          I('ds_write_b32 v14, v227', tag='rsw'),
          'v_lshrrev_b32 v14, 5, v0', 'v_lshlrev_b32 v14, 6, v14', 'v_add_u32 v247, s49, v14']
    P += mainloop('s5', S)
    EX = FR
    P += x_ext(226, EX)
    for t in range(6): P += cs_split(228 + t, None, EX + 4 + 4 * t, T)
    P += mfmas('s5', EX, False)
    R = 140
    for i in range(4): P.append(I(f'ds_read_b128 v[{R+4*i}:{R+4*i+3}], v247 offset:{16*i}', need=['rsw']))
    U = lambda b, part, j: ACC + 32 * b + 16 * part + 2 * j
    ST = 112
    st = lambda k, b, part: ST + 12 * k + 4 * b + 2 * part
    for b in range(3):
        for part in range(2):
            for j in range(8): A(f'v_pk_mul_f32 {pr(U(b,part,j))}, {pr(U(b,part,j))}, {pr(R+2*j)}')
    def step(b, sre, sim, ure, uim, dre, dim):
        a = pr(A1 + 2 * b)
        return [f'v_pk_fma_f32 {pr(dre)}, {a}, {pr(sre)}, {pr(ure)} {BC_LO}', f'v_pk_fma_f32 {pr(dim)}, {a}, {pr(sim)}, {pr(uim)} {BC_LO}',
                f'v_pk_fma_f32 {pr(dre)}, {a}, {pr(sim)}, {pr(dre)} {BC_HI} {NEG0}', f'v_pk_fma_f32 {pr(dim)}, {a}, {pr(sre)}, {pr(dim)} {BC_HI}']
    for b in range(3):
        for j in range(1, 8):
            s = (U(b, 0, 0), U(b, 1, 0)) if j == 1 else (st(j & 1 ^ 1, b, 0), st(j & 1 ^ 1, b, 1))
            P += step(b, s[0], s[1], U(b, 0, j), U(b, 1, j), st(j & 1, b, 0), st(j & 1, b, 1))
    E16 = 1024; QQ = 8192
    A('v_mul_u32_u24 v14, 768, v13'); A('v_lshlrev_b32 v15, 3, v11'); A('v_add_u32 v14, v14, v15')
    for b in range(3):
        re, im, e, a8 = st(1, b, 0), st(1, b, 1), st(0, b, 0), A8 + 2 * b
        P += [f'v_fma_f32 v{e}, v{a8}, v{re}, v{re+1}', f'v_fma_f32 v{e+1}, v{a8}, v{im}, v{im+1}',
              f'v_fma_f32 v{e}, -v{a8+1}, v{im}, v{e}', f'v_fma_f32 v{e+1}, v{a8+1}, v{re}, v{e+1}',
              f'ds_write_b64 v14, {pr(e)} offset:{E16 + 256*b}']
    A('s_waitcnt lgkmcnt(0)'); A('s_barrier')
    EB = 210
    eb = lambda k, b: (140 + 2 * (3 * k + b)) if k < 4 else (210 + 2 * (3 * (k - 4) + b))
    for k in range(8):
        for b in range(3): A(f'ds_read_b64 {pr(eb(k,b))}, v15 offset:{E16 + 768*k + 256*b}')
    PF = lambda b: st(0, b, 1)
    for b in range(3): A(f'v_mov_b32 v{PF(b)}, 0'); A(f'v_mov_b32 v{PF(b)+1}, 0')
    for k in range(7):
        A(f's_cmp_gt_u32 s57, {k}'); A('s_cselect_b32 exec_lo, -1, 0'); A(f's_cmp_ge_u32 s57, {k}'); A('s_cselect_b32 exec_hi, -1, 0')
        for b in range(3): A(f'v_pk_fma_f32 {pr(eb(k,b))}, {pr(A16+2*b)}, {pr(PF(b))}, {pr(eb(k,b))} {BC_LO}')
        for b in range(3): A(f'v_pk_fma_f32 {pr(PF(b))}, {pr(A16+2*b)}, {pr(PF(b))}, {pr(eb(k,b))} op_sel:[1,1,0] op_sel_hi:[1,0,1] neg_lo:[1,0,0]')
    A('s_mov_b64 exec, -1')
    G = 140
    A(f's_mul_i32 s49, s{sRB}, {EST_STRIDE}'); A('s_lshl_b32 s58, s56, 4'); A(f's_add_u32 s58, s58, {EST}'); A('s_add_u32 s49, s49, s58')
    A(f's_cmp_eq_u32 s{sW}, 3'); A(f's_cselect_b32 s49, s49, {OOB}')
    A('v_lshlrev_b32 v12, 4, v11')
    for b in range(3):
        P += cmul_add(eb(7, b), A16 + 2 * b, PF(b), eb(7, b))
        g = G + 4 * b
        P += [f'v_mov_b32 v{g}, v{eb(7,b)}', f'v_mov_b32 v{g+2}, v{eb(7,b)+1}', f'v_mov_b32 v{g+1}, s{sTAG}', f'v_mov_b32 v{g+3}, s{sTAG}']
    A('s_mov_b32 exec_lo, 0')
    for b in range(3): A(f'buffer_store_dwordx4 v[{G+4*b}:{G+4*b+3}], v12, s[8:11], s49 offen offset:{512*b} sc1')
    A('s_mov_b32 exec_lo, -1')
    A('v_lshlrev_b32 v248, 1, v13'); A('v_add_u32 v249, 1, v248')
    A(f'v_cmp_gt_u32 s[60:61], s{sRB}, v248'); A(f'v_cmp_gt_u32 s[62:63], s{sRB}, v249')
    A(f's_mov_b32 s49, {EST_STRIDE}'); A('v_mad_u32_u24 v248, v248, s49, v12'); A('v_mad_u32_u24 v249, v249, s49, v12')
    A(f'v_mov_b32 v250, {OOB}'); A('v_cndmask_b32 v248, v250, v248, s[60:61]'); A('v_cndmask_b32 v249, v250, v249, s[62:63]')
    A(f'v_mov_b32 v250, s{sTAG}'); A('v_cndmask_b32 v251, 0, v250, s[62:63]'); A('v_cndmask_b32 v250, 0, v250, s[60:61]')
    A('s_mov_b32 s59, 0')
    A('s_waitcnt vmcnt(0)')
    A('L_s5_poll:')
    PB = 210
    for q in range(2):
        for b in range(3): A(f'buffer_load_dwordx4 v[{PB+12*q+4*b}:{PB+12*q+4*b+3}], v{248+q}, s[8:11], s58 offen offset:{512*b} sc1')
    A('s_waitcnt vmcnt(0)')
    A('v_mov_b32 v252, 0')
    for q in range(2):
        for b in range(3):
            r = PB + 12 * q + 4 * b
            A(f'v_xor_b32 v{r+1}, v{r+1}, v{250+q}'); A(f'v_xor_b32 v{r+3}, v{r+3}, v{250+q}'); A(f'v_or3_b32 v252, v252, v{r+1}, v{r+3}')
    A('v_cmp_ne_u32 vcc, 0, v252'); A('s_add_u32 s59, s59, 1'); A('s_cmp_gt_u32 s59, 20000'); A('s_cbranch_scc1 L_s5_go')
    A('s_nop 2'); A('s_cbranch_vccnz L_s5_poll')
    A('L_s5_go:')
    for b in range(3):
        r0, r1 = PB + 4 * b, PB + 12 + 4 * b
        w0, w1 = W0 + 2 * b, W1 + 2 * b
        o = G + 2 * b
        P += [f'v_mul_f32 v{o}, v{w0}, v{r0}', f'v_mul_f32 v{o+1}, v{w0}, v{r0+2}', f'v_fma_f32 v{o}, -v{w0+1}, v{r0+2}, v{o}', f'v_fmac_f32 v{o+1}, v{w0+1}, v{r0}',
              f'v_fmac_f32 v{o}, v{w1}, v{r1}', f'v_fmac_f32 v{o+1}, v{w1}, v{r1+2}', f'v_fma_f32 v{o}, -v{w1+1}, v{r1+2}, v{o}', f'v_fmac_f32 v{o+1}, v{w1+1}, v{r1}',
              f'ds_write_b64 v14, {pr(o)} offset:{QQ + 256*b}']
    A('s_waitcnt lgkmcnt(0)'); A('s_barrier')
    for k in range(8):
        for b in range(3): A(f'ds_read_b64 {pr(eb(k,b))}, v15 offset:{QQ + 768*k + 256*b}')
    for k in range(1, 8):
        for b in range(3): A(f'v_pk_add_f32 {pr(eb(0,b))}, {pr(eb(0,b))}, {pr(eb(k,b))}')
    for b in range(3):
        P += cmul_add(PF(b), ASG + 2 * b, eb(0, b), PF(b))
        re, im, a8, ca = st(1, b, 0), st(1, b, 1), A8 + 2 * b, PF(b)
        P += [f'v_fma_f32 v{re+1}, v{a8}, v{ca}, v{re}', f'v_fma_f32 v{im+1}, v{a8}, v{ca+1}, v{im}',
              f'v_fma_f32 v{re+1}, -v{a8+1}, v{ca+1}, v{re+1}', f'v_fma_f32 v{im+1}, v{a8+1}, v{ca}, v{im+1}',
              f'v_mov_b32 v{re}, v{ca}', f'v_mov_b32 v{im}, v{ca+1}']
    TRB = SLOT0
    A(f's_mul_i32 s49, s{sW}, 15360'); A(f's_add_u32 s49, s49, {TRB}')
    A('v_mul_u32_u24 v14, 80, v11'); A('v_lshrrev_b32 v15, 5, v0'); A('v_lshl_add_u32 v14, v15, 5, v14'); A('v_add_u32 v14, s49, v14')
    A('v_lshrrev_b32 v15, 4, v0'); A('v_bfe_u32 v12, v0, 2, 2'); A('v_lshl_add_u32 v15, v15, 3, v12'); A('v_mul_u32_u24 v15, 80, v15')
    A('v_and_b32 v12, 3, v0'); A('v_lshl_add_u32 v15, v12, 3, v15'); A('v_add_u32 v15, s49, v15')
    A('v_lshlrev_b32 v12, 4, v0')
    A(f's_lshl_b32 s60, s{sRB}, 1'); A(f's_lshr_b32 s49, s{sW}, 1'); A('s_add_u32 s60, s60, s49'); A('s_mul_i32 s60, s60, 94')
    A('s_mul_i32 s49, s55, 6'); A('s_add_u32 s60, s60, s49'); A('s_add_u32 s60, s60, 54'); A('s_lshl_b32 s60, s60, 12')
    A(f's_and_b32 s49, s{sW}, 1'); A('s_lshl_b32 s49, s49, 11'); A('s_add_u32 s60, s60, s49')
    O = 140
    PK = 148; FG = 210
    for b in range(3):
        k = pr(KC + 2 * b)
        for j in range(8):
            s = (st(1, b, 0), st(1, b, 1)) if j == 0 else (U(b, 0, j - 1), U(b, 1, j - 1))
            P += step(b, s[0], s[1], U(b, 0, j), U(b, 1, j), U(b, 0, j), U(b, 1, j))
            ore, oim = O + 4 * (j & 1), O + 4 * (j & 1) + 2
            hre, him = pr(U(b, 0, j)), pr(U(b, 1, j))
            P += [f'v_pk_mul_f32 {pr(ore)}, {k}, {hre} op_sel:[0,0] op_sel_hi:[0,1]',
                  f'v_pk_mul_f32 {pr(oim)}, {k}, {him} op_sel:[0,0] op_sel_hi:[0,1] neg_lo:[1,0] neg_hi:[1,0]',
                  f'v_pk_fma_f32 {pr(ore)}, {k}, {him}, {pr(ore)} {BC_HI} {NEG0}',
                  f'v_pk_fma_f32 {pr(oim)}, {k}, {hre}, {pr(oim)} {BC_HI} {NEG0}']
            if j & 1:
                for part in range(2):
                    for sub in range(2):
                        A(f'v_cvt_pk_bf16_f32 v{PK+8*part+4*sub+j//2}, v{O+2*part+sub}, v{O+4+2*part+sub}')
        for part in range(2):
            for sub in range(2):
                r = PK + 8 * part + 4 * sub
                P.append(I(f'ds_write_b128 v14, v[{r}:{r+3}] offset:{(2*b+part)*2560 + 16*sub}', tag=f'tw{b}'))
        for part in range(2):
            for tt in range(2):
                for u in range(2):
                    r = FG + 8 * part + 4 * tt + 2 * u
                    P.append(I(f'ds_read_b64_tr_b16 {pr(r)}, v15 offset:{(2*b+part)*2560 + 320*u + 32*tt}', need=[f'tw{b}']))
        if b == 2: A('s_cmp_lt_u32 s55, 6'); A(f's_cselect_b32 s60, s60, {OOB}')
        for part in range(2):
            for tt in range(2):
                r = FG + 8 * part + 4 * tt
                A(f'buffer_store_dwordx4 v[{r}:{r+3}], v12, s[8:11], s60 offen offset:{1024*tt} sc1')
            A('s_add_u32 s60, s60, 4096')
    A('L_p1_end:')
    return P

def p1():
    pro = p1_common_prologue()
    pro.insert(len(pro) - 2, 's_waitcnt lgkmcnt(0)')
    return fin(pro) + fin(p1_ffn()) + fin(p1_s5())

def p2():
    P = []; A = P.append
    P += srd(4, K_X, 2621440) + srd(8, K_WS, WS_USED) + srd(12, K_OUT, 5242880) + srd(16, K_DSK, 1280) + srd(20, K_B2, 1280)
    A('s_cmp_ge_u32 s2, 256'); A('s_cbranch_scc1 L_p2_end')
    A('v_lshrrev_b32 v1, 6, v0'); A('v_mov_b32 v2, v0'); A('v_and_b32 v0, 63, v0')
    A('s_and_b32 s40, s2, 7'); A('s_lshr_b32 s41, s2, 3'); A(f'v_readfirstlane_b32 s{sW}, v1')
    A('s_lshl_b32 s42, s40, 2'); A('s_and_b32 s43, s41, 3'); A('s_add_u32 s42, s42, s43')
    A('s_lshr_b32 s43, s41, 2')
    A('v_lshlrev_b32 v1, 4, v0'); A('v_add_u32 v3, 4096, v1')
    A(f's_mul_i32 s44, s{sW}, 14'); A(f's_cmp_eq_u32 s{sW}, 3'); A('s_cselect_b32 s45, 1, 0'); A('s_sub_u32 s44, s44, s45')
    A(f's_mul_i32 s45, s{sW}, 10'); A('s_add_u32 s45, s45, 54')
    A('s_mul_i32 s46, s42, 94'); A('s_mul_i32 s47, s43, 94')
    A('s_add_u32 s48, s46, s44'); A('s_lshl_b32 s48, s48, 12'); A('s_add_u32 s49, s47, s44'); A('s_mul_i32 s49, s49, 5120'); A(f's_add_u32 s49, s49, {W2F}')
    A('s_add_u32 s50, s46, s45'); A('s_lshl_b32 s50, s50, 12'); A('s_add_u32 s51, s47, s45'); A('s_mul_i32 s51, s51, 5120'); A(f's_add_u32 s51, s51, {W2F}')
    DEPTH = 4; RING = 5
    def loads(st):
        base = 36 * (st % RING)
        sa, sw = (48, 49) if st < 14 else (50, 51)
        L = []
        if st == 13: L += [f's_cmp_lt_u32 s{sW}, 2', f's_cselect_b32 s48, s48, {OOB}', f's_cselect_b32 s49, s49, {OOB}']
        w = [f'buffer_load_dwordx4 a[{base+4*j}:{base+4*j+3}], v{1 if j < 4 else 3}, s[8:11], s{sw} offen' + (f' offset:{1024*j}' if j < 4 else '') for j in range(5)]
        a = [f'buffer_load_dwordx4 a[{base+20+4*t}:{base+23+4*t}], v1, s[8:11], s{sa} offen offset:{1024*t} sc1' for t in range(4)]
        L += [w[0], a[0], a[1], a[2], a[3], w[1], w[2], w[3], w[4], f's_add_u32 s{sa}, s{sa}, 4096', f's_add_u32 s{sw}, s{sw}, 5120']
        return L
    for st in range(DEPTH): P += loads(st)
    XQ, SQ, DQ, BQ, LA, OA = 180, 190, 196, 206, 216, 222
    A('s_mov_b32 s52, 3277'); A('s_mov_b32 s53, 336'); A('s_mov_b32 s54, 1280')
    A(f's_mul_i32 s55, s42, {64*1280}'); A('s_mul_i32 s56, s43, 160'); A('s_add_u32 s55, s55, s56')
    A('s_lshl_b32 s57, s55, 1')
    A('s_lshl_b32 s58, s42, 9'); A(f's_add_u32 s58, s58, {STAT}')
    for i in range(5):
        A(f'v_add_u32 v4, {256*i}, v2'); A('v_mul_u32_u24 v5, s52, v4'); A('v_lshrrev_b32 v5, 16, v5')
        A('v_mul_u32_u24 v6, 20, v5'); A('v_sub_u32 v6, v4, v6')
        A('v_lshlrev_b32 v7, 3, v6'); A('v_mad_u32_u24 v8, v5, s54, v7')
        A(f'buffer_load_dwordx2 v[{XQ+2*i}:{XQ+2*i+1}], v8, s[4:7], s55 offen')
        A(f'v_lshlrev_b32 v{OA+i}, 1, v8')
        A(f'buffer_load_dwordx2 v[{DQ+2*i}:{DQ+2*i+1}], v7, s[16:19], s56 offen')
        A(f'buffer_load_dwordx2 v[{BQ+2*i}:{BQ+2*i+1}], v7, s[20:23], s56 offen')
        A('v_lshlrev_b32 v8, 3, v5'); A(f'buffer_load_dword v{SQ+i}, v8, s[8:11], s58 offen')
        A('v_lshlrev_b32 v7, 4, v6'); A(f'v_mad_u32_u24 v{LA+i}, v5, s53, v7')
    A(f's_mul_i32 s59, s{sW}, 21504'); A('v_and_b32 v4, 15, v0'); A('v_mul_u32_u24 v4, 336, v4'); A('v_lshrrev_b32 v5, 4, v0')
    A('v_lshl_add_u32 v4, v5, 4, v4'); A('v_add_u32 v4, s59, v4')
    AF, AY = 16, 96
    for st in range(24):
        base = 36 * (st % RING)
        acc = AF if st < 14 else AY
        first = st in (0, 14)
        M = []
        for j in range(5):
            for t in range(4):
                d = acc + 16 * j + 4 * t
                M.append(f'v_mfma_f32_16x16x32_bf16 v[{d}:{d+3}], a[{base+4*j}:{base+4*j+3}], a[{base+20+4*t}:{base+23+4*t}], ' + ('0' if first else f'v[{d}:{d+3}]'))
        L = loads(st + DEPTH) if st + DEPTH < 24 else []
        P += weave(M, L, per_gap=1, start=1)
    FS, YS, RB = 228, 16, 96
    def reduce(acc, dst, tmp):
        for j in range(5):
            for t in range(4):
                d = acc + 16 * j + 4 * t
                A(f'ds_write_b128 v4, v[{d}:{d+3}] offset:{t*16*336 + 64*j}')
        A('s_waitcnt lgkmcnt(0)'); A('s_barrier')
        for i in range(5):
            A(f'ds_read_b128 v[{dst+4*i}:{dst+4*i+3}], v{LA+i}')
            for k in range(1, 4): A(f'ds_read_b128 v[{tmp+12*i+4*k-4}:{tmp+12*i+4*k-1}], v{LA+i} offset:{21504*k}')
        for i in range(5):
            for k in range(1, 4):
                for hf in range(2):
                    A(f'v_pk_add_f32 {pr(dst+4*i+2*hf)}, {pr(dst+4*i+2*hf)}, {pr(tmp+12*i+4*k-4+2*hf)}')
    reduce(AF, FS, 16)
    A('s_barrier')
    reduce(AY, 76, 16)
    YS = 76
    T = 100
    for i in range(5):
        for (src, dst) in ((XQ, T), (DQ, T + 4), (BQ, T + 8)):
            for hf in range(2):
                A(f'v_lshlrev_b32 v{dst+2*hf}, 16, v{src+2*i+hf}'); A(f'v_and_b32 v{dst+2*hf+1}, 0xffff0000, v{src+2*i+hf}')
        A(f'v_and_b32 v{T+13}, 0xffff0000, v{SQ+i}'); A(f'v_rcp_f32 v{T+13}, v{T+13}'); A(f'v_lshlrev_b32 v{T+12}, 16, v{SQ+i}')
        o = 120 + 4 * (i & 1)
        for hf in range(2):
            f = FS + 4 * i + 2 * hf; y = YS + 4 * i + 2 * hf
            A(f'v_pk_add_f32 {pr(f)}, {pr(f)}, {pr(T+8+2*hf)}')
            A(f'v_mul_f32 v{T+8+2*hf}, {fbits(-LOG2E)}, v{f}'); A(f'v_mul_f32 v{T+9+2*hf}, {fbits(-LOG2E)}, v{f+1}')
            A(f'v_exp_f32 v{T+8+2*hf}, v{T+8+2*hf}'); A(f'v_exp_f32 v{T+9+2*hf}, v{T+9+2*hf}')
            A(f'v_pk_add_f32 {pr(T+14)}, {pr(T+2*hf)}, {pr(T+12)} op_sel_hi:[1,0]')
            A(f'v_pk_mul_f32 {pr(T+14)}, {pr(T+14)}, {pr(T+12)} op_sel:[0,1] op_sel_hi:[1,1]')
            A(f'v_pk_fma_f32 {pr(y)}, {pr(T+14)}, {pr(T+4+2*hf)}, {pr(y)}')
            A(f'v_add_f32 v{T+8+2*hf}, 1.0, v{T+8+2*hf}'); A(f'v_add_f32 v{T+9+2*hf}, 1.0, v{T+9+2*hf}')
            A(f'v_rcp_f32 v{T+8+2*hf}, v{T+8+2*hf}'); A(f'v_rcp_f32 v{T+9+2*hf}, v{T+9+2*hf}')
            A(f'v_pk_mul_f32 {pr(y)}, {pr(y)}, {pr(f)}')
            A(f'v_pk_fma_f32 {pr(o+2*hf)}, {pr(y)}, {pr(T+8+2*hf)}, {pr(T+2*hf)}')
        A(f'buffer_store_dwordx4 v[{o}:{o+3}], v{OA+i}, s[12:15], s57 offen')
    A('L_p2_end:')
    return fin(P)

def build(order=(0, 1, 2), extra=None):
    ks = [dict(name='prep_kernel', body=render(prep()), grid=256, block=256, lds=40960, vgpr=64),
          dict(name='p1_kernel', body=render(p1()), grid=256, block=256, lds=163840, vgpr=256),
          dict(name='p2_kernel', body=render(p2()), grid=256, block=256, lds=86016, vgpr=512, accum=256)]
    if extra: ks += extra
    return kg.multi(ks, list(order))

if __name__ == '__main__':
    out = sys.argv[1] if len(sys.argv) > 1 else 'v1.s'
    open(out, 'w').write(build())
    print('nops inserted:', len(NOPSTATS), 'states', sum(p for p, _ in NOPSTATS))
```

```python
import gen1, kg
from asmlib import *
def empty():
    return dict(name='probe_kernel', body='    s_nop 0', grid=256, block=256, lds=0, vgpr=8)
def lat(koff, size, base, stride, n, flags=''):
    P = gen1.srd(4, koff, size) + ['s_cmp_ge_u32 s2, 1', 's_cbranch_scc1 L_pe', f'v_mov_b32 v1, {base}', 's_mov_b64 exec, 1']
    for i in range(n):
        P += [f'buffer_load_dword v2, v1, s[4:7], 0 offen {flags}', 's_waitcnt vmcnt(0)', f'v_add_u32 v1, {stride}, v1']
    P += ['L_pe:']
    return dict(name='probe_kernel', body=render(finalize(P)), grid=1, block=64, lds=0, vgpr=8)
def bw(koff, size, base, R, flags=''):
    P = gen1.srd(4, koff, size) + ['s_cmp_ge_u32 s2, 256', 's_cbranch_scc1 L_pe', 'v_lshlrev_b32 v1, 4, v0', f's_mul_i32 s10, s2, {R}', f's_add_u32 s10, s10, {base}']
    for i in range(R//4096):
        r = 4 + 4*(i % 40)
        P += [f'buffer_load_dwordx4 v[{r}:{r+3}], v1, s[4:7], s10 offen {flags}', 's_add_u32 s10, s10, 4096']
    P += ['s_waitcnt vmcnt(0)', 'L_pe:']
    return dict(name='probe_kernel', body=render(finalize(P)), grid=256, block=256, lds=163840, vgpr=168)
V = {
 'pB': empty(),
 'pC': lat(72, 2621440, 0, 40960, 64),
 'pD': lat(128, 1<<28, 64<<20, 40960, 64),
 'pE': bw(128, 1<<28, 64<<20, 163840),
 'pF': bw(128, 1<<28, 64<<20, 163840, 'nt'),
 'pG': lat(128, 1<<28, 252<<20, 40960, 64),
 'pH': lat(112, 5242880, 0, 40960, 64),
 'pI': bw(72, 2621440, 0, 8192),
}
for k, v in V.items():
    open(f'probe/{k}.s', 'w').write(gen1.build(order=(3,0,1,2), extra=[v]))
open('probe/pA.s','w').write(gen1.build())
```

```python
import gen1, kg
from asmlib import *
SOFF = 0x2000000
def stamp(k):
    return render(finalize(['s_memrealtime s[90:91]', 's_load_dwordx2 s[92:93], s[0:1], 128', 's_cmp_lg_u32 s2, 0', f's_cbranch_scc1 L_st{k}',
        's_waitcnt lgkmcnt(0)', 'v_mov_b32 v1, s90', f'v_mov_b32 v2, {SOFF+256*k}', 'global_store_dword v2, v1, s[92:93]', f'L_st{k}:', 's_waitcnt lgkmcnt(0)'])) + '\n'
def final(a, b):
    P = ['s_memrealtime s[16:17]', 's_load_dwordx2 s[4:5], s[0:1], 128', 's_cmp_lg_u32 s2, 0', 's_cbranch_scc1 L_fe', 's_waitcnt lgkmcnt(0)',
         f'v_mov_b32 v2, {SOFF}']
    for k in range(3): P.append(f'global_load_dword v{3+k}, v2, s[4:5] offset:{256*k}')
    P.append('s_waitcnt vmcnt(0)')
    for k in range(3): P.append(f'v_readfirstlane_b32 s{10+2*k}, v{3+k}')
    P += ['s_nop 4', f's_sub_u32 s20, s{10+2*b}, s{10+2*a}', 's_add_u32 s20, s20, 10000', 's_mov_b32 s24, 0',
          'L_fl:', 's_memrealtime s[22:23]', 's_waitcnt lgkmcnt(0)', 's_sub_u32 s21, s22, s10', 's_add_u32 s24, s24, 1', 's_cmp_gt_u32 s24, 100000', 's_cbranch_scc1 L_fe',
          's_cmp_lt_u32 s21, s20', 's_cbranch_scc1 L_fl', 'L_fe:']
    return dict(name='probe_kernel', body=render(finalize(P)), grid=1, block=64, lds=0, vgpr=8)
for nm,(a,b) in {'q0':(0,0),'q1':(0,1),'q2':(1,2),'q3':(2,3)}.items():
    ks = [dict(name='prep_kernel', body=stamp(0)+render(gen1.prep()), grid=256, block=256, lds=40960, vgpr=64),
          dict(name='p1_kernel', body=stamp(1)+render(gen1.p1()), grid=256, block=256, lds=163840, vgpr=256),
          dict(name='p2_kernel', body=stamp(2)+render(gen1.p2()), grid=256, block=256, lds=86016, vgpr=512, accum=256), final(a,b)]
    open(f'probe/{nm}.s','w').write(kg.multi(ks))
```

```python
import re

REG_RE = re.compile(r'(?<![\w.])([vas])(\d+)(?![\w\[])|(?<![\w.])([vas])\[(\d+):(\d+)\]|(?<![\w.])(vcc|exec|m0|scc)(?:_lo|_hi)?(?![\w])')


def regs_of(tok):
    out = []
    for m in REG_RE.finditer(tok):
        if m.group(1):
            out.append((m.group(1), int(m.group(2))))
        elif m.group(3):
            out += [(m.group(3), i) for i in range(int(m.group(4)), int(m.group(5)) + 1)]
        else:
            out.append((m.group(6), 0))
    return out


TRANS = ('v_exp_f32', 'v_log_f32', 'v_rcp_f32', 'v_rsq_f32', 'v_sqrt_f32', 'v_sin_f32', 'v_cos_f32')
RMW = ('v_fmac_f32', 'v_dot2c_f32_bf16', 'v_writelane_b32')
NODST_S = ('s_cmp', 's_waitcnt', 's_barrier', 's_branch', 's_cbranch', 's_nop', 's_endpgm', 's_sleep', 's_setprio', 's_bitcmp')


class I:
    __slots__ = ('text', 'op', 'kind', 'defs', 'uses', 'tag', 'passes', 'srcc', 'srcab', 'wide_store', 'need', 'data')

    def __init__(self, text, tag=None, need=None):
        self.text = text.strip()
        self.tag = tag
        self.need = need
        self.passes = 0
        self.srcc = []
        self.srcab = []
        self.wide_store = False
        self.data = []
        t = self.text
        if t.endswith(':') or t.startswith('.') or t.startswith(';'):
            self.op = t
            self.kind = 'label' if t.endswith(':') else 'dir'
            self.defs = []
            self.uses = []
            return
        sp = t.split(None, 1)
        op = sp[0]
        rest = sp[1] if len(sp) > 1 else ''
        self.op = op
        ops = []
        depth = 0
        cur = ''
        for ch in rest:
            if ch in '[(':
                depth += 1
            if ch in '])':
                depth -= 1
            if ch == ',' and depth == 0:
                ops.append(cur.strip())
                cur = ''
            else:
                cur += ch
        if cur.strip():
            ops.append(cur.strip())
        R = [regs_of(o) for o in ops]
        flat = lambda l: [r for x in l for r in x]
        base = re.sub(r'_(e32|e64|dpp|sdwa)$', '', op)
        if op.startswith('v_mfma'):
            self.kind = 'mfma'
            self.defs = R[0]
            self.srcab = R[1] + R[2]
            self.srcc = R[3]
            self.uses = self.srcab + self.srcc
            self.passes = 8 if '32x32' in op else (2 if '4x4' in op else 4)
        elif op.startswith('v_'):
            self.kind = 'valu'
            self.defs = list(R[0])
            self.uses = flat(R[1:])
            if base in RMW:
                self.uses += R[0]
            if 'permlane' in op and 'swap' in op:
                self.defs = R[0] + R[1]
                self.uses = R[0] + R[1]
            if op.endswith('_dpp'):
                self.uses += R[0]
            if base in ('v_add_co_u32', 'v_addc_co_u32', 'v_sub_co_u32'):
                self.defs = R[0] + R[1]
                self.uses = flat(R[2:])
            if base == 'v_nop':
                self.defs = []
                self.uses = []
        elif op.startswith('ds_'):
            self.kind = 'ds'
            if 'read' in op or 'permute' in op or 'swizzle' in op:
                self.defs = R[0]
                self.uses = flat(R[1:])
            else:
                self.defs = []
                self.uses = flat(R)
        elif op.startswith('buffer_') or op.startswith('global_'):
            self.kind = 'vmem'
            if op in ('buffer_inv', 'buffer_wbl2'):
                self.defs = []
                self.uses = []
            elif 'store' in op or 'atomic' in op:
                self.defs = []
                self.uses = flat(R)
                self.data = R[0] if op.startswith('buffer_') else R[1]
                self.wide_store = op.endswith('x4') or op.endswith('x3')
            elif re.search(r'\blds\b', rest):
                self.defs = []
                self.uses = flat(R) + [('m0', 0)]
            else:
                self.defs = R[0]
                self.uses = flat(R[1:])
        elif op.startswith('s_load') or op.startswith('s_memtime') or op.startswith('s_memrealtime') or op.startswith('s_buffer_load'):
            self.kind = 'smem'
            self.defs = R[0]
            self.uses = flat(R[1:])
        elif op.startswith('s_'):
            self.kind = 'salu'
            if any(op.startswith(x) for x in NODST_S):
                self.defs = []
                self.uses = flat(R)
            else:
                self.defs = R[0] if R else []
                self.uses = flat(R[1:])
                if 'saveexec' in op:
                    self.defs = self.defs + [('exec', 0)]
        else:
            raise ValueError('unknown instr ' + t)

    @property
    def base(self):
        return re.sub(r'_(e32|e64|dpp|sdwa)$', '', self.op)

    def states(self):
        if self.kind in ('label', 'dir'):
            return 0
        if self.op == 's_nop':
            return int(self.text.split()[1]) + 1
        return 1


def mk(x):
    return x if isinstance(x, I) else I(x)


class Wait:
    def __init__(self, *tags):
        self.tags = tags


class Need:
    def __init__(self, text):
        self.regs = set(regs_of(text))


class Mark:
    def __init__(self, i):
        self.i = i


class Reset:
    pass


def merge_wait(out, txt):
    if out and isinstance(out[-1], I) and out[-1].op == 's_waitcnt':
        cur = dict(re.findall(r'(\w+)\((\d+)\)', out[-1].text))
        for k, v in re.findall(r'(\w+)\((\d+)\)', txt):
            cur[k] = str(min(int(v), int(cur.get(k, 99))))
        out[-1] = I('s_waitcnt ' + ' '.join(f'{k}({cur[k]})' for k in ('vmcnt', 'lgkmcnt') if k in cur))
    else:
        out.append(I('s_waitcnt ' + txt))


def add_waits(seq, vm=None, lg=None):
    vm = [] if vm is None else vm
    lg = [] if lg is None else lg
    out = []

    def emit_wait(nv, nl):
        parts = []
        if nv is not None:
            parts.append(f'vmcnt({min(nv, 63)})')
            del vm[:max(0, len(vm) - nv)]
        if nl is not None:
            parts.append(f'lgkmcnt({min(nl, 15)})')
            del lg[:max(0, len(lg) - nl)]
        if parts:
            merge_wait(out, ' '.join(parts))

    def need_for(pred):
        nv = nl = None
        for i in range(len(vm) - 1, -1, -1):
            if pred(vm[i]):
                nv = len(vm) - 1 - i
                break
        for i in range(len(lg) - 1, -1, -1):
            if pred(lg[i]):
                nl = len(lg) - 1 - i
                if lg[i].kind == 'smem':
                    nl = 0
                break
        if nl is not None and nl > 0 and any(x.kind == 'smem' for x in lg):
            nl = sum(1 for x in lg[len(lg) - nl:] if x.kind != 'smem')
            nl = 0
        return nv, nl

    for x in seq:
        if isinstance(x, Reset):
            del vm[:]
            del lg[:]
            continue
        if isinstance(x, Wait):
            tags = set(x.tags)
            emit_wait(*need_for(lambda o: o.tag in tags))
            continue
        if isinstance(x, Need):
            emit_wait(*need_for(lambda o: any(r in x.regs for r in o.defs)))
            continue
        if isinstance(x, Mark):
            out.append(x)
            continue
        x = mk(x)
        if x.kind in ('label', 'dir'):
            out.append(x)
            continue
        touched = set(x.uses) | set(x.defs)
        tags = set(x.need or [])
        emit_wait(*need_for(lambda o: (o.tag is not None and o.tag in tags) or any(r in touched for r in o.defs)))
        if x.op == 's_waitcnt':
            m = re.search(r'vmcnt\((\d+)\)', x.text)
            if m:
                del vm[:max(0, len(vm) - int(m.group(1)))]
            m = re.search(r'lgkmcnt\((\d+)\)', x.text)
            if m:
                n = int(m.group(1))
                if n == 0 or not any(o.kind == 'smem' for o in lg):
                    del lg[:max(0, len(lg) - n)]
            merge_wait(out, x.text.split(None, 1)[1])
            continue
        out.append(x)
        if x.kind == 'vmem':
            vm.append(x)
        elif x.kind in ('ds', 'smem') and x.tag != 'async':
            lg.append(x)
    return out


def hazard_need(p, c):
    need = 0
    pd = set(p.defs)
    cu = set(c.uses)
    cd = set(c.defs)
    vg = lambda s: {r for r in s if r[0] in 'va'}
    sg = lambda s: {r for r in s if r[0] == 's' or r[0] == 'vcc'}
    if p.kind == 'valu':
        if p.base.startswith('v_dot') and c.base != p.base and vg(pd) & (cu | cd):
            need = max(need, 3)
        if c.kind == 'salu' and c.op.startswith('s_cbranch_vcc') and ('vcc', 0) in pd:
            need = max(need, 4)
        if c.kind == 'mfma' and vg(pd) & cu:
            need = max(need, 2)
        if c.kind == 'valu':
            if p.base in TRANS and vg(pd) & cu:
                need = max(need, 1)
            if (c.op.endswith('_dpp') or 'permlane' in c.op) and vg(pd) & cu:
                need = max(need, 2)
            if c.base in ('v_readlane_b32', 'v_readfirstlane_b32') and vg(pd) & cu:
                need = max(need, 1)
            if sg(pd) & cu:
                need = max(need, 4 if c.base in ('v_readlane_b32', 'v_writelane_b32') else 2)
            if c.base == 'v_cndmask_b32' and ('vcc', 0) in pd:
                need = max(need, 2)
        if c.kind == 'vmem' and sg(pd) & cu:
            need = max(need, 5)
        if c.kind in ('salu', 'smem') and sg(pd) & cu:
            need = max(need, 1)
    if p.kind == 'mfma':
        big = {2: 5, 4: 8, 8: 12}[p.passes]
        if c.kind == 'mfma':
            if pd & set(c.srcab):
                need = max(need, big)
            if pd & set(c.srcc):
                if list(p.defs) == list(c.srcc) and p.passes == c.passes:
                    need = max(need, 2 if p.passes == 2 else 0)
                else:
                    need = max(need, {2: 4, 4: 6, 8: 10}[p.passes])
            elif pd & cd:
                need = max(need, big)
        elif c.kind in ('valu', 'ds', 'vmem'):
            if pd & (cu | cd):
                need = max(need, big)
            if c.kind == 'valu' and set(p.srcc) & cd:
                need = max(need, {2: 1, 4: 3, 8: 7}[p.passes])
    if p.kind == 'salu' and ('m0', 0) in pd and c.kind == 'vmem' and ('m0', 0) in cu:
        need = max(need, 1)
    if p.kind == 'vmem' and p.wide_store and set(p.data) & cd:
        need = max(need, 2 if c.kind in ('valu', 'mfma') else 1)
    return need


def add_nops(seq, stats=None):
    out = []
    for x in seq:
        if x.kind in ('label', 'dir'):
            out.append(x)
            continue
        dist = 0
        pad = 0
        for p in reversed(out):
            if dist >= 12:
                break
            n = hazard_need(p, x) if p.kind not in ('label', 'dir') else 0
            if n > dist:
                pad = max(pad, n - dist)
            dist += p.states()
        if pad:
            if stats is not None:
                stats.append((pad, x.text))
            out.append(I(f's_nop {pad - 1}'))
        out.append(x)
    return out


def finalize(seq, stats=None):
    return add_nops(add_waits(seq), stats)


def render(seq):
    return '\n'.join((x.text if x.kind == 'label' else '    ' + x.text) for x in seq)


def weave(main, side, per_gap=3, start=0, is_slot=lambda x: isinstance(x, I) and x.kind == 'mfma'):
    main = [x if isinstance(x, (Wait, Reset)) else mk(x) for x in main]
    side = [x if isinstance(x, (Wait, Reset)) else mk(x) for x in side]
    out = []
    si = 0
    slot = 0
    for x in main:
        out.append(x)
        if is_slot(x):
            if slot >= start:
                cost = 0
                while si < len(side):
                    y = side[si]
                    c = 0 if isinstance(y, (Wait, Reset)) else (2 if y.base in TRANS else 1)
                    if cost + c > per_gap and cost > 0:
                        break
                    out.append(y)
                    cost += c
                    si += 1
            slot += 1
    out += side[si:]
    return out


class Gaps:
    def __init__(self, budget):
        self.budget = budget
        self.g = []

    def add(self, mfma):
        self.g.append(dict(m=mk(mfma), pre=[], mid=[], post=[], used=0, dma=False))
        return len(self.g) - 1

    @staticmethod
    def cost(items):
        c = 0
        for y in items:
            if isinstance(y, (Wait, Reset, Need, Mark)):
                continue
            y = mk(y)
            if y.kind in ('label', 'dir'):
                continue
            c += 2 if (y.base in TRANS or 'permlane' in y.op) else 1
        return c

    def fixed(self, i, items, where='mid'):
        self.g[i][where] += items
        self.g[i]['used'] += self.cost(items)

    def dma(self, i, grp):
        g = self.g[i]
        assert not g['dma']
        g['dma'] = True
        if i > 0:
            self.g[i-1]['post'].append(grp[0])
            self.g[i-1]['used'] += 1
        else:
            g['mid'] = [grp[0]] + g['mid']
            g['used'] += 1
        g['post'] = list(grp[1:]) + g['post']
        g['used'] += len(grp) - 1

    def place(self, items, start, budget=None, end=None, step=1):
        budget = budget or self.budget
        i = start
        items = list(items)
        end = len(self.g) if end is None else end
        while items and i < end:
            it = items[0]
            grp = list(it) if isinstance(it, tuple) else [it]
            c = self.cost(grp)
            g = self.g[i]
            if g['used'] + c <= budget or (c > budget and g['used'] == 0) or c == 0:
                g['mid'] += grp
                g['used'] += c
                items.pop(0)
                if step > 1 and c > 0:
                    i += step
            else:
                i += 1
        return i, items

    def emit(self):
        out = []
        for g in self.g:
            out.append(g['m'])
            out += g['pre'] + g['mid'] + g['post']
        return out


def flat(items):
    out = []
    for it in items:
        if isinstance(it, tuple):
            out += list(it)
        else:
            out.append(it)
    return out


def sprinkle(main, side, every, start=0):
    out = []
    acc = -start
    side = list(side)
    for x in main:
        out.append(x)
        if isinstance(x, tuple):
            acc += Gaps.cost(list(x))
        else:
            acc += Gaps.cost([x])
        if acc >= every and side:
            out.append(side.pop(0))
            acc -= every
    return out, side


PSEUDO = (Wait, Reset, Need, Mark)


def is_scalar(x):
    return not isinstance(x, PSEUDO) and mk(x).kind in ('salu', 'smem')


class Gaps2:
    def __init__(self, budget):
        self.budget = budget
        self.g = []

    def add(self, mfma):
        self.g.append(dict(m=mk(mfma), need=[], first=[], pre=[], mid=[], post=[], used=0, dma=False, fs=False))
        return len(self.g) - 1

    @staticmethod
    def cost(items):
        c = 0
        for y in items:
            if isinstance(y, PSEUDO):
                continue
            y = mk(y)
            if y.kind in ('label', 'dir'):
                continue
            c += 2 if (y.base in TRANS or 'permlane' in y.op) else 1
        return c

    def need(self, i, pseudo):
        self.g[i]['need'].append(pseudo)
        self.g[i]['fs'] = True

    def fixed(self, i, items, where='mid'):
        self.g[i][where] += items
        self.g[i]['used'] += self.cost(items)

    def can_dma(self, i):
        g = self.g[i]
        if g['dma'] or g['used'] + 1 > self.budget:
            return False
        if i > 0 and not self.g[i-1]['fs'] and not self.g[i-1]['dma']:
            return True
        if not g['fs'] and g['used'] >= 1:
            return True
        return i > 0 and self.g[i-1]['used'] + 1 <= self.budget

    def dma(self, i, grp):
        g = self.g[i]
        g['dma'] = True
        p = self.g[i-1] if i > 0 else None
        if p and not p['fs'] and not p['dma']:
            p['first'].append(grp[0]); p['fs'] = True
        elif not g['fs'] and (g['used'] >= 1 or not p):
            g['first'].append(grp[0]); g['fs'] = True
        else:
            p['post'].append(grp[0]); p['used'] += 1
        g['post'] = [grp[1]] + g['post']
        g['used'] += 1
        for x in grp[2:]:
            n = self.g[i+1] if i + 1 < len(self.g) else None
            if n and not n['fs']:
                n['first'].append(x); n['fs'] = True
            else:
                g['post'].append(x); g['used'] += 1

    def place(self, items, start, budget=None, end=None, step=1):
        budget = budget or self.budget
        i = start
        items = list(items)
        end = len(self.g) if end is None else end
        mine = -1
        while items and i < end:
            it = items[0]
            grp = list(it) if isinstance(it, tuple) else [it]
            g = self.g[i]
            if len(grp) == 1 and i > start and mine != i and not g['fs'] and (is_scalar(grp[0]) or isinstance(grp[0], (Wait, Need))):
                g['first'].append(grp[0]); g['fs'] = True
                items.pop(0)
                continue
            c = self.cost(grp)
            lead = 1 if (len(grp) > 1 and is_scalar(grp[0]) and not g['fs'] and not g['pre'] and not g['mid']) else 0
            if g['used'] + c - lead <= budget or (c - lead > budget and g['used'] == 0) or c == 0:
                g['mid'] += grp
                g['used'] += c - lead
                if lead: g['fs'] = True
                mine = i
                items.pop(0)
                if step > 1 and c > 0:
                    i += step
            else:
                i += 1
        return i, items

    def emit(self):
        out = []
        for g in self.g:
            out.append(g['m'])
            out += g['need'] + g['first'] + g['pre'] + g['mid'] + g['post']
        return out
```

```python
import sys, struct, math
from asmlib import *
import kg

def fbits(x): return '0x%08x' % struct.unpack('<I', struct.pack('<f', x))[0]

K_X, K_LRE, K_LIM, K_BRE, K_BIM, K_CRE, K_CIM, K_LDT, K_DSK, K_W1, K_B1, K_W2, K_B2, K_OUT, K_DBG, K_WS = \
    0, 8, 16, 24, 32, 40, 48, 56, 64, 80, 88, 96, 104, 112, 120, 128
ACT = 0
W2F = 0xC00000
STAT = 0x1000000
CS = 0x1010000
EST = 0x1040000; EST_STRIDE = 768 * 16
EPO = 0x1078000
PF = 0x1080000
XF = 0x10C0000
AF = 0x1084000
STAMP_OFF = 0x10A0000
XCH = 0x1100000
WS_USED = 0x1600000
OOB = 0x40000000
LOG2E = 1.4426950408889634
SPIN_MAX = 20000

CFG = dict(stamps=False)

X, WS, OUT, DSK, B2 = 4, 8, 12, 16, 20
W1, W2, B1 = 24, 28, 32
BRE, BIM, CRE, CIM, LRE, LIM, LDT = 24, 28, 32, 36, 40, 44, 48
TSRD = 72
def q(s): return f's[{s}:{s+3}]'
sW, sRB, sCG, sTAG, sC1, sC2, sC3, sWL, sWK, sWT, sWF, sWB, sAO, sFO = range(52, 66)
t0, t1, t2, t3, t4, t5 = range(66, 72)
sU0, sU1 = 76, 77
NSTAMP = 12
STSETS = {
 'A': ['entry','bar','b4','loop','t1','t2','t3','t4','a0','pass2','p2end','end'],
 'B': ['entry','pro','d0','tag','stats','bar','b0','b1','b2','b3','b4','end'],
 'F': ['entry','bar','b0','b1','b2','b3','b4','b5','b6','b7','b8','loop'],
 'G': ['entry','loop','t1','pub','pl0','pl1','t2','t3','z','hb0','hb1','t4'],
 'C': ['entry','b4','b5','b6','pf0','pf1','b7','b8','loop','e0','e1','t1'],
 'D': ['entry','t1','t4','flg','ini','a0','s1','s2','s4','s6','s8','pass2'],
 'E': ['entry','pass2','q2','q4','q5','q6','q8','p2end','rbar','xok','fin','end'],
}
def ST(name):
    if not CFG['stamps']: return []
    L = STSETS[CFG['stamps']]
    if name not in L: return []
    k = L.index(name)
    return [f's_memrealtime s[{78+2*k}:{79+2*k}]']
def ST_dump():
    if not CFG['stamps']: return []
    L = ['s_waitcnt vmcnt(0)'] + ST('end') + ['s_waitcnt lgkmcnt(0)', f's_lshl_b32 s{t0}, s2, 2', f's_add_u32 s{t0}, s{t0}, s{sW}', f's_lshl_b32 s{t0}, s{t0}, 7',
         f's_add_u32 s{t0}, s{t0}, {STAMP_OFF}', 'v_mov_b32 v1, 0', 's_mov_b64 exec, 1']
    for k in range(NSTAMP):
        L += [f'v_mov_b32 v2, s{78+2*k}', f'buffer_store_dword v2, v1, {q(WS)}, s{t0} offen offset:{4*k}']
    return L

def srd(s, koff, size):
    return [f's_load_dwordx2 s[{s}:{s+1}], s[0:1], {koff}'], [f's_mov_b32 s{s+2}, {size}', f's_mov_b32 s{s+3}, 0x20000']
def srds(lst):
    a, b = [], []
    for s, k, z in lst:
        x, y = srd(s, k, z); a += x; b += y
    return a + b
def pr(r): return f'v[{r}:{r+1}]'
def q4(r, f='v'): return f'{f}[{r}:{r+3}]'

NOPSTATS = []
def fin(P): return finalize(flat(P), NOPSTATS)

SPINS = []
def check(name, loads, accum, cond):
    br_bad, br_ok = ('s_cbranch_vccnz', 's_cbranch_vccz') if cond[-1].startswith('v_cmp') else ('s_cbranch_scc0', 's_cbranch_scc1')
    blk = [f'L_spin_{name}:', f's_mov_b32 s{t5}, 0', f'L_spinl_{name}:', 's_sleep 1'] + [mk(x).text for x in flat(loads)] + ['s_waitcnt vmcnt(0)'] + flat(accum) + \
          [f's_add_u32 s{t5}, s{t5}, 1', f's_cmp_gt_u32 s{t5}, {SPIN_MAX}', f's_cbranch_scc1 L_ret_{name}'] + cond + [f'{br_bad} L_spinl_{name}', f's_branch L_ret_{name}']
    SPINS.append(blk)
    return list(accum) + [tuple(cond + [f'{br_bad} L_spin_{name}', f'L_ret_{name}:'])]

def chain(regs):
    L = []; cur = regs[0]
    for r in regs[1:]:
        L.append((f's_cmp_eq_u32 s{cur}, s{sTAG}', f's_cselect_b32 s{regs[0]}, s{r}, s{cur}')); cur = regs[0]
    return L, f's_cmp_eq_u32 s{cur}, s{sTAG}'
def check_s(name, load, regs, pre=[], sleep=0):
    ch, last = chain(regs)
    blk = [f'L_spin_{name}:', f's_mov_b32 s{t5}, 0', f'L_spinl_{name}:'] + ([f's_sleep {sleep}'] if sleep else []) + [mk(load).text, 's_waitcnt lgkmcnt(0)',
           f's_add_u32 s{t5}, s{t5}, 1', f's_cmp_gt_u32 s{t5}, {SPIN_MAX*2}', f's_cbranch_scc1 L_ret_{name}'] + flat(pre) + flat(ch) + [last, f's_cbranch_scc0 L_spinl_{name}', f's_branch L_ret_{name}']
    SPINS.append(blk)
    return list(pre) + ch + [(last, f's_cbranch_scc0 L_spin_{name}', f'L_ret_{name}:')]

def tagacc(acc, regs, exp=None):
    L = []
    for i, r in enumerate(regs):
        e = f's{sTAG}' if exp is None else f'v{exp[i]}'
        if i == 0: L.append(f'v_xor_b32 v{acc}, {e}, v{r}')
        else: L.append(f'v_bitop3_b32 v{acc}, v{acc}, v{r}, {e} bitop3:0xf6')
    return L

def dpp_row_sum(v):
    return [f'v_add_f32_dpp v{v}, v{v}, v{v} row_ror:{n} row_mask:0xf bank_mask:0xf' for n in (8, 4, 2, 1)]

def entry():
    a, b = [], []
    for s_, k, z in [(WS, K_WS, WS_USED), (X, K_X, 2621440), (OUT, K_OUT, 5242880), (DSK, K_DSK, 1280), (B2, K_B2, 1280)]:
        x, y = srd(s_, k, z); a += x; b += y
    P = ['L_base:'] + ST('entry') + [f's_getpc_b64 s[{t0}:{t1}]', 'L_pc:'] + a[:2] + [
        's_cmp_ge_u32 s2, 256', 's_cbranch_scc1 L_end',
        f's_lshr_b32 s{t3}, s2, 3', 'v_lshrrev_b32 v1, 6, v0', 'v_and_b32 v0, 63, v0', f's_lshl_b32 s{t4}, s{t3}, 2',
        f'v_add_u32 v11, s{t4}, v1', 'v_and_b32 v12, 3, v0', 'v_lshl_add_u32 v11, v11, 2, v12', 'v_lshlrev_b32 v11, 7, v11', 'v_min_u32 v11, (L_end-L_pc), v11',
        f'global_load_dword v253, v11, s[{t0}:{t1}]',
        f'v_readfirstlane_b32 s{sW}, v1',
        f's_and_b32 s{t4}, s2, 1', f's_lshl_b32 s{t4}, s{t4}, 3', f's_and_b32 s{t5}, s2, 4', f's_add_u32 s{t4}, s{t4}, s{t5}', f's_lshr_b32 s{t5}, s{t3}, 3', f's_add_u32 s{sCG}, s{t4}, s{t5}',
        f's_cmp_ge_u32 s{sCG}, 9', 's_cbranch_scc1 L_pro_s5']
    return P, a[2:], b

def ids2():
    return [f's_and_b32 s{t4}, s2, 2', f's_lshl_b32 s{t4}, s{t4}, 2', f's_and_b32 s{t5}, s{t3}, 7', f's_add_u32 s{sRB}, s{t4}, s{t5}',
            f's_lshl_b32 s{sWL}, s{sW}, 10', f's_and_b32 s{sWT}, s{sW}, 1', f's_lshr_b32 s{sWF}, s{sW}, 1']

VE, VTK, VST = 255, 254, 240
def round1_addr():
    return [
            f's_lshl_b32 s{t4}, s{sRB}, 4', f's_add_u32 s{t4}, s{t4}, s{sCG}', f's_lshl_b32 s{t4}, s{t4}, 2', f's_add_u32 s{t4}, s{t4}, s{sW}', f's_lshl_b32 s{t4}, s{t4}, 1',
            f'v_lshrrev_b32 v{VTK}, 5, v0', f'v_add_u32 v{VTK}, s{t4}, v{VTK}',
            f'v_mul_u32_u24 v12, 1280, v{VTK}', 'v_and_b32 v13, 31, v0', 'v_lshl_add_u32 v12, v13, 3, v12', f'v_mov_b32 v{VE}, {EPO}']
def round1_loads():
    return [f'buffer_load_dword v{VE}, v{VE}, {q(WS)}, 0 offen sc1'] + \
           [f'buffer_load_dwordx2 {pr(VST+2*i)}, v12, {q(X)}, 0 offen offset:{256*i}' for i in range(5)]
def get_tag():
    return [f'v_readfirstlane_b32 s{sTAG}, v{VE}', f's_mul_i32 s{sTAG}, s{sTAG}, 0x9e3779b1', f's_add_u32 s{sTAG}, s{sTAG}, 0x7f4a7c15']
def token_stats():
    a, b, c, d = 250, 251, 252, 253
    L = [f'v_mov_b32 v{a}, 0', f'v_mov_b32 v{b}, 0']
    for i in range(10):
        L += [f'v_dot2c_f32_bf16 v{a}, 0x3f803f80, v{VST+i}', f'v_dot2c_f32_bf16 v{b}, v{VST+i}, v{VST+i}']
    for x, y in zip(dpp_row_sum(a), dpp_row_sum(b)): L += [x, y]
    L += [f'v_mov_b32 v{c}, v{a}', f'v_mov_b32 v{d}, v{b}', f'v_permlane16_swap_b32 v{a}, v{c}', f'v_permlane16_swap_b32 v{b}, v{d}',
          f'v_add_f32 v{a}, v{a}, v{c}', f'v_add_f32 v{b}, v{b}, v{d}',
          f'v_mul_f32 v{a}, {fbits(1/640)}, v{a}', f'v_mul_f32 v{b}, {fbits(1/640)}, v{b}',
          f'v_fma_f32 v{b}, -v{a}, v{a}, v{b}', f'v_max_f32 v{b}, 0, v{b}',
          f'v_cvt_pk_bf16_f32 v{b}, v{b}, v{b}', f'v_and_b32 v{b}, 0xffff0000, v{b}',
          f'v_add_f32 v{b}, {fbits(1e-5)}, v{b}', f'v_cvt_pk_bf16_f32 v{b}, v{b}, v{b}', f'v_and_b32 v{b}, 0xffff0000, v{b}',
          f'v_sqrt_f32 v{b}, v{b}', f'v_mov_b32 v{d}, s{sTAG}', f'v_lshlrev_b32 v{VTK}, 3, v{VTK}',
          f'v_cvt_pk_bf16_f32 v{c}, -v{a}, v{b}', f's_mov_b32 s{t4}, {STAT}',
          ('s_mov_b32 exec_lo, 1', 's_mov_b32 exec_hi, 1', f'buffer_store_dwordx2 {pr(c)}, v{VTK}, {q(WS)}, s{t4} offen sc1', 's_mov_b64 exec, -1')]
    return L

def xswz(dst, tmp):
    return [f's_lshl_b32 s{t4}, s{sWT}, 2', f'v_lshrrev_b32 v{tmp}, 4, v0', f'v_add_u32 v{tmp}, s{t4}, v{tmp}',
            f'v_and_b32 v{dst}, 7, v0', f'v_xor_b32 v{dst}, v{dst}, v{tmp}', f'v_lshlrev_b32 v{dst}, 4, v{dst}']

def act_offsets(dst, fl, n, b, role, r2, tmp):
    mul, base = (14, 0) if role == 'f' else (10, 56)
    return [f's_add_u32 s{dst}, s{n}, {(0,18,36)[b] if role == "f" else (0,14,27)[b]}', f's_and_b32 s{tmp}, s{dst}, 3', f's_lshr_b32 s{dst}, s{dst}, 2',
            f's_lshl_b32 s{fl}, s{r2}, 3', f's_add_u32 s{fl}, s{fl}, s{tmp}', f's_lshl_b32 s{fl}, s{fl}, 4', f's_add_u32 s{fl}, s{fl}, s{dst}', f's_lshl_b32 s{fl}, s{fl}, 2',
            f's_add_u32 s{fl}, s{fl}, {AF + (0 if role == "f" else 256)}',
            f's_mul_i32 s{tmp}, s{tmp}, {mul}', f's_add_u32 s{dst}, s{dst}, s{tmp}', f's_mul_i32 s{tmp}, s{r2}, 96', f's_add_u32 s{dst}, s{dst}, s{tmp}',
            f's_lshl_b32 s{dst}, s{dst}, 12'] + ([f's_add_u32 s{dst}, s{dst}, {base*4096}'] if base else [])

def slot_of(dst, n, b, role, tmp):
    mul, base = (14, 0) if role == 'f' else (10, 56)
    L = []
    if isinstance(b, int):
        L.append(f's_add_u32 s{dst}, s{n}, {(0,18,36)[b] if role == "f" else (0,14,27)[b]}')
    elif role == 'f':
        L += [f's_mul_i32 s{dst}, {b}, 18', f's_add_u32 s{dst}, s{dst}, s{n}']
    else:
        L += [f's_mul_i32 s{dst}, {b}, 27', f's_add_u32 s{dst}, s{dst}, 1', f's_lshr_b32 s{dst}, s{dst}, 1', f's_add_u32 s{dst}, s{dst}, s{n}']
    L += [f's_and_b32 s{tmp}, s{dst}, 3', f's_mul_i32 s{tmp}, s{tmp}, {mul}', f's_lshr_b32 s{dst}, s{dst}, 2', f's_add_u32 s{dst}, s{dst}, s{tmp}']
    if base: L.append(f's_add_u32 s{dst}, s{dst}, {base}')
    return L

SLOT0 = 40960; SLOT = 40960; WOFF = 16384
ACC = 16; FR = 112

def dma_chunk(role, c):
    slot = SLOT0 + SLOT * (c % 3)
    soff = ['0', f's{sC1}', f's{sC2}', f's{sC3}']
    xs = [[f's_add_u32 m0, s{sWL}, {slot + 4096*n - 128*c}',
           I(f'buffer_load_dwordx4 v1, {q(X)}, {soff[n]} offen offset:{128*c} lds', tag=f'c{c}')] for n in range(4)]
    ws = []
    if role == 's5':
        so = ['0', f's{sU0}', f's{sC2}']
        for n in range(6):
            ws.append([f's_add_u32 m0, s{sWL}, {slot + WOFF + 12288*(n%2) + 4096*(n//2) - 128*c}',
                       I(f'buffer_load_dwordx4 v2, {q(BIM if n % 2 else BRE)}, {so[n//2]} offen offset:{128*c} lds', tag=f'c{c}')])
    else:
        for hi in range(2):
            for cb in range(3):
                g = [f's_add_u32 m0, s{sWL}, {slot + WOFF + 8192*cb + 4096*hi - 128*cb}',
                     I(f'buffer_load_dwordx4 v2, {q(W1)}, s{sWK} offen offset:{128*cb} lds', tag=f'c{c}')]
                if cb == 2: g.append(f's_add_u32 s{sWK}, s{sWK}, {32*3456}')
                ws.append(g)
    return [xs[0], ws[0], ws[1], xs[1], ws[2], xs[2], ws[3], ws[4], xs[3], ws[5]]

def bmp(v, c):
    return f'v_add_u32 v{v}, 40960, v{v}' if c % 3 != 2 else f'v_subrev_u32 v{v}, 81920, v{v}'

def ffn_reads(sig):
    c, s = divmod(sig, 4)
    f = FR + 20 * (sig & 1)
    x = lambda tb: f'ds_read_b128 {q4(f+4*tb)}, v{3+s} offset:{4096*tb}'
    w = lambda b, u: f'ds_read_b64_tr_b16 {pr(f+8+4*b+2*u)}, v{7+b} offset:{(16*s+4*u)*128}'
    R = [x(0), w(0, 0), w(0, 1), x(1), w(1, 0), w(1, 1), w(2, 0), w(2, 1)]
    if c < 9:
        R.append(bmp(3 + s, c))
        if s == 3: R += [bmp(7, c), bmp(8, c), bmp(9, c)]
    return R
def ffn_mfmas(f, first):
    M = []
    for t in range(6):
        d = ACC + 16 * t
        M.append(f'v_mfma_f32_32x32x16_bf16 v[{d}:{d+15}], {q4(f+8+4*(t//2))}, {q4(f+4*(t%2))}, ' + ('0' if first else f'v[{d}:{d+15}]'))
    return M
def ffn_loop(extra_wait):
    G = Gaps2(6); bars = []
    for sig in range(40):
        c, s = divmod(sig, 4)
        M = ffn_mfmas(FR + 20 * (sig & 1), sig == 0)
        R = ffn_reads(sig + 1) if sig < 39 else []
        bar = (s == 3 and c < 9)
        for t in range(6):
            i = G.add(M[t])
            if t == 1:
                if bar:
                    G.need(i, Wait(f'c{c+1}', *extra_wait.get(c, []))); G.need(i, 's_waitcnt lgkmcnt(0)')
                    G.fixed(i, ['s_barrier'] + ST(f'b{c}'), 'pre'); bars.append(i)
                else: G.need(i, Need(f'v[{FR + 20*(sig&1)}:{FR + 20*(sig&1) + 19}]'))
            if t == 5 and sig < 39: G.need(i, Need(q4(FR + 20*((sig+1)&1) + 4)))
            if t >= (1 if bar else 0):
                n = 2 if t < 5 else len(R)
                if s == 2 and t >= 3 and t < 5: n = 3
                G.fixed(i, R[:n]); R = R[n:]
    return G, bars

def s5_x(sig, tt): return f'ds_read_b128 {q4(FR + 16*(sig&1) + 4*tt)}, v{3+(sig&1)} offset:{2048*tt}'
def s5_b(sig, n): return f'ds_read_b128 {q4(FR + 32 + 4*n)}, v{5+(sig&1)} offset:{12288*(n&1) + 2048*(n>>1)}'
def s5_acc(n, tt): return ACC + 16 * n + 4 * tt
def s5_loop(extra_wait):
    G = Gaps2(2); bars = []
    for sig in range(20):
        c, s = divmod(sig, 2)
        nx = sig + 1
        for n in range(6):
            for tt in range(4):
                d = s5_acc(n, tt)
                i = G.add(f'v_mfma_f32_16x16x32_bf16 {q4(d)}, {q4(FR+16*(sig&1)+4*tt)}, {q4(FR+32+4*n)}, ' + ('0' if sig == 0 else q4(d)))
                bar = s == 1 and c < 9
                if n == 1 and tt == 3 and not bar: G.need(i, Need(q4(FR + 32 + 20)))
                if nx > 19: continue
                if bar and n == 0 and tt == 3:
                    G.need(i, Wait(f'c{c+1}', *extra_wait.get(c, []))); G.need(i, 's_waitcnt lgkmcnt(0)')
                    G.fixed(i, ['s_barrier'] + ST(f'b{c}'), 'pre'); bars.append(i)
                if n == 5 and tt == 3: G.need(i, Need(q4(FR + 16*(nx&1) + 12)))
                if tt == 3: G.fixed(i, [s5_b(nx, n)])
                if n in (1, 2) and tt in (0, 1): G.fixed(i, [s5_x(nx, 2*(n-1) + tt)])
                if nx // 2 < 9:
                    if n == 3 and tt == 1: G.fixed(i, [bmp(3 + (nx & 1), nx // 2)])
                    if n == 5 and tt == 3: G.fixed(i, [bmp(5 + (nx & 1), nx // 2)])
    return G, bars

def sched_dma(G, bars, role, seq, u, rate):
    pos = 0.0
    last = {}
    prev = -1
    for it in seq:
        if it[0] == 'pause':
            pos += it[1] * u; continue
        grp, mg = it
        i = max(int(pos), mg)
        i = max(i, prev + 1)
        while not G.can_dma(i): i += 1
        G.dma(i, grp); prev = i
        last[grp[1].tag] = i
        pos = max(pos, mg) + u / rate
    print(role, 'dma margins (chunks):', [round((bars[c-1] - last[f'c{c}']) / u, 2) for c in range(2, 10)], file=sys.stderr)
    return last

def w2f_loads(n, dummy):
    L = []
    for k in range(n):
        i, j = divmod(k, 5)
        g = []
        if dummy and k == 65: g += [f's_cmp_ge_u32 s{sW}, 2', f's_cselect_b32 s{sWB}, {OOB}, s{sWB}']
        dst = q4(4 * k, 'a') if k < 64 else q4(224 + 4 * (k - 64))
        g.append(f'buffer_load_dwordx4 {dst}, v{14 if j < 4 else 15}, {q(WS)}, s{sWB} offen' + (f' offset:{1024*j}' if j < 4 else '') + ' sc1')
        if j == 4: g.append(f's_add_u32 s{sWB}, s{sWB}, 5120')
        L.append(tuple(g))
    return L
def w2f_setup():
    return [('s_bitcmp1_b32 s2, 0', f's_cselect_b32 s{t4}, 10, 14', f's_cselect_b32 s{t5}, 56, 0'), f's_mul_i32 s{t4}, s{t4}, s{sW}', f's_add_u32 s{t4}, s{t4}, s{t5}',
            f's_lshr_b32 s{t5}, s2, 5', f's_mul_i32 s{t5}, s{t5}, 96', f's_add_u32 s{t4}, s{t4}, s{t5}', f's_mul_i32 s{t4}, s{t4}, 5120', f's_add_u32 s{sWB}, s{t4}, {W2F}',
            'v_lshlrev_b32 v14, 4, v0', 'v_add_u32 v15, 4096, v14']
def pf_publish(off):
    return [(f's_cmp_eq_u32 s{sW}, 0', f's_cselect_b32 s{off}, s{off}, {OOB}'), flag_store(off)]
def pf_check(name, which, fb, ob):
    n, base = (7, 0) if which == 'f' else (5, 1024)
    pre = [f's_lshr_b32 s{ob}, s2, 5', f's_mul_i32 s{ob}, s{ob}, 5', f's_lshr_b32 s{ob}, s{ob}, 2', f's_lshl_b32 s{ob}, s{ob}, 1', f's_add_u32 s{ob}, s{ob}, s{sW}',
           f's_lshl_b32 s{ob}, s{ob}, 5', f's_add_u32 s{ob}, s{ob}, {PF + base}']
    ld = I(f's_buffer_load_dwordx8 s[{fb}:{fb+7}], {q(WS)}, s{ob}', tag='async')
    return pre, ld, ST('pf0') + check_s(name, ld.text + ' glc', list(range(fb, fb + n)), sleep=8) + ST('pf1')
def flag_store(off):
    return ('s_mov_b64 exec, 1', f'buffer_store_dword v13, v14, {q(WS)}, s{off} offen sc1', 's_mov_b64 exec, -1')

sA, sAown, sFL, sFL2, sXO, sXI, sXFO, sXFI, sDUM, sOO, sOT, sC160, sSTO = 24, 25, 26, 27, 28, 29, 30, 31, 56, 57, 58, 64, 65
u0, u1, u2, u3 = 72, 73, 74, 75
def p2_setup_s():
    return [f's_and_b32 s{u0}, s2, 6', f's_lshl_b32 s{u0}, s{u0}, 1', f's_bfe_u32 s{u1}, s2, 0x20003', f's_add_u32 s{u0}, s{u0}, s{u1}', f's_lshl_b32 s{u0}, s{u0}, 1',
            f's_lshl_b32 s{sSTO}, s{u0}, 2', f's_add_u32 s{sSTO}, s{sSTO}, s{sW}', f's_lshl_b32 s{sSTO}, s{sSTO}, 7', f's_add_u32 s{sSTO}, s{sSTO}, {STAT}',
            f's_and_b32 s{u1}, s2, 1', f's_add_u32 s{u0}, s{u0}, s{u1}', f's_xor_b32 s{u1}, s{u0}, 1',
            ('s_bitcmp1_b32 s2, 0', f's_cselect_b32 s{u2}, 10, 14'), f's_mul_i32 s{u2}, s{u2}, s{sW}', ('s_bitcmp1_b32 s2, 0', f's_cselect_b32 s{u3}, 56, 0'), f's_add_u32 s{u2}, s{u2}, s{u3}',
            f's_mul_i32 s{sA}, s{u1}, 96', f's_add_u32 s{sA}, s{sA}, s{u2}', f's_lshl_b32 s{sA}, s{sA}, 12',
            f's_mul_i32 s{sAown}, s{u0}, 96', f's_add_u32 s{sAown}, s{sAown}, s{u2}', f's_lshl_b32 s{sAown}, s{sAown}, 12',
            f's_and_b32 s{u2}, s2, 1', f's_lshl_b32 s{u2}, s{u2}, 2', f's_add_u32 s{u2}, s{u2}, s{sW}', f's_lshl_b32 s{u2}, s{u2}, 6', f's_add_u32 s{u2}, s{u2}, {AF}', f's_lshl_b32 s{sFL}, s{u1}, 9', f's_add_u32 s{sFL}, s{sFL}, s{u2}', f's_lshl_b32 s{sFL2}, s{u0}, 9', f's_add_u32 s{sFL2}, s{sFL2}, s{u2}',
            f's_lshr_b32 s{u2}, s2, 5', f's_mul_i32 s{sC160}, s{u2}, 160', f's_lshl_b32 s{u2}, s{u2}, 2', f's_add_u32 s{u2}, s{u2}, s{sW}',
            f's_lshl_b32 s{u3}, s{u1}, 5', f's_add_u32 s{u3}, s{u3}, s{u2}', f's_mul_i32 s{sXO}, s{u3}, 5120', f's_add_u32 s{sXO}, s{sXO}, {XCH}', f's_lshl_b32 s{sXFO}, s{u3}, 7', f's_add_u32 s{sXFO}, s{sXFO}, {XF}',
            f's_lshl_b32 s{u3}, s{u0}, 5', f's_add_u32 s{u3}, s{u3}, s{u2}', f's_mul_i32 s{sXI}, s{u3}, 5120', f's_add_u32 s{sXI}, s{sXI}, {XCH}', f's_lshl_b32 s{sXFI}, s{u3}, 7', f's_add_u32 s{sXFI}, s{sXFI}, {XF}',
            f's_mul_i32 s{u2}, s{sW}, {16*1280}', f's_add_u32 s{u2}, s{u2}, s{sC160}',
            f's_mul_i32 s{sOO}, s{u0}, {64*1280}', f's_add_u32 s{sOO}, s{sOO}, s{u2}', f's_mul_i32 s{sOT}, s{u1}, {64*1280}', f's_add_u32 s{sOT}, s{sOT}, s{u2}']
def p2_setup_v():
    L = [f'v_add_u32 v1, s{sWL}, v14']
    for t in range(1, 4): L += [f'v_add_u32 v{1+t}, {1024*t}, v1', f'v_and_b32 v{1+t}, 0xfff, v{1+t}']
    return L

def ffn_prologue(la, lb):
    P = la + srds([(W1, K_W1, 640*3456), (W2, K_W2, 1728*1280), (B1, K_B1, 3456)]) + lb
    A = P.append
    P += ids2() + round1_addr()
    A('v_lshrrev_b32 v11, 3, v0'); A('v_lshrrev_b32 v8, 4, v0'); A('v_lshlrev_b32 v8, 1, v8'); A('v_and_b32 v9, 7, v0')
    A('v_xor_b32 v8, v8, v9'); A('v_lshlrev_b32 v8, 4, v8')
    A('v_mul_u32_u24 v9, 3456, v11'); A('v_add_u32 v9, v9, v8')
    A(f's_mul_i32 s36, s{sRB}, 86'); A('s_lshr_b32 s36, s36, 8')
    A('s_mul_i32 s37, s36, 3'); A(f's_sub_u32 s37, s{sRB}, s37'); A(f's_mul_i32 s38, s{sCG}, 3'); A('s_add_u32 s37, s37, s38')
    A(f's_mul_i32 s38, s36, {160*3456}'); A('s_lshl_b32 s39, s37, 7'); A('s_add_u32 s38, s38, s39')
    A(f's_mul_i32 s39, s{sW}, {8*3456}'); A('s_add_u32 s38, s38, s39')
    A(f's_cmp_lt_u32 s{sRB}, 12'); A(f's_cselect_b32 s38, s38, {OOB}')
    P += round1_loads()
    for i in range(5):
        A(f's_add_u32 m0, s{sWL}, {i*4096}')
        if i: A(f's_add_u32 s38, s38, {32*3456}')
        P.append(I(f'buffer_load_dwordx4 v9, {q(W1)}, s38 offen lds', tag='cs'))
    P += [f's_lshl_b32 s39, s{sCG}, 1', f's_add_u32 s39, s39, s{sWF}', 's_mul_i32 s39, s39, 192', 'v_lshlrev_b32 v13, 1, v13']
    P += [f'buffer_load_ushort v{236+b}, v13, {q(B1)}, s39 offen offset:{64*b}' for b in range(3)]
    P += ['s_lshr_b32 s49, s2, 5', 's_mul_i32 s49, s49, 160', 'v_lshrrev_b32 v12, 4, v0', 'v_lshlrev_b32 v12, 3, v12']
    P += [f'buffer_load_dwordx2 {pr(226+2*j)}, v12, {q(B2)}, s49 offen offset:{32*j}' for j in range(5)]
    P += ST('pro')
    A('s_branch L_ffn')
    return P

def ffn_main(vm):
    P = ['L_ffn:']; A = P.append
    A('v_mul_u32_u24 v10, 1280, v11'); A('v_add_u32 v10, v10, v8')
    P += [f's_mov_b32 s{sC1}, 40960', f's_mov_b32 s{sC2}, 81920', f's_mov_b32 s{sC3}, 122880']
    P += xswz(1, 12)
    A(f's_lshl_b32 s{t4}, s{sRB}, 4'); A(f's_add_u32 s{t4}, s{t4}, s{sW}'); A(f's_lshl_b32 s{t4}, s{t4}, 3')
    A(f'v_add_u32 v12, s{t4}, v11'); A('v_mul_u32_u24 v12, 1280, v12'); A('v_add_u32 v1, v1, v12')
    A(f's_lshl_b32 s{t4}, s{sW}, 3'); A(f'v_add_u32 v12, s{t4}, v11'); A('v_mul_u32_u24 v12, 3456, v12')
    A('v_bfe_u32 v13, v0, 4, 1'); A('v_lshlrev_b32 v13, 2, v13'); A('v_and_b32 v2, 7, v0'); A('v_xor_b32 v2, v2, v13'); A('v_lshl_add_u32 v2, v2, 4, v12')
    A(f's_mul_i32 s{sWK}, s{sCG}, 384')
    S = []
    S += ['v_bfe_u32 v12, v0, 1, 3', 'v_lshrrev_b32 v3, 5, v0', 'v_xor_b32 v12, v12, v3', 'v_and_b32 v3, 31, v0', 'v_lshlrev_b32 v3, 7, v3', 'v_lshl_add_u32 v3, v12, 4, v3',
          f's_lshl_b32 s{t4}, s{sWT}, 13', f's_add_u32 s{t4}, s{t4}, {SLOT0}', f'v_add_u32 v3, s{t4}, v3']
    S += [f'v_xor_b32 v{3+s}, {s*32}, v3' for s in range(1, 4)]
    S += ['v_lshrrev_b32 v11, 5, v0', 'v_bfe_u32 v12, v0, 2, 2', 'v_lshl_add_u32 v11, v11, 3, v12', 'v_lshlrev_b32 v11, 7, v11',
          'v_bfe_u32 v12, v0, 3, 1', 'v_lshl_add_u32 v11, v12, 6, v11', 'v_bfe_u32 v12, v0, 4, 1', 'v_lshl_add_u32 v11, v12, 5, v11',
          'v_and_b32 v12, 3, v0', 'v_lshl_add_u32 v11, v12, 3, v11']
    for b in range(3):
        S += [f's_mul_i32 s{t4}, s{sWF}, 3', f's_add_u32 s{t4}, s{t4}, {b}', f's_and_b32 s{t5}, s{t4}, 1', f's_lshl_b32 s{t5}, s{t5}, 6',
              f's_lshr_b32 s{t4}, s{t4}, 1', f's_lshl_b32 s{t4}, s{t4}, 13', f's_add_u32 s{t4}, s{t4}, {SLOT0 + WOFF}',
              f'v_xor_b32 v{7+b}, s{t5}, v11', f'v_add_u32 v{7+b}, s{t4}, v{7+b}']
    S += ['v_lshrrev_b32 v216, 5, v0', 'v_lshlrev_b32 v216, 4, v216', 'v_bfe_u32 v12, v0, 2, 3', 'v_add_u32 v216, v216, v12',
          'v_lshrrev_b32 v12, 1, v12', 'v_lshlrev_b32 v12, 5, v12', 'v_lshl_add_u32 v216, v216, 7, v12', 'v_and_b32 v12, 3, v0', 'v_lshl_add_u32 v216, v12, 3, v216',
          f's_lshl_b32 s{t4}, s{sW}, 5', f'v_xor_b32 v217, s{t4}, v216', f's_lshl_b32 s{t4}, s{sW}, 12', f'v_add_u32 v216, s{t4}, v216']
    S += [f'v_mov_b32 v{160+i}, 0x3f803f80' for i in range(4)]
    S += w2f_setup()
    S += [f's_lshl_b32 s40, s{sCG}, 4', f's_add_u32 s40, s40, s{sRB}', 's_mul_i32 s42, s40, 4682', 's_lshr_b32 s42, s42, 16', 's_mul_i32 s41, s42, 14', 's_sub_u32 s41, s40, s41',
          's_lshl_b32 s46, s41, 2', f's_add_u32 s46, s46, s{sW}', 's_mul_i32 s47, s46, 3641', 's_lshr_b32 s47, s47, 16', 's_mul_i32 s48, s47, 18', 's_sub_u32 s48, s46, s48',
          's_mul_i32 s48, s48, 3', 's_add_u32 s48, s48, s47',
          f's_mul_i32 s43, s48, {32*1280}', 's_lshl_b32 s44, s42, 7', 's_add_u32 s43, s43, s44',
          f's_mul_i32 s44, s{sW}, 14', 's_add_u32 s44, s44, s41', 's_mul_i32 s44, s44, 5120', 's_lshl_b32 s47, s42, 12', 's_add_u32 s44, s44, s47', f's_add_u32 s44, s44, {W2F}',
          ('s_cmp_lt_u32 s46, 54', 's_cselect_b32 s47, s40, 200'), ('s_cmp_lt_u32 s47, 140', f's_cselect_b32 s44, s44, {OOB}', f's_cselect_b32 s43, s43, {OOB}'), f's_lshl_b32 s45, s{sW}, 12',
          ('s_cmp_ge_u32 s41, 7', 's_addc_u32 s49, s41, 0'), 's_lshl_b32 s47, s42, 4', 's_add_u32 s49, s49, s47', 's_lshl_b32 s49, s49, 2', f's_add_u32 s49, s49, {PF}',
          ('s_cmp_lt_u32 s40, 140', f's_cselect_b32 s{sU1}, s49, {OOB}')]
    S += ['s_lshl_b32 s38, s37, 6', f's_lshl_b32 s39, s{sW}, 4', 's_add_u32 s38, s38, s39', 's_lshl_b32 s38, s38, 5', 's_lshl_b32 s39, s36, 3', 's_add_u32 s38, s38, s39',
          f's_add_u32 s38, s38, {CS}', (f's_cmp_lt_u32 s{sRB}, 12', f's_cselect_b32 s38, s38, {OOB}'), 'v_lshlrev_b32 v218, 5, v0']
    S += ['s_mov_b32 s50, -1', 's_mov_b32 s51, 0', 's_mov_b32 s46, 0x07060302', 's_mov_b32 s47, 0x05040302', 's_mov_b32 s48, 0x01000100']
    d0 = [tuple(g) for g in dma_chunk('ffn', 0)]
    X_, left = sprinkle(S, d0, 12); P += X_ + left
    P += ST('d0') + get_tag() + [f'v_mov_b32 v13, s{sTAG}'] + ST('tag')
    d1 = [tuple(g) for g in dma_chunk('ffn', 1)]
    rl = [(f's_add_u32 m0, s45, {20480 + i*1024}', I(f'buffer_load_dwordx4 v10, {q(W2)}, s43 offen lds', tag='rl'), f's_add_u32 s43, s43, {8*1280}') for i in range(4)]
    NPRE = CFG.get('npre', 10)
    T_ = token_stats() + [Wait('cs'), 's_barrier']
    for ks in range(5):
        for u in range(2): T_.append(f'ds_read_b64_tr_b16 {pr(168+4*ks+2*u)}, v217 offset:{ks*4096+u*1024}')
    for ks in range(5): T_.append(f'v_mfma_f32_16x16x32_bf16 v[164:167], v[160:163], {q4(168+4*ks)}, ' + ('0' if ks == 0 else 'v[164:167]'))
    T_ += ['v_mov_b32 v165, v13', ('s_mov_b64 exec, 0xffff', f'buffer_store_dwordx2 v[164:165], v218, {q(WS)}, s38 offen sc1', 's_mov_b64 exec, -1')]
    pre = (rl if CFG.get('rl_pos', 1) == 0 else []) + d1
    NPRE += 4 * (CFG.get('rl_pos', 1) == 0)
    X_, left = sprinkle(T_, pre[:NPRE], CFG.get('d1_every', 12)); P += X_ + ST('stats') + left
    P += [Wait('c0'), 's_barrier'] + ST('bar') + ffn_reads(0)
    c_rl_ack = CFG.get('c_ack', CFG.get('rl_pos', 1) + 2)
    G, bars = ffn_loop({c_rl_ack: ['rls']})
    rp = CFG.get('rl_pos', 1)
    seq = [(list(g), 0) for g in pre[NPRE:]] + [(list(g), 0) for g in (rl if rp == 1 else [])] + [(g, 0) for g in dma_chunk('ffn', 2)] + [(list(g), 0) for g in (rl if rp == 2 else [])]
    for c in range(3, 10): seq += [(g, bars[c-3]) for g in dma_chunk('ffn', c)]
    last = sched_dma(G, bars, 'ffn', seq, 24, CFG.get('rate', 12.0))
    S = []
    for jj in range(4):
        S += [f'v_xor_b32 v12, {jj*32}, v216'] + [I(f'ds_read_b64_tr_b16 {pr(152+4*jj+2*u)}, v12 offset:{20480+u*1024}', need=['rl']) for u in range(2)]
    for jj in range(4):
        S += [f's_lshl_b32 s{t4}, s42, 2', f's_add_u32 s{t4}, s{t4}, {jj}', f's_mul_i32 s{t4}, s{t4}, 52', f's_lshr_b32 s{t4}, s{t4}, 8', f's_mul_i32 s{t4}, s{t4}, {95*5120}',
              f's_add_u32 s{t4}, s{t4}, s44', I(f'buffer_store_dwordx4 {q4(152+4*jj)}, v14, {q(WS)}, s{t4} offen offset:{1024*jj} sc1', tag='rls')]
    nxt, left = G.place(S, bars[rp] + 1); assert not left and nxt < bars[c_rl_ack], (nxt, bars)
    g_pub, left = G.place(pf_publish(sU1), bars[c_rl_ack]); assert not left
    S = ['v_and_b32 v11, 31, v0', f's_lshl_b32 s36, s{sRB}, 1', f's_add_u32 s36, s36, s{sWT}',
         f's_lshl_b32 s37, s{sCG}, 1', f's_add_u32 s37, s37, s{sWF}',
         's_lshl_b32 s38, s36, 9', f's_add_u32 s38, s38, {STAT}', 's_mul_i32 s39, s37, 3072', f's_add_u32 s39, s39, {CS}', 's_mul_i32 s40, s37, 192',
         'v_lshlrev_b32 v219, 3, v11', 'v_lshrrev_b32 v220, 5, v0', 'v_lshlrev_b32 v220, 4, v220', 'v_lshl_add_u32 v220, v11, 5, v220', 'v_lshlrev_b32 v12, 1, v11']
    nxt, left = G.place(S, nxt); assert not left
    ld = [f'buffer_load_dwordx2 {pr(168+2*tb)}, v219, {q(WS)}, s38 offen offset:{256*tb} sc1' for tb in range(2)] + \
         [f'buffer_load_dwordx4 {q4(172+4*b)}, v220, {q(WS)}, s39 offen offset:{1024*b} sc1' for b in range(3)]
    ld = [I(x, tag='ext') for x in ld]
    g_ext = max(nxt, int(24 * CFG.get('p_ext', 3.5)))
    nxt, left = G.place(ld, g_ext, step=2); assert not left
    S = check('ext', ld, tagacc(12, [169, 171] + [173+2*k for k in range(6)]), ['v_cmp_ne_u32 vcc, 0, v12'])
    EX = 188
    for tb in range(2):
        f = EX + 4 * tb
        S += [f'v_cndmask_b32 v{f+1}, 0, v{168+2*tb}, s[50:51]', f'v_perm_b32 v{f}, v{f+1}, v{f+1}, s48', f'v_mov_b32 v{f+2}, 0', f'v_mov_b32 v{f+3}, 0']
    for b in range(3):
        r = 172 + 4 * b; f = EX + 8 + 4 * b; t = r + 1
        S += [f'v_add_f32 v{r}, v{r}, v{r+2}', f'v_mov_b32 v{t}, v{r}', f'v_mov_b32 v{f+2}, 0', f'v_mov_b32 v{f+3}, 0', f'v_permlane32_swap_b32 v{r}, v{t}', f'v_add_f32 v{r}, v{r}, v{t}',
              f'v_and_b32 v{t}, 0xffff0000, v{r}', f'v_sub_f32 v{t}, v{r}, v{t}', f'v_perm_b32 v{f}, v{t}, v{r}, s46',
              f'v_and_b32 v{r}, 0xffff0000, v{t}', f'v_sub_f32 v{t}, v{t}, v{r}', f'v_perm_b32 v{f+1}, v{236+b}, v{t}, s47']
    c1 = -2 * math.sqrt(2 / math.pi) * LOG2E; c3 = c1 * 0.044715
    for tb in range(2):
        S += [f'v_and_b32 v{212+tb}, 0xffff0000, v{168+2*tb}', f'v_rcp_f32 v169, v{212+tb}', 'v_bfe_u32 v11, v0, 4, 1', f'v_mul_f32 v{208+tb}, {fbits(c1)}, v169',
              f'v_mul_f32 v171, v169, v169', f'v_mul_f32 v171, v171, v169', f'v_mul_f32 v{210+tb}, {fbits(c3)}, v171']
    S += ['v_lshlrev_b32 v11, 10, v11', 'v_lshrrev_b32 v12, 5, v0', 'v_lshl_add_u32 v11, v12, 8, v11', 'v_and_b32 v12, 15, v0', 'v_lshl_add_u32 v11, v12, 4, v11']
    S += [f'v_mov_b32 v{152+k}, v{226+k}' for k in range(10)]
    for b in range(3):
        S += act_offsets(40 + b, 43 + b, 37, b, 'f', 36, 49)
    nxt, left_ext = G.place(S, nxt + 20)
    c_pf = CFG.get('c_pf', 7)
    ppre, pld, pchk = pf_check('pf_ffn', 'f', 28, u0)
    g2, left = G.place(ppre, bars[c_pf-2]); assert not left and g2 < bars[c_pf-1]
    G.fixed(bars[c_pf-1] + CFG.get('pf_off', 2), [pld]); G.need(bars[c_pf] - 8, 's_waitcnt lgkmcnt(0)')
    g2, left = G.place(pchk, bars[c_pf] - 8, budget=7); assert not left and g2 < bars[c_pf], 'pf check does not fit'
    WL = w2f_loads(70, True)
    g3, WL = G.place([('s_bitcmp1_b32 s2, 0', f's_mov_b32 s{sU0}, s{sWB}', f's_cselect_b32 s{sWB}, {OOB}, s{sWB}')] + WL, max(bars[c_pf], last['c9']) + 1, step=CFG.get('w_step', 2), budget=6)
    g3, left = G.place(p2_setup_s(), max(last['c9'], bars[c_pf]) + 1, budget=6); assert not left
    g3, left = G.place(p2_setup_v(), 234, budget=6); assert not left
    print('ffn: last dma gap', last['c9'], 'ext done', nxt, 'left', len(left_ext), 'pf chk', g2, 'w2f left', len(WL), file=sys.stderr)
    P += G.emit() + left_ext + ST('loop')
    P += ffn_mfmas(EX, False)
    return P, WL

def ffn_tail(role, WL, late):
    P = []
    T = 112; n = 0
    E = []; held = []
    for t in range(6):
        b, tb = divmod(t, 2)
        sel = f'op_sel:[0,{tb},{tb}] op_sel_hi:[1,{tb},{tb}]'
        for piece in range(2):
            o = 128 + 4 * (n % 4); n += 1
            a = lambda p: pr(ACC + 16*t + 8*piece + 2*p)
            tt = lambda p: pr(T + 2*p)
            if n - 1 == CFG.get('late_at', 10): E += late
            if n - 1 == CFG.get('f0_at', 8): E += [Wait('h0'), flag_store(43)]
            E += [f'v_pk_mul_f32 {tt(p)}, {a(p)}, {a(p)}' for p in range(4)]
            E += [f'v_pk_fma_f32 {tt(p)}, {tt(p)}, v[210:211], v[208:209] {sel}' for p in range(4)]
            E += [f'v_pk_mul_f32 {tt(p)}, {tt(p)}, {a(p)}' for p in range(4)]
            E += [f'v_exp_f32 v{T+p}, v{T+p}' for p in range(8)]
            E += [f'v_pk_fma_f32 {tt(p)}, {tt(p)}, v[212:213], v[212:213] {sel}' for p in range(4)]
            E += [f'v_rcp_f32 v{T+p}, v{T+p}' for p in range(8)]
            E += [f'v_pk_mul_f32 {tt(p)}, {tt(p)}, {a(p)}' for p in range(4)]
            E += [f'v_cvt_pk_bf16_f32 v{o+p}, v{T+2*p}, v{T+2*p+1}' for p in range(4)]
            st = I(f'buffer_store_dwordx4 {q4(o)}, v11, {q(WS)}, s{40+b} offen offset:{tb*2048+piece*512} sc1', tag=f'h{b}')
            if role == 'f' and b == 2 and CFG.get('hold', True): held.append(st)
            else: E.append(st)
        if tb == 1: E += ST(f'e{b}')
    if role == 'f':
        k2 = 2 * len(E) // 3
        E1, WL = sprinkle(E[:k2], WL, CFG.get('w_every', 45))
        E2, WL = sprinkle(E[k2:], WL, CFG.get('w_every2', 22))
        E = E1 + E2
    else:
        ppre, pld, pchk = pf_check('pf_fy', 'y', 32, u0)
        k1 = len(E) // 3
        WL = w2f_loads(50, False)
        E2, WL = sprinkle(E[k1:], WL, CFG.get('w_every', 45))
        E = ppre + [pld] + E[:k1] + ['s_waitcnt lgkmcnt(0)'] + pchk + ['s_barrier', f's_mov_b32 s{sWB}, s{sU0}'] + E2
    P += E + ST('t1')
    return P, WL, held, [[Wait('h1'), flag_store(44)], [Wait('h2'), flag_store(45)]]

def cpow(dst, rho, th, n, t):
    nn = n if isinstance(n, str) else fbits(n)
    return [f'v_mul_f32 v{t}, {nn}, v{rho}', f'v_mul_f32 v{t+1}, {nn}, v{th}', f'v_exp_f32 v{t}, v{t}', f'v_fract_f32 v{t+1}, v{t+1}',
            f'v_cos_f32 v{dst}, v{t+1}', f'v_sin_f32 v{dst+1}, v{t+1}', f'v_mul_f32 v{dst}, v{t}, v{dst}', f'v_mul_f32 v{dst+1}, v{t}, v{dst+1}']
def rho_theta(lr, li, ld, rho):
    return [f'v_lshlrev_b32 v{ld}, 16, v{ld}', f'v_mul_f32 v{ld}, {fbits(LOG2E)}, v{ld}', f'v_exp_f32 v{ld}, v{ld}', f'v_lshlrev_b32 v{lr}, 16, v{lr}', f'v_lshlrev_b32 v{li}, 16, v{li}',
            f'v_cvt_pk_bf16_f32 v{ld}, v{ld}, v{ld}', f'v_and_b32 v{ld}, 0xffff0000, v{ld}',
            f'v_mul_f32 v{rho}, v{ld}, v{lr}', f'v_mul_f32 v{rho+1}, v{ld}, v{li}',
            f'v_mul_f32 v{rho}, {fbits(LOG2E)}, v{rho}', f'v_mul_f32 v{rho+1}, {fbits(1/(2*math.pi))}, v{rho+1}']
BC_LO = 'op_sel:[0,0,0] op_sel_hi:[0,1,1]'
BC_HI = 'op_sel:[1,0,0] op_sel_hi:[1,1,1]'
NEG0 = 'neg_lo:[1,0,0] neg_hi:[1,0,0]'
SWP = 'op_sel:[1,1,0] op_sel_hi:[1,0,1] neg_lo:[1,0,0]'
def cma(dst, a, x, add):
    return [f'v_pk_fma_f32 {pr(add)}, {pr(a)}, {pr(x)}, {pr(add)} {BC_LO}', f'v_pk_fma_f32 {pr(dst)}, {pr(a)}, {pr(x)}, {pr(add)} {SWP}']

A1, A8, A16, ASG, A128, A512, A16S = 168, 174, 180, 186, 192, 198, 204
PRM = 16
def s5_prologue(la, lb):
    P = ['L_pro_s5:'] + la + srds([(BRE, K_BRE, 819200), (BIM, K_BIM, 819200), (LRE, K_LRE, 1280), (LIM, K_LIM, 1280), (LDT, K_LDT, 1280),
              (CRE, K_CRE, 819200), (CIM, K_CIM, 819200)]) + lb
    A = P.append
    P += ids2() + round1_addr()
    A(f's_sub_u32 s{sU1}, s{sCG}, 9')
    A(f's_mul_i32 s{t2}, s{sU1}, 96')
    A(f's_mul_i32 s{sWK}, s{sWF}, 48'); A(f's_add_u32 s{sWK}, s{sWK}, s{t2}')
    A(f's_lshl_b32 s{t4}, s{sU1}, 4'); A(f's_add_u32 s{t4}, s{t4}, s{sRB}'); A(f's_mul_i32 s{sAO}, s{t4}, 6554'); A(f's_lshr_b32 s{sAO}, s{sAO}, 16')
    A(f's_mul_i32 s{sFO}, s{sAO}, 10'); A(f's_sub_u32 s{sFO}, s{t4}, s{sFO}')
    A('v_and_b32 v7, 15, v0'); A('v_lshrrev_b32 v8, 4, v0'); A('v_lshlrev_b32 v9, 1, v7')
    A(f's_cmp_ge_u32 s{sRB}, 6'); A(f's_cselect_b32 s{t3}, 1, 0')
    A(f's_mul_i32 s{t4}, s{t3}, 6'); A(f's_sub_u32 s{t4}, s{sRB}, s{t4}'); A(f's_lshl_b32 s{t4}, s{t4}, 4'); A(f's_add_u32 s{t4}, s{t4}, s{t2}')
    A(f's_lshl_b32 s{t5}, s{sW}, 2'); A(f's_add_u32 s{t4}, s{t4}, s{t5}')
    A(f's_cmp_lt_u32 s{sRB}, 12'); A(f's_cselect_b32 s{t4}, s{t4}, 1000')
    A(f'v_add_u32 v10, s{t4}, v8'); A('v_mul_u32_u24 v11, 1280, v10'); A('v_lshl_add_u32 v11, v7, 4, v11')
    A(f's_mov_b32 s{TSRD+2}, 819200'); A(f's_mov_b32 s{TSRD+3}, 0x20000')
    A(f's_lshl_b32 s{t4}, s{sWK}, 1'); A(f's_lshl_b32 s{t5}, s{sAO}, 2'); A(f's_add_u32 s{t5}, s{t5}, s{sW}'); A(f's_lshl_b32 s{t5}, s{t5}, 5')
    for k, s in enumerate((LRE, LIM, LDT)):
        for b in range(3): A(f'buffer_load_ushort v{PRM+3*b+k}, v9, {q(s)}, s{t4} offen offset:{32*b}')
        A(f'buffer_load_ushort v{PRM+9+k}, v9, {q(s)}, s{t5} offen')
    A('v_lshlrev_b32 v13, 7, v7'); A(f'buffer_load_dword v28, v13, {q(DSK)}, 0 offen')
    P += round1_loads()
    A(f's_cmp_ge_u32 s{sRB}, 6'); A(f's_cselect_b32 s{TSRD}, s{BIM}, s{BRE}'); A(f's_cselect_b32 s{TSRD+1}, s{BIM+1}, s{BRE+1}')
    for i in range(5): A(f'buffer_load_dwordx4 {q4(32+4*i)}, v11, {q(TSRD)}, 0 offen offset:{256*i}')
    P += ST('pro')
    A('s_branch L_s5')
    return P

def s5_main(vm):
    P = ['L_s5:']; A = P.append
    P += [f's_mov_b32 s{sC1}, 5120', f's_mov_b32 s{sC2}, 81920', f's_mov_b32 s{sC3}, 87040', f's_mov_b32 s{sU0}, 40960']
    P += xswz(2, 12)
    A('v_lshrrev_b32 v12, 5, v0'); A('v_lshlrev_b32 v12, 4, v12'); A('v_bfe_u32 v13, v0, 3, 1'); A('v_lshl_add_u32 v12, v13, 3, v12')
    A('v_bfe_u32 v13, v0, 4, 1'); A('v_add_u32 v12, v12, v13')
    A(f's_lshl_b32 s{t4}, s{sRB}, 2'); A(f's_add_u32 s{t4}, s{t4}, s{sWT}'); A(f's_lshl_b32 s{t4}, s{t4}, 4'); A(f's_add_u32 s{t4}, s{t4}, s{sWF}'); A(f's_lshl_b32 s{t4}, s{t4}, 1')
    A(f'v_add_u32 v12, s{t4}, v12'); A('v_mul_u32_u24 v12, 1280, v12'); A('v_add_u32 v1, v2, v12')
    A(f's_lshl_b32 s{t4}, s{sW}, 3'); A('v_lshrrev_b32 v12, 3, v0'); A(f'v_add_u32 v12, s{t4}, v12'); A('v_mul_u32_u24 v12, 1280, v12'); A('v_add_u32 v206, v2, v12')
    A(f's_mul_i32 s{t4}, s{t2}, 1280'); A(f'v_add_u32 v2, s{t4}, v206')
    S = []
    S += ['v_lshrrev_b32 v12, 1, v7', 'v_xor_b32 v12, v12, v8', 'v_lshlrev_b32 v12, 4, v12', 'v_lshl_add_u32 v12, v7, 7, v12',
          f's_lshl_b32 s{t4}, s{sWT}, 13', f's_add_u32 s{t4}, s{t4}, {SLOT0}', f'v_add_u32 v3, s{t4}, v12', 'v_xor_b32 v4, 64, v3',
          f's_mul_i32 s{t4}, s{sWF}, 6144', f's_add_u32 s{t4}, s{t4}, {SLOT0 + WOFF}', f'v_add_u32 v5, s{t4}, v12', 'v_xor_b32 v6, 64, v5']
    S += w2f_setup()
    T = 56
    S += [f's_lshl_b32 s{t4}, s{sWT}, 2', f'v_add_u32 v9, s{t4}, v8']
    for b in range(3): S += rho_theta(PRM+3*b, PRM+3*b+1, PRM+3*b+2, A128 + 2*b)
    lr, li, ld = PRM + 9, PRM + 10, PRM + 11
    S += rho_theta(lr, li, ld, T + 2) + cpow(62, T + 2, T + 3, 1.0, T)
    S += [f'v_add_f32 v{T}, -1.0, v62', f'v_mul_f32 v{T+1}, v{lr}, v{lr}', f'v_fmac_f32 v{T+1}, v{li}, v{li}', f'v_rcp_f32 v{T+1}, v{T+1}',
          f'v_mul_f32 v64, v{T}, v{lr}', f'v_fmac_f32 v64, v63, v{li}', f'v_mul_f32 v65, v63, v{lr}', f'v_fma_f32 v65, -v{T}, v{li}, v65',
          f'v_add_f32 v{T+1}, v{T+1}, v{T+1}', f'v_mul_f32 v64, v64, v{T+1}', f'v_mul_f32 v65, v65, v{T+1}',
          f's_lshl_b32 s{t4}, s{sW}, 7', f's_add_u32 s{t4}, s{t4}, 36864', f'v_lshl_add_u32 v12, v7, 3, s{t4}', 'ds_write_b64 v12, v[64:65]',
          'v_and_b32 v13, 1, v8', f'v_lshl_add_u32 v12, v13, 6, s{t4}']
    S += [f'ds_read_b128 {q4(208+4*i)}, v12 offset:{16*i}' for i in range(4)]
    S += ['v_lshrrev_b32 v12, 1, v8', 'v_lshl_add_u32 v207, v12, 4, v7', 'v_lshlrev_b32 v207, 7, v207',
          f's_lshl_b32 s{t4}, s{sW}, 1', f'v_add_u32 v62, s{t4}, v13', 'v_lshrrev_b32 v63, 1, v7', 'v_xor_b32 v62, v62, v63', 'v_lshl_add_u32 v207, v62, 4, v207',
          'v_lshlrev_b32 v13, 8, v13', 'v_lshl_add_u32 v13, v7, 4, v13', f's_lshl_b32 s{t4}, s{sFO}, 2', f'v_add_u32 v12, s{t4}, v12', f's_mov_b32 s{t5}, {95*5120}']
    for u in range(2):
        S += [f'v_mul_u32_u24 v62, 52, v12', 'v_lshrrev_b32 v62, 8, v62', f'v_mul_u32_u24 v62, s{t5}, v62', f'v_lshl_add_u32 v62, v12, 10, v62', f'v_add_u32 v{224+u}, v62, v13', 'v_add_u32 v12, 2, v12']
    S += [f's_mul_i32 s40, s{sFO}, {64*1280}', f's_lshl_b32 s41, s{sAO}, 7', 's_add_u32 s40, s40, s41', (f's_cmp_lt_u32 s{sAO}, 10', f's_cselect_b32 s40, s40, {OOB}'),
          f's_add_u32 s42, s40, {32*1280}',
          f's_lshl_b32 s43, s{sAO}, 2', f's_add_u32 s43, s43, s{sW}', 's_mul_i32 s44, s43, 86', 's_lshr_b32 s44, s44, 8', 's_mul_i32 s45, s44, 3', 's_sub_u32 s45, s43, s45']
    S += [(f's_cmp_ge_u32 s{sAO}, 5', 's_cselect_b32 s48, 3, 0'), f's_add_u32 s48, s48, s{sAO}', f's_lshl_b32 s49, s{sFO}, 4', 's_add_u32 s48, s48, s49', 's_lshl_b32 s48, s48, 2',
          f's_add_u32 s48, s48, {PF + 1024}', (f's_cmp_lt_u32 s{sAO}, 10', f's_cselect_b32 s48, s48, {OOB}')]
    S += slot_of(41, 44, 's45', 'y', 46) + ['s_mul_i32 s41, s41, 5120', f's_add_u32 s41, s41, {W2F}', (f's_cmp_lt_u32 s{sAO}, 10', f's_cselect_b32 s41, s41, {OOB}')]
    d0 = [tuple(g) for g in dma_chunk('s5', 0)]
    X_, left = sprinkle(S, d0, CFG.get('s5_d0', 14)); P += X_ + left
    P += ST('d0') + get_tag() + [f'v_mov_b32 v13, s{sTAG}'] + ST('tag')
    d1 = [tuple(g) for g in dma_chunk('s5', 1)]
    NPRE = CFG.get('npre', 10)
    rl = []
    for part in range(2):
        for hi in range(2):
            rl.append((f's_add_u32 m0, s{sWL}, {20480 + 8192*part + 4096*hi}', I(f'buffer_load_dwordx4 v206, {q(CIM if part else CRE)}, s{42 if hi else 40} offen lds', tag='rl')))
    T_ = token_stats() + ['v_mov_b32 v56, 0'] + [f'v_dot2c_f32_bf16 v56, 0x3f803f80, v{32+i}' for i in range(20)] + dpp_row_sum(56)
    T_ += ['v_mov_b32 v57, v13', f's_mul_i32 s{t4}, s{t3}, 640', f's_add_u32 s{t4}, s{t4}, 1728', f's_lshl_b32 s{t4}, s{t4}, 5', f's_add_u32 s{t4}, s{t4}, {CS}',
          'v_lshlrev_b32 v11, 5, v10', 'v_cmp_gt_u32 vcc, 640, v10', f'v_mov_b32 v12, {OOB}', 'v_cndmask_b32 v11, v12, v11, vcc',
          ('s_mov_b32 exec_lo, 0x10001', 's_mov_b32 exec_hi, 0x10001', f'buffer_store_dwordx2 v[56:57], v11, {q(WS)}, s{t4} offen sc1', 's_mov_b64 exec, -1')]
    rp = CFG.get('rl_pos', 1)
    pre = (rl if rp == 0 else []) + d1
    NPRE += 4 * (rp == 0)
    X_, left = sprinkle(T_, pre[:NPRE], CFG.get('d1_every', 12)); P += X_ + ST('stats') + left
    P += [Wait('c0'), 's_barrier'] + ST('bar') + [s5_x(0, 0), s5_b(0, 0)] + [s5_x(0, t) for t in range(1, 4)] + [s5_b(0, n) for n in range(1, 6)] + [bmp(3, 0), bmp(5, 0)]
    c_rl_ack = CFG.get('c_ack5', CFG.get('rl_pos', 1) + 3)
    G, bars = s5_loop({rp: ['rl'], c_rl_ack: ['rls']})
    seq = [(list(g), 0) for g in pre[NPRE:]] + [(list(g), 0) for g in (rl if rp == 1 else [])] + [(g, 0) for g in dma_chunk('s5', 2)] + [(list(g), 0) for g in (rl if rp == 2 else [])]
    for c in range(3, 10): seq += [(g, bars[c-3]) for g in dma_chunk('s5', c)]
    last = sched_dma(G, bars, 's5', seq, 48, CFG.get('rate', 12.0))
    S = []
    for b in range(3):
        for dst, n in ((A1, 1.0), (A8, 8.0), (A16, 16.0)): S += cpow(dst + 2*b, A128 + 2*b, A128 + 2*b + 1, n, 250)
    S += ['v_cmp_eq_u32 vcc, 1, v8', f'v_cndmask_b32 v{A16S}, v{A16}, v{A16+2}, vcc', f'v_cndmask_b32 v{A16S+1}, v{A16+1}, v{A16+3}, vcc',
          'v_cmp_eq_u32 vcc, 2, v8', f'v_cndmask_b32 v{A16S}, v{A16S}, v{A16+4}, vcc', f'v_cndmask_b32 v{A16S+1}, v{A16S+1}, v{A16+5}, vcc']
    g_par, par_left = G.place(S, 0, end=bars[rp] + 1)
    S = []
    D, O, Tm = 228, 236, 244
    for u in range(2):
        S += [f'ds_read_b128 {q4(D+4*part)}, v207 offset:{20480 + 8192*part + 4096*u}' for part in range(2)]
        for k in range(4):
            for h in range(2):
                e = 2 * k + h
                un = (lambda d, s: f'v_lshlrev_b32 v{d}, 16, v{s}') if h == 0 else (lambda d, s: f'v_and_b32 v{d}, 0xffff0000, v{s}')
                kr, ki = 208 + 2 * e, 209 + 2 * e
                S += [un(Tm, D + k), un(Tm + 1, D + 4 + k), f'v_mul_f32 v{Tm+2+h}, v{Tm}, v{kr}', f'v_mul_f32 v{Tm+4+h}, v{Tm}, v{ki}',
                      f'v_fma_f32 v{Tm+2+h}, -v{Tm+1}, v{ki}, v{Tm+2+h}', f'v_fmac_f32 v{Tm+4+h}, v{Tm+1}, v{kr}']
            S += [f'v_cvt_pk_bf16_f32 v{O+k}, v{Tm+2}, v{Tm+3}', f'v_cvt_pk_bf16_f32 v{O+4+k}, -v{Tm+4}, -v{Tm+5}']
        S += [I(f'buffer_store_dwordx4 {q4(O+4*part)}, v{224+u}, {q(WS)}, s41 offen offset:{512*part} sc1', tag='rls') for part in range(2)]
    nxt, left = G.place(S, bars[rp] + 1); assert not left and nxt < bars[c_rl_ack], (nxt, bars)
    g_rl = nxt
    nxt, left = G.place(par_left, nxt); assert not left
    CSR = 206
    S = [f's_lshl_b32 s40, s{sRB}, 1', f's_add_u32 s40, s40, s{sWT}',
         's_lshl_b32 s42, s40, 9', f's_add_u32 s42, s42, {STAT}', 'v_lshlrev_b32 v223, 3, v0',
         f's_lshl_b32 s43, s{sWK}, 5', f's_add_u32 s43, s43, {CS + 1728*32}', f's_add_u32 s44, s43, {640*32}', 'v_lshlrev_b32 v224, 5, v7',
         (f's_cmp_lt_u32 s{sWK}, 624', f's_cselect_b32 s45, 0, {OOB}'), (f's_cmp_lt_u32 s{sWK}, 624', f's_cselect_b32 s46, s{sTAG}, 0'),
         'v_add_u32 v225, s45, v224', 'v_mov_b32 v220, s46']
    nxt, left = G.place(S, nxt); assert not left
    g_pub, left = G.place(pf_publish(48), bars[c_rl_ack], budget=3); assert not left
    c_pf = CFG.get('c_pf5', 7)
    ppre, pld, pchk = pf_check('pf_s5', 'y', 32, u0)
    g2, left = G.place(ppre, bars[c_pf-2]); assert not left and g2 < bars[c_pf-1]
    G.fixed(bars[c_pf-1] + 3, [pld]); G.need(bars[c_pf] - 13, 's_waitcnt lgkmcnt(0)')
    g2, left = G.place(pchk, bars[c_pf] - 13, budget=3); assert not left and g2 < bars[c_pf], 'pf check does not fit'
    left_pf = []
    ld = [f'buffer_load_dwordx2 v[218:219], v223, {q(WS)}, s42 offen sc1']
    for b in range(3):
        for part in range(2):
            ld.append(f'buffer_load_dwordx2 {pr(CSR+4*b+2*part)}, v{224 if b == 0 else 225}, {q(WS)}, s{43+part} offen offset:{512*b} sc1')
    ld = [I(x, tag='ext') for x in ld]
    nxt, left = G.place(ld, max(nxt, int(48 * CFG.get('p_ext', 3.5))), step=3); assert not left
    S = check('ext5', ld, tagacc(12, [219] + [CSR+1+2*k for k in range(6)], [13, 13, 13, 220, 220, 220, 220]), ['v_cmp_ne_u32 vcc, 0, v12'])
    S += ['v_and_b32 v219, 0xffff0000, v218', 'v_rcp_f32 v219, v219', 'v_lshlrev_b32 v218, 16, v218', 'v_and_b32 v12, 7, v0', 'v_bfe_u32 v11, v0, 3, 1', 'v_lshl_add_u32 v11, v12, 1, v11',
          'v_lshl_add_u32 v11, v8, 4, v11', f's_lshl_b32 s47, s{sW}, 9', 's_add_u32 s47, s47, 37376', 'v_lshl_add_u32 v11, v11, 2, s47',
          'ds_write_b32 v11, v218', 'ds_write_b32 v11, v219 offset:256', 'v_lshl_add_u32 v10, v8, 6, s47']
    nxt, left_ext = G.place(S, nxt + 40)
    S = [f's_lshl_b32 s41, s{sU1}, 1', f's_add_u32 s41, s41, s{sWF}']
    for b in range(3):
        S += act_offsets(32 + b, 36 + b, 41, b, 'y', 40, 49)
        if b: S += [f's_add_u32 s{32+b}, s{32+b}, s45', f's_add_u32 s{36+b}, s{36+b}, s45']
    tail_addr = S
    WL = w2f_loads(50, False)
    g3, WL = G.place(WL, max(bars[c_pf], last['c9']) + 1, step=4, budget=3)
    g3, left = G.place(tail_addr, bars[c_pf] + 1); left_ext += left
    g3, left = G.place(p2_setup_s(), max(g3, last['c9'] + 1)); left_ext += left
    g3, left = G.place(p2_setup_v(), 456); left_ext += left
    print('s5: last dma gap', last['c9'], 'rl done', g_rl, 'ext done', nxt, 'left', len(left_ext), 'pf chk', g2, len(left_pf), 'w2f left', len(WL), file=sys.stderr)
    P += G.emit() + left_ext + left_pf + ST('loop')
    E = []; B = E.append
    NM, R = 112, 128
    E += [f'ds_read_b128 {q4(NM+4*i)}, v10 offset:{16*i}' for i in range(4)] + [f'ds_read_b128 {q4(R+4*i)}, v10 offset:{256+16*i}' for i in range(4)]
    U = lambda b, part, j: s5_acc(2 * b + part, j >> 1) + 2 * (j & 1)
    st = lambda k, b, part: 144 + 12 * k + 4 * b + 2 * part
    E16 = 8192
    E += [f's_mul_i32 s{t4}, s{sWF}, 384', f's_add_u32 s{t4}, s{t4}, {E16}', f'v_lshl_add_u32 v11, v7, 3, s{t4}',
          's_mov_b32 s47, 768', 'v_mad_u32_u24 v12, v9, s47, v11', 'v_lshl_add_u32 v10, v8, 7, v11']
    def step(b, sre, sim, ure, uim, dre, dim):
        a = pr(A1 + 2 * b)
        return [f'v_pk_fma_f32 {pr(dre)}, {a}, {pr(sre)}, {pr(ure)} {BC_LO}', f'v_pk_fma_f32 {pr(dim)}, {a}, {pr(sim)}, {pr(uim)} {BC_LO}',
                f'v_pk_fma_f32 {pr(dre)}, {a}, {pr(sim)}, {pr(dre)} {BC_HI} {NEG0}', f'v_pk_fma_f32 {pr(dim)}, {a}, {pr(sre)}, {pr(dim)} {BC_HI}']
    for b in range(3):
        for part in range(2):
            E += [f'v_pk_fma_f32 {pr(U(b,part,j))}, {pr(CSR+4*b+2*part)}, {pr(NM+2*j)}, {pr(U(b,part,j))} {BC_LO}' for j in range(8)]
            E += [f'v_pk_mul_f32 {pr(U(b,part,j))}, {pr(U(b,part,j))}, {pr(R+2*j)}' for j in range(8)]
        for j in range(1, 8):
            s = (U(b, 0, 0), U(b, 1, 0)) if j == 1 else (st(j & 1 ^ 1, b, 0), st(j & 1 ^ 1, b, 1))
            E += step(b, s[0], s[1], U(b, 0, j), U(b, 1, j), st(j & 1, b, 0), st(j & 1, b, 1))
        re, im, e, a8 = st(1, b, 0), st(1, b, 1), st(0, b, 0), A8 + 2 * b
        E += [f'v_fma_f32 v{e}, v{a8}, v{re}, v{re+1}', f'v_fma_f32 v{e+1}, v{a8}, v{im}, v{im+1}',
              f'v_fma_f32 v{e}, -v{a8+1}, v{im}, v{e}', f'v_fma_f32 v{e+1}, v{a8+1}, v{re}, v{e+1}', f'ds_write_b64 v12, {pr(e)} offset:{128*b}']
    nw = CFG.get('s5_w1', 8)
    E, _ = sprinkle(E, WL[:nw], 16); WL = _ + WL[nw:]
    P += E
    P += ['s_waitcnt lgkmcnt(0)', 's_barrier'] + ST('t1')
    PB = 112
    P += [f'ds_read_b64 {pr(PB+2*k)}, v10 offset:{768*k}' for k in range(8)]
    P += [f's_mul_i32 s{t4}, s{sRB}, {EST_STRIDE}', f's_lshl_b32 s46, s{sWK}, 4', f's_add_u32 s46, s46, {EST}', f's_add_u32 s{t4}, s{t4}, s46',
          f's_cmp_eq_u32 s{sWT}, 0', f's_cselect_b32 s{t4}, s{t4}, {OOB}', 'v_mov_b32 v130, v13', 'v_mov_b32 v131, v13']
    for k in range(1, 8): P += cma(PB + 2*k if k < 7 else 128, A16S, PB + 2*k - 2, PB + 2*k)
    P += ['s_mov_b32 exec_hi, 0xffff', f'buffer_store_dwordx4 v[128:131], v14, {q(WS)}, s{t4} offen sc1', 's_mov_b32 exec_hi, -1']
    P += ST('pub')
    PA, PE, PD = 132, 136, 208
    P += [f's_sub_u32 s{t4}, s{sRB}, 1', 'v_lshlrev_b32 v10, 2, v8', f'v_sub_u32 v10, s{t4}, v10', f's_mov_b32 s47, {EST_STRIDE}', 'v_lshlrev_b32 v12, 4, v7', f'v_mov_b32 v140, {OOB}']
    for k in range(4):
        P += [f'v_cmp_le_i32 vcc, {k}, v10', f'v_subrev_u32 v{PA+k}, {k}, v10', f'v_mad_u32_u24 v{PA+k}, v{PA+k}, s47, v12',
              f'v_cndmask_b32 v{PA+k}, v140, v{PA+k}, vcc', f'v_cndmask_b32 v{PE+k}, 0, v13, vcc']
    pd = lambda k, b: PD + 12 * k + 4 * b
    ld = [f'buffer_load_dwordx4 {q4(pd(k,b))}, v{PA+k}, {q(WS)}, s46 offen offset:{256*b} sc1' for k in range(4) for b in range(3)]
    E = []
    PFX = lambda b: st(0, b, 1)
    eb = lambda k, b: PB + 6 * (k % 3) + 2 * b
    E += [f'ds_read_b64 {pr(eb(k,b))}, v11 offset:{768*k + 128*b}' for k in range(3) for b in range(3)]
    for b in range(3): E += [f'v_mov_b32 v{PFX(b)}, 0', f'v_mov_b32 v{PFX(b)+1}, 0']
    MK = [('0xffff0000', '-1'), ('0', '-1'), ('0', '0xffff0000'), ('0', '0')]
    for k in range(7):
        lo, hi = MK[k & 3]
        sel = (lambda m: f'-1, {m}') if k < 4 else (lambda m: f'{m}, 0')
        grp = [f's_cmp_eq_u32 s{sWT}, 1', f's_cselect_b32 exec_lo, {sel(lo)}', f's_cselect_b32 exec_hi, {sel(hi)}']
        x = [cma(PFX(b), A16 + 2*b, PFX(b), eb(k, b)) for b in range(3)]
        grp += [y[0] for y in x] + [y[1] for y in x] + ['s_mov_b64 exec, -1']
        E.append(tuple(grp))
        if k + 3 < 7: E += [f'ds_read_b64 {pr(eb(k+3,b))}, v11 offset:{768*(k+3) + 128*b}' for b in range(3)]
    E += ['v_lshlrev_b32 v142, 4, v9', 'v_cvt_f32_u32 v142, v142', 'v_lshlrev_b32 v143, 9, v8', 'v_cvt_f32_u32 v143, v143']
    for b in range(3):
        E += cpow(ASG + 2*b, A128 + 2*b, A128 + 2*b + 1, 'v142', 140) + cpow(A512 + 2*b, A128 + 2*b, A128 + 2*b + 1, 'v143', 140)
    for k in range(3):
        src = lambda b: A16 + 2*b if k == 0 else A128 + 2*b
        E += [f'v_pk_mul_f32 {pr(112+2*b)}, {pr(src(b))}, {pr(src(b))} op_sel:[0,0] op_sel_hi:[0,1]' for b in range(3)]
        E += [f'v_pk_fma_f32 {pr(A128+2*b)}, {pr(src(b))}, {pr(src(b))}, {pr(112+2*b)} {SWP}' for b in range(3)]
    E += [f's_mul_i32 s{t4}, s{sW}, 15360', 'v_mul_u32_u24 v10, 144, v7', 'v_lshl_add_u32 v10, v8, 5, v10', f'v_add_u32 v10, s{t4}, v10',
          'v_bfe_u32 v12, v0, 2, 2', 'v_lshl_add_u32 v11, v8, 3, v12', 'v_mul_u32_u24 v11, 144, v11', 'v_and_b32 v12, 3, v0', 'v_lshl_add_u32 v11, v12, 3, v11', f'v_add_u32 v11, s{t4}, v11']
    npre = CFG.get('s5_poll_at', 60)
    acc = 0; cut = 0
    while cut < len(E) and acc < npre:
        acc += Gaps.cost(flat([E[cut]])); cut += 1
    nw = CFG.get('s5_w2', 6)
    E2, _ = sprinkle(E[cut:], WL[:nw], 16); WL = _ + WL[nw:]
    P += E[:cut] + ST('pl0') + ld + ST('pl1') + E2 + ST('t2')
    P += check('est', ld, tagacc(12, [pd(k, b) + 2 for k in range(4) for b in range(3)], [PE + k for k in range(4) for b in range(3)]), ['v_cmp_ne_u32 vcc, 0, v12'])
    P += ST('t3')
    E = []
    for k in (2, 1, 0):
        x = [cma(pd(k, b), A128 + 2*b, pd(k+1, b), pd(k, b)) for b in range(3)]
        E += [y[0] for y in x] + [y[1] for y in x]
    Z = 112
    for b in range(3):
        E += [f'v_pk_mul_f32 {pr(Z+2*b)}, {pr(A512+2*b)}, {pr(pd(0,b))} op_sel:[0,0] op_sel_hi:[0,1]']
    for b in range(3):
        E += [f'v_pk_fma_f32 {pr(Z+2*b)}, {pr(A512+2*b)}, {pr(pd(0,b))}, {pr(Z+2*b)} {SWP}']
    for sw in ('v_permlane16_swap_b32', 'v_permlane32_swap_b32'):
        E += [f'v_mov_b64 {pr(Z+6+2*b)}, {pr(Z+2*b)}' for b in range(3)]
        E += [f'{sw} v{Z+i}, v{Z+6+i}' for i in range(6)]
        E += [f'v_pk_add_f32 {pr(Z+2*b)}, {pr(Z+2*b)}, {pr(Z+6+2*b)}' for b in range(3)]
    PK, FG = 124, 208
    for b in range(3):
        E += cma(PFX(b), ASG + 2*b, Z + 2*b, PFX(b))
        re, im, a8, ca = st(1, b, 0), st(1, b, 1), A8 + 2 * b, PFX(b)
        E += [f'v_fma_f32 v{re+1}, v{a8}, v{ca}, v{re}', f'v_fma_f32 v{im+1}, v{a8}, v{ca+1}, v{im}',
              f'v_fma_f32 v{re+1}, -v{a8+1}, v{ca+1}, v{re+1}', f'v_fma_f32 v{im+1}, v{a8+1}, v{ca}, v{im+1}',
              f'v_mov_b32 v{re}, v{ca}', f'v_mov_b32 v{im}, v{ca+1}']
    E += ST('z')
    def stores(b):
        fg = FG + 16 * (b & 1)
        return [I(f'buffer_store_dwordx4 {q4(fg+4*tb)}, v14, {q(WS)}, s{32+b} offen offset:{1024*tb} sc1', tag=f'h{b}') for tb in range(4)]
    for b in range(3):
        for j in range(8):
            s = (st(1, b, 0), st(1, b, 1)) if j == 0 else (U(b, 0, j - 1), U(b, 1, j - 1))
            E += step(b, s[0], s[1], U(b, 0, j), U(b, 1, j), U(b, 0, j), U(b, 1, j))
            if j & 1:
                E += [f'v_cvt_pk_bf16_f32 v{PK+8*part+4*sub+j//2}, v{U(b,part,j-1)+sub}, v{U(b,part,j)+sub}' for part in range(2) for sub in range(2)]
            if j == 3 and b > 0: E += stores(b - 1) + ST(f'hb{b-1}')
        E += [f'ds_write_b128 v10, {q4(PK+8*part+4*sub)} offset:{2304*part + 16*sub}' for part in range(2) for sub in range(2)]
        fg = FG + 16 * (b & 1)
        E += [f'ds_read_b64_tr_b16 {pr(fg+4*tb+2*u)}, v11 offset:{576*u + 32*tb}' for tb in range(4) for u in range(2)]
    P += E + stores(2) + ST('t4')
    return P, WL, [[Wait(f'h{b}'), flag_store(36 + b)] for b in range(3)]

XL = 122880
def p2_stages(role): return [0, 4, 9, 14] if role == 'f' else [0, 3, 6, 10]
def fl_load(role, k, fb):
    st = p2_stages(role)
    if k < 3: return f's_buffer_load_dwordx8 s[{fb}:{fb+7}], {q(WS)}, s{sFL} offset:{4*st[k]} glc'
    return f's_buffer_load_dwordx16 s[32:47], {q(WS)}, s{sFL2} glc'

def phase2(role, name, WL, held, flags, fb):
    NS = 14 if role == 'f' else 10
    P = []; A = P.append
    AA, AB, RING = 16, 96, 176
    V2 = [f's_mul_i32 s{u0}, s{sW}, 15360', f'v_add_u32 v6, s{u0}, v14']
    for t in range(1, 4):
        V2 += [f's_sub_u32 s{u0}, s{sW}, {t}', f's_and_b32 s{u0}, s{u0}, 3', f's_mul_i32 s{u0}, s{u0}, 15360', f's_add_u32 s{u0}, s{u0}, {(t-1)*5120}', f'v_add_u32 v{6+t}, s{u0}, v14']
    V3 = ['v_and_b32 v12, 15, v0', 'v_lshrrev_b32 v11, 4, v0', 'v_lshlrev_b32 v11, 3, v11', 'v_mul_u32_u24 v10, 1280, v12', 'v_add_lshl_u32 v10, v10, v11, 1',
          f's_mul_i32 s{u1}, s{sW}, 6144', f's_add_u32 s{u1}, s{u1}, {XL}', 'v_mul_u32_u24 v5, 160, v12', f'v_add3_u32 v5, v5, v11, s{u1}', 'v_lshlrev_b32 v12, 3, v12']
    for i in range(3):
        V3 += [f'v_add_u32 v251, {64*i}, v0', f'v_mul_u32_u24 v{248+i}, 6554, v251', f'v_lshrrev_b32 v{248+i}, 16, v{248+i}', f'v_mul_u32_u24 v{248+i}, 1120, v{248+i}', f'v_lshl_add_u32 v{248+i}, v251, 4, v{248+i}']
    def x_dma(hf, soff):
        L = []
        for i in range(3):
            g = [f's_add_u32 m0, s{u1}, {3072*hf + 1024*i}'] + (['s_mov_b32 exec_hi, 0'] if i == 2 else ['s_nop 0']) + [I(f'buffer_load_dwordx4 v{248+i}, {q(X)}, s{soff} offen lds', tag='xd')] + (['s_mov_b32 exec_hi, -1'] if i == 2 else [])
            L.append(tuple(g))
        return L
    def x_read(dst, hf): return [I(f'ds_read_b64 {pr(dst+2*j)}, v5 offset:{3072*hf + 32*j}', need=['xd']) for j in range(5)]
    Tm = 36
    def unpack(dst, src, n): return [x for k in range(n) for x in (f'v_lshlrev_b32 v{dst+2*k}, 16, v{src+k}', f'v_and_b32 v{dst+2*k+1}, 0xffff0000, v{src+k}')]
    stages = p2_stages(role)
    def fl_check(k):
        a, b = (stages[k], stages[k+1]) if k < 3 else (0, NS)
        base = fb if k < 3 else 32
        pre = [(f's_cmp_ge_u32 s{sW}, 2', f's_cselect_b32 s{base+b-a-1}, s{sTAG}, s{base+b-a-1}')] if (role == 'f' and b == 14) else []
        return check_s(f'{name}_a{k}', fl_load(role, k, fb), list(range(base, base + b - a)), pre)
    def wreg(i, j):
        k = 5 * i + j
        return q4(4 * k, 'a') if k < 64 else q4(224 + 4 * (k - 64))
    NG = 40 * NS
    areg = {}; agap = {}
    free = []
    if role == 'y': free += [(q4(224 + 4*k), -1) for k in range(6)] + [(q4(200 + 4*k, 'a'), -1) for k in range(14)]
    for i in range(NS - 1):
        for j in range(5): free.append((wreg(i, j), 20 * (NS + i) + 15 + j))
    for sg in range(3):
        for t in range(4):
            areg[sg, t] = q4(RING + 16*sg + 4*t); free.append((areg[sg, t], 20*sg + 5*t + 4))
    prev = 0
    LAMAX = CFG.get('la_max', 6); pace = CFG.get('a_pace', 4)
    for sg in range(3, 2 * NS):
        for t in range(4):
            la = 3 if sg <= NS else LAMAX
            g = max(prev + pace, 20 * (sg - la) + 5 * t + 4)
            if sg == 3 and role == 'y': g = max(g, 16)
            free.sort(key=lambda x: x[1])
            g = max(g, free[0][1])
            areg[sg, t] = free.pop(0)[0]; agap[sg, t] = g; prev = g
            assert g + 30 < 20 * sg + 5 * t
            free.append((areg[sg, t], 20*sg + 5*t + 4))
    def a_load(sg, t):
        g = []
        if t == 0:
            if sg == NS: g.append(f's_mov_b32 s{sA}, s{sAown}')
            elif sg > 0: g.append(f's_add_u32 s{sA}, s{sA}, 4096')
            if role == 'f' and sg % NS == 13: g += [f's_cmp_ge_u32 s{sW}, 2', f's_cselect_b32 s{sA}, {OOB}, s{sA}']
        g.append(f'buffer_load_dwordx4 {areg[sg, t]}, v{1+t}, {q(WS)}, s{sA} offen sc1')
        return g
    first = []
    for sg in range(3):
        for t in range(4): first += a_load(sg, t)
    if role == 'f':
        INIT = unpack(AA, 152, 10)
        LATE = unpack(AB, 152, 10) + V2 + V3
        P += flags[0] + ST('flg') + fl_check(0) + ST('a0') + first + held + INIT + ST('ini')
        flags = flags[1:]
    else:
        S = V3 + x_dma(0, sOT) + x_dma(1, sOO) + [f'buffer_load_dwordx2 {pr(Tm+2*j)}, v11, {q(DSK)}, s{sC160} offen offset:{32*j}' for j in range(5)]
        sl = [f'buffer_load_dwordx2 {pr(Tm+30+2*hf)}, v12, {q(WS)}, s{sSTO} offen offset:{512*hf} sc1' for hf in range(2)]
        INIT = check(f'{name}_st', sl, tagacc(Tm + 31, [Tm + 31, Tm + 33]), [f'v_cmp_ne_u32 vcc, 0, v{Tm+31}']) + x_read(Tm + 10, 0) + x_read(Tm + 20, 1) + unpack(Tm + 34, Tm, 10)
        for hf in range(2):
            acc = AA if hf == 0 else AB
            sr = Tm + 30 + 2 * hf
            INIT += [f'v_and_b32 v{sr+1}, 0xffff0000, v{sr}', f'v_rcp_f32 v{sr+1}, v{sr+1}', f'v_lshlrev_b32 v{sr}, 16, v{sr}'] + unpack(acc, Tm + 10 + 10*hf, 10)
            for k in range(10):
                INIT += [f'v_pk_add_f32 {pr(acc+2*k)}, {pr(acc+2*k)}, {pr(sr)} op_sel_hi:[1,0]', f'v_pk_mul_f32 {pr(acc+2*k)}, {pr(acc+2*k)}, {pr(sr)} op_sel:[0,1] op_sel_hi:[1,1]',
                         f'v_pk_mul_f32 {pr(acc+2*k)}, {pr(acc+2*k)}, {pr(Tm+34+2*k)}']
        LATE = V2
        keep = CFG.get('p2_wkeep_y', 8)
        nw0 = max(0, len(WL) - keep)
        P += flags[0] + S + sl + flat(flags[1:-1] and flags[1]) + WL[:nw0 // 2] + flags[-1] + ST('flg') + WL[nw0 // 2:nw0]
        k = len(INIT) * 2 // 3
        P += INIT[:k] + [fl_load(role, 0, fb)] + INIT[k:] + ST('ini') + fl_check(0) + [fl_load(role, 1, fb)] + ST('a0') + first
        WL = WL[nw0:]; flags = []
    G = Gaps2(2)
    seqm = []
    for sg in range(2 * NS):
        i = sg % NS; acc = AA if sg < NS else AB
        order = (0, 1, 2, 3) if sg < 2 * NS - 1 else (1, 2, 3, 0)
        for t in order:
            for j in range(5):
                d = acc + 20 * t + 4 * j
                gi = G.add(f'v_mfma_f32_16x16x32_bf16 {q4(d)}, {wreg(i, j)}, {areg[sg, t]}, ' + ('0' if (i == 0 and t > 0) else q4(d)))
                if j == 0 and gi > 0: G.need(gi - 1, Need(areg[sg, t] + (' ' + wreg(i, 4) if t == 0 and sg < NS else '')))
                if t == 0 and j == 0:
                    if sg == NS: G.fixed(gi, ST('pass2'))
                    G.fixed(gi, ST(f's{sg}') if sg < NS else ST(f'q{sg-NS}'))
    for (sg, t), g in agap.items(): G.fixed(g, a_load(sg, t), 'post')
    for k in range(1, 4):
        gl = agap[stages[k], 0]
        ck = fl_check(k)
        g0 = gl - 3 - int(1.5 * len(ck))
        if not (role == 'y' and k == 1):
            G.fixed(max(0, g0 - CFG.get('fl_lead', 30)), [fl_load(role, k, fb)])
        nxt, left = G.place(ck, max(g0, 1), budget=2); assert not left and nxt <= gl, (k, nxt, gl)
    gi = 1
    for m, w in enumerate(WL):
        k = 5 * NS - len(WL) + m
        step = max(2, min(CFG.get('p2_wstep', 10), (20 * (NS - 1) - 60) // len(WL)))
        gi, left = G.place([w], gi, budget=3); assert not left
        assert gi + 20 < 20 * (k // 5), ('weight load too late', k, gi)
        gi += step
    for fl in flags:
        nxt, left = G.place(fl, CFG.get('f2_gap', 45), budget=3); assert not left and nxt < agap[NS, 0] - 80
    nxt, left = G.place(LATE + ['s_barrier'], 20); assert not left and nxt < 20 * NS - 40
    if role == 'f':
        nxt, left = G.place(x_dma(1, sOO), 20 * NS - 40, step=8, budget=3); assert not left
    S = [f'ds_write_b128 v6, {q4(AA + 20*t + 4*j)} offset:{(t-1)*5120 + 1024*j}' for t in range(1, 4) for j in range(5)]
    nxt, left = G.place(S, 20 * NS, step=CFG.get('red_step', 4)); assert not left
    S = [('s_waitcnt lgkmcnt(0)', 's_barrier')] + [f'ds_read_b128 {q4(AA + 20*t + 4*j)}, v{6+t} offset:{1024*j}' for j in range(5) for t in range(1, 4)]
    nxt, left = G.place(S, nxt + 2, budget=1); assert not left
    S = []
    for j in range(5):
        S.append(Need(q4(AA + 60 + 4*j)))
        for t in range(1, 4): S += [f'v_add_f32 v{AA+4*j+r}, v{AA+4*j+r}, v{AA+20*t+4*j+r}' for r in range(4)]
        S.append(I(f'buffer_store_dwordx4 {q4(AA+4*j)}, v{14 if j < 4 else 15}, {q(WS)}, s{sXO} offen' + (f' offset:{1024*j}' if j < 4 else '') + ' sc1', tag='xo'))
    nxt, left = G.place(S, nxt - 6); assert not left
    g_xo = nxt
    XR, XU, RV = 36, 56, 76
    S = x_read(XR, 1) + [f's_lshl_b32 s{sOO}, s{sOO}, 1'] + [f'v_add_u32 v{6+t}, 61440, v{6+t}' for t in range(4)] + [Need(pr(XR + 8))] + unpack(XU, XR, 10)
    nxt, left = G.place(S, nxt + 1); assert not left
    g_xf, left = G.place([Wait('xo'), flag_store(sXFO)], min(g_xo + CFG.get('xo_wait', 60), NG - 16), budget=3); assert not left
    xl = f's_buffer_load_dword s32, {q(WS)}, s{sXFI} glc'
    xd = lambda so: [f'buffer_load_dwordx4 {q4(RV+4*j)}, v{14 if j < 4 else 15}, {q(WS)}, s{so} offen' + (f' offset:{1024*j}' if j < 4 else '') + ' sc1' for j in range(5)]
    gx = max(nxt, NG - CFG.get('x_ld_' + role, 56))
    nxt, left = G.place([xl], gx, budget=3); assert not left
    nxt, left = G.place([(f's_cmp_eq_u32 s32, s{sTAG}', f's_cselect_b32 s33, s{sXI}, {OOB}')] + xd(33), min(nxt + 28, NG - 18), budget=3); assert not left
    SPINS.append([f'L_spin_{name}_x:', f's_mov_b32 s{t5}, 0', f'L_spinl_{name}_x:', xl, 's_waitcnt lgkmcnt(0)', f's_add_u32 s{t5}, s{t5}, 1', f's_cmp_gt_u32 s{t5}, {SPIN_MAX*2}',
                  f's_cbranch_scc1 L_ret_{name}_x', f's_cmp_eq_u32 s32, s{sTAG}', f's_cbranch_scc0 L_spinl_{name}_x', 's_waitcnt vmcnt(0)'] + xd(sXI) + ['s_waitcnt vmcnt(0)', f's_branch L_ret_{name}_x'])
    xc = [f's_cmp_eq_u32 s32, s{sTAG}', f's_cbranch_scc0 L_spin_{name}_x', f'L_ret_{name}_x:']
    print(name, 'w left', len(WL), 'last a load', max(agap.values()), 'xo', g_xo, 'xf', g_xf, 'xd', nxt, 'of', NG, file=sys.stderr)
    wr = [f'ds_write_b128 v6, {q4(AB + 20*t + 4*j)} offset:{(t-1)*5120 + 1024*j}' for t in range(1, 4) for j in range(5)]
    for k in range(4): G.fixed(NG - 12 + 3*k, [wr[k]], 'pre')
    P += G.emit() + ST('p2end') + wr[4:]
    F, Y = (AB, RV) if role == 'f' else (RV, AB)
    T = 16
    P += [f's_mov_b32 s{t2}, {fbits(-LOG2E)}', f's_mov_b32 s{t3}, {fbits(-LOG2E)}']
    def silu(j):
        f = F + 4 * j; t = T + 4 * j
        return [f'v_pk_mul_f32 {pr(t+2*h)}, {pr(f+2*h)}, s[{t2}:{t3}]' for h in range(2)] + [f'v_exp_f32 v{t+r}, v{t+r}' for r in range(4)] + \
               [f'v_pk_add_f32 {pr(t+2*h)}, {pr(t+2*h)}, 1.0 op_sel_hi:[1,0]' for h in range(2)] + [f'v_rcp_f32 v{t+r}, v{t+r}' for r in range(4)] + \
               [f'v_pk_mul_f32 {pr(t+2*h)}, {pr(t+2*h)}, {pr(f+2*h)}' for h in range(2)]
    def adds(j): return [f'v_pk_add_f32 {pr(AB+4*j+2*h)}, {pr(AB+4*j+2*h)}, {pr(AB+20*t+4*j+2*h)}' for t in range(1, 4) for h in range(2)]
    rd = [f'ds_read_b128 {q4(AB + 20*t + 4*j)}, v{6+t} offset:{1024*j}' for j in range(5) for t in range(1, 4)]
    def fin_(j): return [f'v_pk_fma_f32 {pr(T+4*j+2*h)}, {pr(T+4*j+2*h)}, {pr(Y+4*j+2*h)}, {pr(XU+4*j+2*h)}' for h in range(2)] + \
                        [f'buffer_store_dwordx4 {q4(T+4*j)}, v10, {q(OUT)}, s{sOO} offen offset:{64*j} sc1']
    P += ['s_waitcnt lgkmcnt(0)', 's_barrier'] + ST('rbar') + rd
    if role == 'y':
        P += xc + ST('xok')
        for j in range(5): P += silu(j) + adds(j) + fin_(j)
    else:
        P += adds(0) + silu(0) + xc + ST('xok') + fin_(0)
        for j in range(1, 5): P += adds(j) + silu(j) + fin_(j)
    if name == 'sy':
        P += [f's_lshl_b32 s{t4}, s{sW}, 8', f's_or_b32 s{t4}, s{t4}, s2', f's_cmp_eq_u32 s{t4}, 255', f's_mov_b32 s{t4}, {EPO}', f's_cselect_b32 s{t4}, s{t4}, {OOB}', flag_store(t4)]
    P += ST('fin') + ST_dump() + ['s_endpgm']
    return P

def with_state(segs):
    vm, lg = [], []
    out = []
    for s in segs:
        out.append(add_waits(flat(s), vm, lg))
    return out, vm, lg

def diag(seq):
    out = []
    for x in seq:
        if isinstance(x, I) and ((x.tag == 'rl' and CFG.get('no_rl_ld')) or (x.tag == 'rls' and CFG.get('no_rl_st')) or (x.tag == 'ext' and CFG.get('no_ext'))): continue
        if isinstance(x, str) and CFG.get('no_ext') and ('L_spin_ext' in x and 'branch' in x): continue
        out.append(x)
    return out

def build():
    del SPINS[:]; del NOPSTATS[:]
    ent, la, lb = entry()
    fp = ffn_prologue(la, lb); fm, fWL = ffn_main(None)
    sp = s5_prologue(la, lb); sm, sWL_, sfl = s5_main(None)
    vm0, lg0 = [], []
    ent = add_waits(flat(ent), vm0, lg0)
    vm, lg = list(vm0), list(lg0)
    a_fp = add_waits(flat(fp), vm, lg)
    a_fm = add_waits(diag(flat(fm)) + flat(['s_bitcmp1_b32 s2, 0', 's_cbranch_scc1 L_p2_fy']), vm, lg)
    tl, wl, held, fl = ffn_tail('f', fWL, [fl_load('f', 0, 32)])
    a_ff = add_waits(flat(tl + phase2('f', 'ff', wl, held, fl, 32)), list(vm), list(lg))
    tl, wl, held, fl = ffn_tail('y', [], [])
    a_fy = add_waits(flat(['L_p2_fy:', 's_nop 10'] + tl + phase2('y', 'fy', wl, held, fl, 32)), list(vm), list(lg))
    vm, lg = list(vm0), list(lg0)
    a_sp = add_waits(flat(sp), vm, lg)
    a_sm = add_waits(diag(flat(sm)) + flat(phase2('y', 'sy', sWL_, [], sfl, 40)), vm, lg)
    code = add_nops([mk(x) for x in ent], NOPSTATS) + add_nops(a_fp, NOPSTATS) + add_nops(a_sp, NOPSTATS) + add_nops(a_fm + a_ff, NOPSTATS) + \
        add_nops(a_sm, NOPSTATS) + add_nops(a_fy, NOPSTATS)
    for blk in SPINS: code += add_nops([mk('s_nop 4')] * 0 + [mk(x) for x in blk])
    code.append(mk('L_end:'))
    return kg.single(render(code), 256, 256, 163840, 512, accum=256)

if __name__ == '__main__':
    out = sys.argv[1] if len(sys.argv) > 1 else 'v2.s'
    for kv in sys.argv[2:]:
        k, v = kv.split('='); CFG[k] = eval(v)
    open(out, 'w').write(build())
    from collections import Counter
    print('nops inserted:', len(NOPSTATS), 'states', sum(p for p, _ in NOPSTATS), Counter(t.split()[0] for p, t in NOPSTATS).most_common(8), file=sys.stderr)
```

```python
import re

REG_RE = re.compile(r'(?<![\w.])([vas])(\d+)(?![\w\[])|(?<![\w.])([vas])\[(\d+):(\d+)\]|(?<![\w.])(vcc|exec|m0|scc)(?:_lo|_hi)?(?![\w])')


def regs_of(tok):
    out = []
    for m in REG_RE.finditer(tok):
        if m.group(1):
            out.append((m.group(1), int(m.group(2))))
        elif m.group(3):
            out += [(m.group(3), i) for i in range(int(m.group(4)), int(m.group(5)) + 1)]
        else:
            out.append((m.group(6), 0))
    return out


TRANS = ('v_exp_f32', 'v_log_f32', 'v_rcp_f32', 'v_rsq_f32', 'v_sqrt_f32', 'v_sin_f32', 'v_cos_f32')
RMW = ('v_fmac_f32', 'v_dot2c_f32_bf16', 'v_writelane_b32')
NODST_S = ('s_cmp', 's_waitcnt', 's_barrier', 's_branch', 's_cbranch', 's_nop', 's_endpgm', 's_sleep', 's_setprio', 's_bitcmp')


class I:
    __slots__ = ('text', 'op', 'kind', 'defs', 'uses', 'tag', 'passes', 'srcc', 'srcab', 'wide_store', 'need', 'data')

    def __init__(self, text, tag=None, need=None):
        self.text = text.strip()
        self.tag = tag
        self.need = need
        self.passes = 0
        self.srcc = []
        self.srcab = []
        self.wide_store = False
        self.data = []
        t = self.text
        if t.endswith(':') or t.startswith('.') or t.startswith(';'):
            self.op = t
            self.kind = 'label' if t.endswith(':') else 'dir'
            self.defs = []
            self.uses = []
            return
        sp = t.split(None, 1)
        op = sp[0]
        rest = sp[1] if len(sp) > 1 else ''
        self.op = op
        ops = []
        depth = 0
        cur = ''
        for ch in rest:
            if ch in '[(':
                depth += 1
            if ch in '])':
                depth -= 1
            if ch == ',' and depth == 0:
                ops.append(cur.strip())
                cur = ''
            else:
                cur += ch
        if cur.strip():
            ops.append(cur.strip())
        R = [regs_of(o) for o in ops]
        flat = lambda l: [r for x in l for r in x]
        base = re.sub(r'_(e32|e64|dpp|sdwa)$', '', op)
        if op.startswith('v_mfma'):
            self.kind = 'mfma'
            self.defs = R[0]
            self.srcab = R[1] + R[2]
            self.srcc = R[3]
            self.uses = self.srcab + self.srcc
            self.passes = 8 if '32x32' in op else (2 if '4x4' in op else 4)
        elif op.startswith('v_'):
            self.kind = 'valu'
            self.defs = list(R[0])
            self.uses = flat(R[1:])
            if base in RMW:
                self.uses += R[0]
            if 'permlane' in op and 'swap' in op:
                self.defs = R[0] + R[1]
                self.uses = R[0] + R[1]
            if op.endswith('_dpp'):
                self.uses += R[0]
            if base in ('v_add_co_u32', 'v_addc_co_u32', 'v_sub_co_u32'):
                self.defs = R[0] + R[1]
                self.uses = flat(R[2:])
            if base == 'v_nop':
                self.defs = []
                self.uses = []
        elif op.startswith('ds_'):
            self.kind = 'ds'
            if 'read' in op or 'permute' in op or 'swizzle' in op:
                self.defs = R[0]
                self.uses = flat(R[1:])
            else:
                self.defs = []
                self.uses = flat(R) + ([('m0', 0)] if 'addtid' in op else [])
        elif op.startswith('buffer_') or op.startswith('global_'):
            self.kind = 'vmem'
            if op in ('buffer_inv', 'buffer_wbl2'):
                self.defs = []
                self.uses = []
            elif 'store' in op or 'atomic' in op:
                self.defs = []
                self.uses = flat(R)
                self.data = R[0] if op.startswith('buffer_') else R[1]
                self.wide_store = op.endswith('x4') or op.endswith('x3')
            elif re.search(r'\blds\b', rest) or '_lds_' in op:
                self.defs = []
                self.uses = flat(R) + [('m0', 0)]
            else:
                self.defs = R[0]
                self.uses = flat(R[1:])
        elif op.startswith('s_load') or op.startswith('s_memtime') or op.startswith('s_memrealtime') or op.startswith('s_buffer_load'):
            self.kind = 'smem'
            self.defs = R[0]
            self.uses = flat(R[1:])
        elif op.startswith('s_'):
            self.kind = 'salu'
            if any(op.startswith(x) for x in NODST_S):
                self.defs = []
                self.uses = flat(R)
            else:
                self.defs = R[0] if R else []
                self.uses = flat(R[1:])
                if 'saveexec' in op:
                    self.defs = self.defs + [('exec', 0)]
        else:
            raise ValueError('unknown instr ' + t)

    @property
    def base(self):
        return re.sub(r'_(e32|e64|dpp|sdwa)$', '', self.op)

    def states(self):
        if self.kind in ('label', 'dir'):
            return 0
        if self.op == 's_nop':
            return int(self.text.split()[1]) + 1
        return 1


def mk(x):
    return x if isinstance(x, I) else I(x)


class Wait:
    def __init__(self, *tags):
        self.tags = tags


class Need:
    def __init__(self, text):
        self.regs = set(regs_of(text))


class Mark:
    def __init__(self, i):
        self.i = i


class Reset:
    pass


def merge_wait(out, txt):
    if out and isinstance(out[-1], I) and out[-1].op == 's_waitcnt':
        cur = dict(re.findall(r'(\w+)\((\d+)\)', out[-1].text))
        for k, v in re.findall(r'(\w+)\((\d+)\)', txt):
            cur[k] = str(min(int(v), int(cur.get(k, 99))))
        out[-1] = I('s_waitcnt ' + ' '.join(f'{k}({cur[k]})' for k in ('vmcnt', 'lgkmcnt') if k in cur))
    else:
        out.append(I('s_waitcnt ' + txt))


def add_waits(seq, vm=None, lg=None):
    vm = [] if vm is None else vm
    lg = [] if lg is None else lg
    out = []

    def emit_wait(nv, nl):
        parts = []
        if nv is not None:
            parts.append(f'vmcnt({min(nv, 63)})')
            del vm[:max(0, len(vm) - nv)]
        if nl is not None:
            parts.append(f'lgkmcnt({min(nl, 15)})')
            del lg[:max(0, len(lg) - nl)]
        if parts:
            merge_wait(out, ' '.join(parts))

    def need_for(pred):
        nv = nl = None
        for i in range(len(vm) - 1, -1, -1):
            if pred(vm[i]):
                nv = len(vm) - 1 - i
                break
        for i in range(len(lg) - 1, -1, -1):
            if pred(lg[i]):
                nl = len(lg) - 1 - i
                if lg[i].kind == 'smem':
                    nl = 0
                break
        if nl is not None and nl > 0 and any(x.kind == 'smem' for x in lg):
            nl = sum(1 for x in lg[len(lg) - nl:] if x.kind != 'smem')
            nl = 0
        return nv, nl

    for x in seq:
        if isinstance(x, Reset):
            del vm[:]
            del lg[:]
            continue
        if isinstance(x, Wait):
            tags = set(x.tags)
            emit_wait(*need_for(lambda o: o.tag in tags))
            continue
        if isinstance(x, Need):
            emit_wait(*need_for(lambda o: any(r in x.regs for r in o.defs)))
            continue
        if isinstance(x, Mark):
            out.append(x)
            continue
        x = mk(x)
        if x.kind in ('label', 'dir'):
            out.append(x)
            continue
        touched = set(x.uses) | set(x.defs)
        tags = set(x.need or [])
        emit_wait(*need_for(lambda o: (o.tag is not None and o.tag in tags) or any(r in touched for r in o.defs)))
        if x.op == 's_waitcnt':
            m = re.search(r'vmcnt\((\d+)\)', x.text)
            if m:
                del vm[:max(0, len(vm) - int(m.group(1)))]
            m = re.search(r'lgkmcnt\((\d+)\)', x.text)
            if m:
                n = int(m.group(1))
                if n == 0 or not any(o.kind == 'smem' for o in lg):
                    del lg[:max(0, len(lg) - n)]
            merge_wait(out, x.text.split(None, 1)[1])
            continue
        out.append(x)
        if x.kind == 'vmem':
            vm.append(x)
        elif x.kind in ('ds', 'smem') and x.tag != 'async':
            lg.append(x)
    return out


def hazard_need(p, c):
    need = 0
    pd = set(p.defs)
    cu = set(c.uses)
    cd = set(c.defs)
    vg = lambda s: {r for r in s if r[0] in 'va'}
    sg = lambda s: {r for r in s if r[0] == 's' or r[0] == 'vcc'}
    if p.kind == 'valu':
        if p.base.startswith('v_dot') and c.base != p.base and vg(pd) & (cu | cd):
            need = max(need, 3)
        if c.kind == 'salu' and c.op.startswith('s_cbranch_vcc') and ('vcc', 0) in pd:
            need = max(need, 4)
        if c.kind == 'mfma' and vg(pd) & cu:
            need = max(need, 2)
        if c.kind == 'valu':
            if p.base in TRANS and vg(pd) & cu:
                need = max(need, 1)
            if (c.op.endswith('_dpp') or 'permlane' in c.op) and vg(pd) & cu:
                need = max(need, 2)
            if c.base in ('v_readlane_b32', 'v_readfirstlane_b32') and vg(pd) & cu:
                need = max(need, 1)
            if sg(pd) & cu:
                need = max(need, 4 if c.base in ('v_readlane_b32', 'v_writelane_b32') else 2)
            if c.base == 'v_cndmask_b32' and ('vcc', 0) in pd:
                need = max(need, 2)
        if c.kind == 'vmem' and sg(pd) & cu:
            need = max(need, 5)
        if c.kind in ('salu', 'smem') and sg(pd) & cu:
            need = max(need, 1)
    if p.kind == 'mfma':
        big = {2: 5, 4: 8, 8: 12}[p.passes]
        if c.kind == 'mfma':
            if pd & set(c.srcab):
                need = max(need, big)
            if pd & set(c.srcc):
                if list(p.defs) == list(c.srcc) and p.passes == c.passes:
                    need = max(need, 2 if p.passes == 2 else 0)
                else:
                    need = max(need, {2: 4, 4: 6, 8: 10}[p.passes])
            elif pd & cd:
                need = max(need, big)
        elif c.kind in ('valu', 'ds', 'vmem'):
            if pd & (cu | cd):
                need = max(need, big)
            if c.kind == 'valu' and set(p.srcc) & cd:
                need = max(need, {2: 1, 4: 3, 8: 7}[p.passes])
    if p.kind == 'salu' and ('m0', 0) in pd and c.kind in ('vmem', 'ds') and ('m0', 0) in cu:
        need = max(need, 1)
    if p.kind == 'vmem' and p.wide_store and set(p.data) & cd:
        need = max(need, 2 if c.kind in ('valu', 'mfma') else 1)
    return need


def add_nops(seq, stats=None):
    out = []
    for x in seq:
        if x.kind in ('label', 'dir'):
            out.append(x)
            continue
        dist = 0
        pad = 0
        for p in reversed(out):
            if dist >= 12:
                break
            n = hazard_need(p, x) if p.kind not in ('label', 'dir') else 0
            if n > dist:
                pad = max(pad, n - dist)
            dist += p.states()
        if pad:
            if stats is not None:
                stats.append((pad, x.text))
            out.append(I(f's_nop {pad - 1}'))
        out.append(x)
    return out


def finalize(seq, stats=None):
    return add_nops(add_waits(seq), stats)


def render(seq):
    return '\n'.join((x.text if x.kind == 'label' else '    ' + x.text) for x in seq)


def weave(main, side, per_gap=3, start=0, is_slot=lambda x: isinstance(x, I) and x.kind == 'mfma'):
    main = [x if isinstance(x, (Wait, Reset)) else mk(x) for x in main]
    side = [x if isinstance(x, (Wait, Reset)) else mk(x) for x in side]
    out = []
    si = 0
    slot = 0
    for x in main:
        out.append(x)
        if is_slot(x):
            if slot >= start:
                cost = 0
                while si < len(side):
                    y = side[si]
                    c = 0 if isinstance(y, (Wait, Reset)) else (2 if y.base in TRANS else 1)
                    if cost + c > per_gap and cost > 0:
                        break
                    out.append(y)
                    cost += c
                    si += 1
            slot += 1
    out += side[si:]
    return out


class Gaps:
    def __init__(self, budget):
        self.budget = budget
        self.g = []

    def add(self, mfma):
        self.g.append(dict(m=mk(mfma), pre=[], mid=[], post=[], used=0, dma=False))
        return len(self.g) - 1

    @staticmethod
    def cost(items):
        c = 0
        for y in items:
            if isinstance(y, (Wait, Reset, Need, Mark)):
                continue
            y = mk(y)
            if y.kind in ('label', 'dir'):
                continue
            c += 2 if (y.base in TRANS or 'permlane' in y.op) else 1
        return c

    def fixed(self, i, items, where='mid'):
        self.g[i][where] += items
        self.g[i]['used'] += self.cost(items)

    def dma(self, i, grp):
        g = self.g[i]
        assert not g['dma']
        g['dma'] = True
        if i > 0:
            self.g[i-1]['post'].append(grp[0])
            self.g[i-1]['used'] += 1
        else:
            g['mid'] = [grp[0]] + g['mid']
            g['used'] += 1
        g['post'] = list(grp[1:]) + g['post']
        g['used'] += len(grp) - 1

    def place(self, items, start, budget=None, end=None, step=1):
        budget = budget or self.budget
        i = start
        items = list(items)
        end = len(self.g) if end is None else end
        while items and i < end:
            it = items[0]
            grp = list(it) if isinstance(it, tuple) else [it]
            c = self.cost(grp)
            g = self.g[i]
            if g['used'] + c <= budget or (c > budget and g['used'] == 0) or c == 0:
                g['mid'] += grp
                g['used'] += c
                items.pop(0)
                if step > 1 and c > 0:
                    i += step
            else:
                i += 1
        return i, items

    def emit(self):
        out = []
        for g in self.g:
            out.append(g['m'])
            out += g['pre'] + g['mid'] + g['post']
        return out


def flat(items):
    out = []
    for it in items:
        if isinstance(it, tuple):
            out += list(it)
        else:
            out.append(it)
    return out


def sprinkle(main, side, every, start=0):
    out = []
    acc = -start
    side = list(side)
    for x in main:
        out.append(x)
        if isinstance(x, tuple):
            acc += Gaps.cost(list(x))
        else:
            acc += Gaps.cost([x])
        if acc >= every and side:
            out.append(side.pop(0))
            acc -= every
    return out, side


PSEUDO = (Wait, Reset, Need, Mark)


def is_scalar(x):
    return not isinstance(x, PSEUDO) and mk(x).kind in ('salu', 'smem')


class Gaps2:
    def __init__(self, budget):
        self.budget = budget
        self.g = []

    def add(self, mfma):
        self.g.append(dict(m=mk(mfma), need=[], first=[], pre=[], mid=[], post=[], used=0, dma=False, fs=False))
        return len(self.g) - 1

    @staticmethod
    def cost(items):
        c = 0
        for y in items:
            if isinstance(y, PSEUDO):
                continue
            y = mk(y)
            if y.kind in ('label', 'dir'):
                continue
            c += 2 if (y.base in TRANS or 'permlane' in y.op) else 1
        return c

    def need(self, i, pseudo):
        self.g[i]['need'].append(pseudo)
        self.g[i]['fs'] = True

    def fixed(self, i, items, where='mid'):
        self.g[i][where] += items
        self.g[i]['used'] += self.cost(items)

    def can_dma(self, i):
        g = self.g[i]
        if g['dma'] or g['used'] + 1 > self.budget:
            return False
        if i > 0 and not self.g[i-1]['fs'] and not self.g[i-1]['dma']:
            return True
        if not g['fs'] and g['used'] >= 1:
            return True
        return i > 0 and self.g[i-1]['used'] + 1 <= self.budget

    def dma(self, i, grp):
        g = self.g[i]
        g['dma'] = True
        p = self.g[i-1] if i > 0 else None
        if p and not p['fs'] and not p['dma']:
            p['first'].append(grp[0]); p['fs'] = True
        elif not g['fs'] and (g['used'] >= 1 or not p):
            g['first'].append(grp[0]); g['fs'] = True
        else:
            p['post'].append(grp[0]); p['used'] += 1
        g['post'] = [grp[1]] + g['post']
        g['used'] += 1
        for x in grp[2:]:
            n = self.g[i+1] if i + 1 < len(self.g) else None
            if n and not n['fs']:
                n['first'].append(x); n['fs'] = True
            else:
                g['post'].append(x); g['used'] += 1

    def place(self, items, start, budget=None, end=None, step=1, thin=False):
        budget = budget or self.budget
        i = start
        items = list(items)
        end = len(self.g) if end is None else end
        mine = -1
        while items and i < end:
            it = items[0]
            grp = list(it) if isinstance(it, tuple) else [it]
            g = self.g[i]
            if len(grp) == 1 and i > start and mine != i and not g['fs'] and (is_scalar(grp[0]) or isinstance(grp[0], (Wait, Need))):
                g['first'].append(grp[0]); g['fs'] = True
                items.pop(0)
                continue
            if thin and len(grp) == 1 and is_scalar(grp[0]):
                i += 1
                continue
            c = self.cost(grp)
            lead = 1 if (len(grp) > 1 and is_scalar(grp[0]) and not g['fs'] and not g['pre'] and not g['mid']) else 0
            if g['used'] + c - lead <= budget or (c - lead > budget and g['used'] == 0) or c == 0:
                g['mid'] += grp
                g['used'] += c - lead
                if lead: g['fs'] = True
                mine = i
                items.pop(0)
                if step > 1 and c > 0:
                    i += step
            else:
                i += 1
        return i, items

    def emit(self):
        out = []
        for g in self.g:
            out.append(g['m'])
            out += g['need'] + g['first'] + g['pre'] + g['mid'] + g['post']
        return out


def is_mem(x):
    return not isinstance(x, PSEUDO) and mk(x).kind in ('ds', 'vmem')


def heavy(x):
    x = mk(x)
    return x.op in ('ds_write_b128',) or (x.kind == 'vmem' and x.wide_store)


def conflicts(a_list, b_list):
    for a in a_list:
        if isinstance(a, PSEUDO):
            return True
        a = mk(a)
        if a.kind == 'label' or a.op.startswith('s_cbranch') or a.op == 's_barrier' or a.op == 's_waitcnt':
            return True
        ad, au = set(a.defs) - {('exec', 0)}, set(a.uses)
        for b in b_list:
            if isinstance(b, PSEUDO):
                continue
            b = mk(b)
            bd, bu = set(b.defs) - {('exec', 0)}, set(b.uses)
            if ad & (bu | bd) or au & bd:
                return True
    return False


class Gaps3(Gaps2):
    def __init__(self, budget, heavy_cost):
        super().__init__(budget)
        self.heavy_cost = heavy_cost

    def add(self, mfma):
        i = super().add(mfma)
        self.g[i]['mem'] = []
        return i

    def cst(self, items):
        return self.cost(items) + sum(self.heavy_cost - 1 for y in items if is_mem(y) and heavy(y))

    def fixed(self, i, items, where=None):
        g = self.g[i]
        for x in items:
            w = where or ('mem' if is_mem(x) else 'mid')
            if w == 'mem':
                assert not conflicts(g['mid'], [x]), (i, mk(x).text)
            g[w].append(x)
        g['used'] += self.cst(items)

    def scalar_before(self, i, x, lo=-1):
        for k in (i - 1, i - 2, i - 3):
            if k > lo and k >= 0 and not self.g[k]['fs']:
                self.g[k]['first'].append(x); self.g[k]['fs'] = True
                return
        if i > 0:
            self.g[i-1]['post'].append(x); self.g[i-1]['used'] += 1
        else:
            self.g[i]['first'].append(x); self.g[i]['fs'] = True

    def can_dma(self, i):
        return not self.g[i]['dma'] and self.g[i]['used'] + 1 <= self.budget

    def dma(self, i, grp, prev=-1):
        g = self.g[i]
        g['dma'] = True
        self.scalar_before(i, grp[0], prev)
        g['mem'].append(grp[1]); g['used'] += 1
        for x in grp[2:]:
            g['post'].append(x); g['used'] += 1

    def place(self, items, start, budget=None, end=None, step=1, thin=False):
        budget = budget or self.budget
        i = start
        items = list(items)
        end = len(self.g) if end is None else end
        mine = -1
        while items and i < end:
            it = items[0]
            grp = list(it) if isinstance(it, tuple) else [it]
            g = self.g[i]
            if len(grp) == 1 and i > start and mine != i and not g['fs'] and (is_scalar(grp[0]) or isinstance(grp[0], (Wait, Need))):
                g['first'].append(grp[0]); g['fs'] = True
                items.pop(0)
                continue
            if len(grp) == 1 and (isinstance(grp[0], (Wait, Need)) or (thin and is_scalar(grp[0]))) and i + 1 < end:
                i += 1
                continue
            c = self.cst(grp)
            memlike = any(is_mem(y) for y in grp) and not any((not isinstance(y, PSEUDO)) and mk(y).kind == 'valu' for y in grp)
            if memlike and (g.get('nomem') or conflicts(g['mid'], grp)):
                i += 1
                continue
            lead = 1 if (len(grp) > 1 and is_scalar(grp[0]) and not g['fs'] and not g['pre'] and not g['mem'] and (memlike or not g['mid'])) else 0
            bud = max(budget, self.budget) if any(is_mem(y) and heavy(y) for y in grp) else budget
            if g['used'] + c - lead <= bud or (c - lead > bud and g['used'] == 0) or c == 0:
                g['mem' if memlike else 'mid'] += grp
                g['used'] += c - lead
                if lead: g['fs'] = True
                mine = i
                items.pop(0)
                if step > 1 and c > 0:
                    i += step
            else:
                i += 1
        return i, items

    def emit(self):
        out = []
        for g in self.g:
            out.append(g['m'])
            out += g['need'] + g['first'] + g['pre'] + g['mem'] + g['mid'] + g['post']
        return out


import subprocess, tempfile, os
E64_OK = ('v_mul_f32', 'v_add_f32', 'v_sub_f32', 'v_mov_b32', 'v_exp_f32', 'v_rcp_f32', 'v_sin_f32', 'v_cos_f32', 'v_fract_f32', 'v_lshlrev_b32', 'v_lshrrev_b32',
          'v_and_b32', 'v_xor_b32', 'v_add_u32', 'v_sub_u32', 'v_subrev_u32', 'v_cvt_f32_u32', 'v_fmac_f32', 'v_max_f32', 'v_mul_u32_u24', 'v_min_u32', 'v_mov_b64', 'v_sqrt_f32')


def sizes_of(code):
    with tempfile.TemporaryDirectory() as d:
        open(d + '/a.s', 'w').write('.amdgcn_target "amdgcn-amd-amdhsa--gfx950"\n.text\n' + render(code) + '\n')
        subprocess.check_call(['clang', '-x', 'assembler', '-target', 'amdgcn-amd-amdhsa', '-mcpu=gfx950', '-c', d + '/a.s', '-o', d + '/a.o'])
        txt = subprocess.check_output(['llvm-objdump', '-d', '--mcpu=gfx950', d + '/a.o']).decode()
    return [4 * len(l.split('//')[1].split(':')[1].split('<')[0].split()) for l in txt.splitlines() if '//' in l and l.startswith('\t')]


def align_runs(code, minrun=6):
    sz = iter(sizes_of(code))
    S = [0 if x.kind in ('label', 'dir') else next(sz) for x in code]
    out = []; off = 0; fixed = nops = 0
    last = None
    for k, x in enumerate(code):
        if S[k] == 8 and off % 8 == 4:
            run = 0; m = k; nm = 0
            while m < len(code) and S[m] in (0, 8):
                run += S[m] == 8; nm += code[m].kind == 'mfma'; m += 1
            if run >= minrun and nm * 4 < run and (last is None or last[1] == 4):
                p = out[last[0]] if last else None
                if p is not None and p.op in E64_OK:
                    out[last[0]] = I(p.text.replace(p.op, p.op + '_e64', 1)); fixed += 1
                else:
                    out.append(I('s_nop 0')); nops += 1
                off += 4
        out.append(x)
        if S[k]:
            last = (len(out) - 1, S[k]); off += S[k]
    return out, fixed, nops
```

```python
import sys, struct, math
from asmlib import *
import kg

def fbits(x): return '0x%08x' % struct.unpack('<I', struct.pack('<f', x))[0]

K_X, K_LRE, K_LIM, K_BRE, K_BIM, K_CRE, K_CIM, K_LDT, K_DSK, K_W1, K_B1, K_W2, K_B2, K_OUT, K_DBG, K_WS = \
    0, 8, 16, 24, 32, 40, 48, 56, 64, 80, 88, 96, 104, 112, 120, 128
ACT = 0
W2F = 0xC00000
STAT = 0x1000000
CS = 0x1010000
EST = 0x1040000; EST_STRIDE = 768 * 8
EPO = 0x1078000
PF = 0x10C0000
AF = 0x1084000
CS5 = 0x1030000
STAMP_OFF = 0x10A0000
XCH = 0x1100000
WS_USED = 0x1B00000
OOB = 0x40000000
LOG2E = 1.4426950408889634
SPIN_MAX = 20000

CFG = dict(stamps=False)

X, WS = 4, 8
pOUT, pDSK, pB2 = 12, 14, 16
sHA, sHF = 18, 21
W1, W2, B1 = 24, 28, 72
BRE, BIM, CRE, CIM, LRE, LIM, LDT = 24, 28, 32, 36, 40, 44, 48
TSRD = 72
def q(s): return f's[{s}:{s+3}]'
def sp(s): return f's[{s}:{s+1}]'
sA, sAown, sFL, sFL2, sXO, sXI, sOO, sC160, sSTO, sPFf, sPFy, sPUB = range(40, 52)
sW, sRB, sCG, sTAG, sC1, sC2, sC3, sWL, sWK, sWT, sWF, sWB, r0, r1 = range(52, 66)
t0, t1, t2, t3, t4, t5 = range(66, 72)
r2_, r3, r4, r5, sU0, sU1 = range(72, 78)
NSTAMP = 12
STSETS = {
 'A': ['entry','bar','loop','t1','t3','t4','s1','s7','s12','s19','p2end','end'],
 'S': ['entry','loop','t4','p2end','fin','end'],
 'H': ['entry','loop','t4','s4','s9','s12','s14','s16','s18','s21','p2end','fin'],
 'B': ['entry','pro','d0','tag','stats','bar','b0','b1','b2','b3','b4','end'],
 'F': ['entry','bar','b0','b1','b2','b3','b4','b5','b6','b7','b8','loop'],
 'G': ['entry','loop','t1','pub','pl0','t2','t3','z','a0','hb0','hb1','t4'],
 'C': ['entry','loop','e0','e1','t1','t4','a0','a1','s0','s1','s2','s3'],
 'D': ['entry','s3','s4','s5','s6','s7','s8','s9','s10','s11','s12','s13'],
 'E': ['entry','s13','s15','s17','s19','s21','s23','p2end','xw','xok','fin','end'],
}
def ST(name):
    if not CFG['stamps']: return []
    L = STSETS[CFG['stamps']]
    if name not in L: return []
    k = L.index(name)
    return [f's_memrealtime s[{78+2*k}:{79+2*k}]']
def ST_dump():
    if not CFG['stamps']: return []
    L = ['s_waitcnt vmcnt(0)'] + ST('end') + ['s_waitcnt lgkmcnt(0)', f's_lshl_b32 s{t0}, s2, 2', f's_add_u32 s{t0}, s{t0}, s{sW}', f's_lshl_b32 s{t0}, s{t0}, 7',
         f's_add_u32 s{t0}, s{t0}, {STAMP_OFF}', 'v_mov_b32 v1, 0', 's_mov_b64 exec, 1']
    for k in range(NSTAMP):
        L += [f'v_mov_b32 v2, s{78+2*k}', f'buffer_store_dword v2, v1, {q(WS)}, s{t0} offen offset:{4*k}']
    return L

def srd(s, koff, size):
    return [f's_load_dwordx2 s[{s}:{s+1}], s[0:1], {koff}'], [f's_mov_b32 s{s+2}, {size}', f's_mov_b32 s{s+3}, 0x20000']
def srds(lst):
    a, b = [], []
    for s, k, z in lst:
        x, y = srd(s, k, z); a += x; b += y
    return a + b
def pr(r): return f'v[{r}:{r+1}]'
def q4(r, f='v'): return f'{f}[{r}:{r+3}]'

NOPSTATS = []
def fin(P): return finalize(flat(P), NOPSTATS)

SPINS = []
def check(name, loads, accum, cond):
    br_bad, br_ok = ('s_cbranch_vccnz', 's_cbranch_vccz') if cond[-1].startswith('v_cmp') else ('s_cbranch_scc0', 's_cbranch_scc1')
    blk = [f'L_spin_{name}:', f's_mov_b32 s{t5}, 0', f'L_spinl_{name}:', 's_sleep 1'] + [mk(x).text for x in flat(loads)] + ['s_waitcnt vmcnt(0)'] + flat(accum) + \
          [f's_add_u32 s{t5}, s{t5}, 1', f's_cmp_gt_u32 s{t5}, {SPIN_MAX}', f's_cbranch_scc1 L_ret_{name}'] + cond + [f'{br_bad} L_spinl_{name}', f's_branch L_ret_{name}']
    SPINS.append(blk)
    return list(accum) + [tuple(cond + [f'{br_bad} L_spin_{name}', f'L_ret_{name}:'])]

def chain(regs):
    L = []; cur = regs[0]
    for r in regs[1:]:
        L.append((f's_cmp_eq_u32 s{cur}, s{sTAG}', f's_cselect_b32 s{regs[0]}, s{r}, s{cur}')); cur = regs[0]
    return L, f's_cmp_eq_u32 s{cur}, s{sTAG}'
def check_s(name, load, regs, pre=[], sleep=0):
    ch, last = chain(regs)
    blk = [f'L_spin_{name}:', f's_mov_b32 s{t5}, 0', f'L_spinl_{name}:'] + ([f's_sleep {sleep}'] if sleep else []) + [mk(load).text, 's_waitcnt lgkmcnt(0)',
           f's_add_u32 s{t5}, s{t5}, 1', f's_cmp_gt_u32 s{t5}, {SPIN_MAX*2}', f's_cbranch_scc1 L_ret_{name}'] + flat(pre) + flat(ch) + [last, f's_cbranch_scc0 L_spinl_{name}', f's_branch L_ret_{name}']
    SPINS.append(blk)
    return list(pre) + ch + [(last, f's_cbranch_scc0 L_spin_{name}', f'L_ret_{name}:')]

def gate(name, loads, test):
    SPINS.append([f'L_spin_{name}:', f's_mov_b32 s{t5}, 0', f'L_spinl_{name}:'] + [mk(x).text for x in loads] + ['s_waitcnt lgkmcnt(0)', f's_add_u32 s{t5}, s{t5}, 1',
                  f's_cmp_gt_u32 s{t5}, {SPIN_MAX*2}', f's_cbranch_scc1 L_ret_{name}'] + flat(test) + [f's_cbranch_scc0 L_spinl_{name}', f's_branch L_ret_{name}'])
    return list(test[:-1]) + [(test[-1], f's_cbranch_scc0 L_spin_{name}', f'L_ret_{name}:')]

def tagacc(acc, regs, exp=None):
    L = []
    for i, r in enumerate(regs):
        e = f's{sTAG}' if exp is None else f'v{exp[i]}'
        if i == 0: L.append(f'v_xor_b32 v{acc}, {e}, v{r}')
        else: L.append(f'v_bitop3_b32 v{acc}, v{acc}, v{r}, {e} bitop3:0xf6')
    return L

def dpp_row_sum(v):
    return [f'v_add_f32_dpp v{v}, v{v}, v{v} row_ror:{n} row_mask:0xf bank_mask:0xf' for n in (8, 4, 2, 1)]

def entry():
    a, b = [], []
    for s_, k, z in [(WS, K_WS, WS_USED), (X, K_X, 2621440)]:
        x, y = srd(s_, k, z); a += x; b += y
    P = ['L_base:'] + ST('entry') + [f's_getpc_b64 s[{t0}:{t1}]', 'L_pc:'] + a + [
        's_cmp_ge_u32 s2, 256', 's_cbranch_scc1 L_end',
        f's_lshr_b32 s{t3}, s2, 3', 'v_lshrrev_b32 v1, 6, v0', 'v_and_b32 v0, 63, v0', f's_lshl_b32 s{t4}, s{t3}, 2',
        f'v_add_u32 v11, s{t4}, v1', 'v_and_b32 v12, 3, v0', 'v_lshl_add_u32 v11, v11, 2, v12', 'v_lshlrev_b32 v11, 7, v11', 'v_min_u32 v11, (L_end-L_pc), v11',
        f'global_load_dword v253, v11, s[{t0}:{t1}]',
        f'v_readfirstlane_b32 s{sW}, v1',
        f's_and_b32 s{t4}, s2, 6', f's_lshr_b32 s{t5}, s2, 6', f's_add_u32 s{t4}, s{t4}, s{t5}', f's_cmp_ge_u32 s{t5}, 2', f's_cselect_b32 s{t5}, 7, 0', f's_add_u32 s{sCG}, s{t4}, s{t5}',
        f's_cmp_eq_u32 s{sCG}, 16', f's_cselect_b32 s{sCG}, 8, s{sCG}',
        f's_cmp_ge_u32 s{sCG}, 9', 's_cbranch_scc1 L_pro_s5']
    return P, [f's_load_dwordx2 {sp(p)}, s[0:1], {k}' for p, k in ((pOUT, K_OUT), (pDSK, K_DSK), (pB2, K_B2))], b

def ids2():
    return [f's_and_b32 s{t4}, s2, 1', f's_lshl_b32 s{t4}, s{t4}, 3', f's_and_b32 s{t5}, s{t3}, 7', f's_add_u32 s{sRB}, s{t4}, s{t5}',
            f's_lshr_b32 s3, s{sRB}, 2', f's_sub_u32 s3, s{sRB}, s3', 's_sub_u32 s3, s3, 1', f's_and_b32 s{t4}, s{sRB}, 3', 's_cselect_b32 s3, s3, 12', f's_lshl_b32 s{sWL}, s{sW}, 10', f's_and_b32 s{sWT}, s{sW}, 1', f's_lshr_b32 s{sWF}, s{sW}, 1']

VE, VTK, VST = 255, 254, 240
def round1_addr():
    return [
            f's_lshl_b32 s{t4}, s{sRB}, 4', f's_add_u32 s{t4}, s{t4}, s{sCG}', f's_lshl_b32 s{t4}, s{t4}, 2', f's_add_u32 s{t4}, s{t4}, s{sW}', f's_lshl_b32 s{t4}, s{t4}, 1',
            f'v_lshrrev_b32 v{VTK}, 5, v0', f'v_add_u32 v{VTK}, s{t4}, v{VTK}',
            f'v_mul_u32_u24 v12, 1280, v{VTK}', 'v_and_b32 v13, 31, v0', 'v_lshl_add_u32 v12, v13, 3, v12', f'v_mov_b32 v{VE}, {EPO}']
def round1_loads():
    return [f'buffer_load_dword v{VE}, v{VE}, {q(WS)}, 0 offen sc1'] + \
           [f'buffer_load_dwordx2 {pr(VST+2*i)}, v12, {q(X)}, 0 offen offset:{256*i}' for i in range(5)]
def get_tag():
    return [f'v_readfirstlane_b32 s{sTAG}, v{VE}', f's_mul_i32 s{sTAG}, s{sTAG}, 0x9e3779b1', f's_add_u32 s{sTAG}, s{sTAG}, 0x7f4a7c15']
def token_stats():
    a, b, c, d = 250, 251, 252, 253
    L = [f'v_mov_b32 v{a}, 0', f'v_mov_b32 v{b}, 0']
    for i in range(10):
        L += [f'v_dot2c_f32_bf16 v{a}, 0x3f803f80, v{VST+i}', f'v_dot2c_f32_bf16 v{b}, v{VST+i}, v{VST+i}']
    for x, y in zip(dpp_row_sum(a), dpp_row_sum(b)): L += [x, y]
    L += [f'v_mov_b32 v{c}, v{a}', f'v_mov_b32 v{d}, v{b}', f'v_permlane16_swap_b32 v{a}, v{c}', f'v_permlane16_swap_b32 v{b}, v{d}',
          f'v_add_f32 v{a}, v{a}, v{c}', f'v_add_f32 v{b}, v{b}, v{d}',
          f'v_mul_f32 v{a}, {fbits(1/640)}, v{a}', f'v_mul_f32 v{b}, {fbits(1/640)}, v{b}',
          f'v_fma_f32 v{b}, -v{a}, v{a}, v{b}', f'v_max_f32 v{b}, 0, v{b}',
          f'v_cvt_pk_bf16_f32 v{b}, v{b}, v{b}', f'v_and_b32 v{b}, 0xffff0000, v{b}',
          f'v_add_f32 v{b}, {fbits(1e-5)}, v{b}', f'v_cvt_pk_bf16_f32 v{b}, v{b}, v{b}', f'v_and_b32 v{b}, 0xffff0000, v{b}',
          f'v_sqrt_f32 v{b}, v{b}', f'v_mov_b32 v{d}, s{sTAG}', f'v_lshlrev_b32 v{VTK}, 3, v{VTK}',
          f'v_cvt_pk_bf16_f32 v{c}, -v{a}, v{b}', f's_mov_b32 s{t4}, {STAT}',
          ('s_mov_b32 exec_lo, 1', 's_mov_b32 exec_hi, 1', f'buffer_store_dwordx2 {pr(c)}, v{VTK}, {q(WS)}, s{t4} offen sc1', 's_mov_b64 exec, -1')]
    return L

def xswz(dst, tmp):
    return [f's_lshl_b32 s{t4}, s{sWT}, 2', f'v_lshrrev_b32 v{tmp}, 4, v0', f'v_add_u32 v{tmp}, s{t4}, v{tmp}',
            f'v_and_b32 v{dst}, 7, v0', f'v_xor_b32 v{dst}, v{dst}, v{tmp}', f'v_lshlrev_b32 v{dst}, 4, v{dst}']

def act_offsets(n, role, a, b_):
    L = [f's_lshl_b32 s{a}, s{sRB}, 1', f's_add_u32 s{a}, s{a}, s{sWT}', f's_lshl_b32 s{a}, s{a}, 3']
    for b in range(3):
        d, fl = sHA + b, sHF + b
        L += [f's_add_u32 s{d}, s{n}, {(0,18,36)[b] if role == "f" else 56 + (0,14,27)[b]}', f's_and_b32 s{b_}, s{d}, 7', f's_add_u32 s{b_}, s{b_}, s{a}', f's_lshr_b32 s{d}, s{d}, 3',
              f's_lshl_b32 s{fl}, s{b_}, 4', f's_add_u32 s{fl}, s{fl}, s{d}', f's_lshl_b32 s{fl}, s{fl}, 2', f's_add_u32 s{fl}, s{fl}, {AF}',
              f's_mul_i32 s{b_}, s{b_}, 12', f's_add_u32 s{d}, s{d}, s{b_}', f's_lshl_b32 s{d}, s{d}, 12']
    return L

SLOT0 = 40960; SLOT = 40960; WOFF = 16384
ACC = 16; FR = 112

def dma_chunk(role, c):
    slot = SLOT0 + SLOT * (c % 3)
    soff = ['0', f's{sC1}', f's{sC2}', f's{sC3}']
    xs = [[f's_add_u32 m0, s{sWL}, {slot + 4096*n - 128*c}',
           I(f'buffer_load_dwordx4 v1, {q(X)}, {soff[n]} offen offset:{128*c} lds', tag=f'c{c}')] for n in range(4)]
    ws = []
    if role == 's5':
        so = ['0', f's{sU0}', f's{sC2}']
        for n in range(6):
            ws.append([f's_add_u32 m0, s{sWL}, {slot + WOFF + 12288*(n%2) + 4096*(n//2) - 128*c}',
                       I(f'buffer_load_dwordx4 v2, {q(BIM if n % 2 else BRE)}, {so[n//2]} offen offset:{128*c} lds', tag=f'c{c}')])
    else:
        for hi in range(2):
            for cb in range(3):
                g = [f's_add_u32 m0, s{sWL}, {slot + WOFF + 8192*cb + 4096*hi - 128*cb}',
                     I(f'buffer_load_dwordx4 v2, {q(W1)}, s{sWK} offen offset:{128*cb} lds', tag=f'c{c}')]
                if cb == 2: g.append(f's_add_u32 s{sWK}, s{sWK}, {32*3456}')
                ws.append(g)
    return [xs[0], ws[0], ws[1], xs[1], ws[2], xs[2], ws[3], ws[4], xs[3], ws[5]]

def bmp(v, c):
    return f'v_add_u32 v{v}, 40960, v{v}' if c % 3 != 2 else f'v_subrev_u32 v{v}, 81920, v{v}'

def ffn_reads(sig):
    c, s = divmod(sig, 4)
    f = FR + 20 * (sig & 1)
    x = lambda tb: f'ds_read_b128 {q4(f+4*tb)}, v{3+s} offset:{4096*tb}'
    w = lambda b, u: f'ds_read_b64_tr_b16 {pr(f+8+4*b+2*u)}, v{7+b} offset:{(16*s+4*u)*128}'
    R = [x(0), w(0, 0), w(0, 1), x(1), w(1, 0), w(1, 1), w(2, 0), w(2, 1)]
    if c < 9:
        R.append(bmp(3 + s, c))
        if s == 3: R += [bmp(7, c), bmp(8, c), bmp(9, c)]
    return R
def ffn_mfmas(f, first):
    M = []
    for t in range(6):
        d = ACC + 16 * t
        M.append(f'v_mfma_f32_32x32x16_bf16 v[{d}:{d+15}], {q4(f+8+4*(t//2))}, {q4(f+4*(t%2))}, ' + ('0' if first else f'v[{d}:{d+15}]'))
    return M
def ffn_loop(extra_wait):
    G = Gaps3(6, 5); bars = []
    for sig in range(40):
        c, s = divmod(sig, 4)
        M = ffn_mfmas(FR + 20 * (sig & 1), sig == 0)
        R = ffn_reads(sig + 1) if sig < 39 else []
        bar = (s == 3 and c < 9)
        for t in range(6):
            i = G.add(M[t])
            if t == 1:
                if bar:
                    G.need(i, Wait(f'c{c+1}', *extra_wait.get(c, []))); G.need(i, 's_waitcnt lgkmcnt(0)')
                    G.fixed(i, ['s_barrier'] + ST(f'b{c}'), 'pre'); bars.append(i)
                else: G.need(i, Need(f'v[{FR + 20*(sig&1)}:{FR + 20*(sig&1) + 19}]'))
            if t == 5 and sig < 39: G.need(i, Need(q4(FR + 20*((sig+1)&1) + 4)))
            if t >= (1 if bar else 0):
                n = 2 if t < 5 else len(R)
                if s == 2 and t >= 3 and t < 5: n = 3
                G.fixed(i, R[:n]); R = R[n:]
    return G, bars

def s5_x(sig, tt): return f'ds_read_b128 {q4(FR + 16*(sig&1) + 4*tt)}, v{3+(sig&1)} offset:{2048*tt}'
def s5_b(sig, n): return f'ds_read_b128 {q4(FR + 32 + 4*n)}, v{5+(sig&1)} offset:{12288*(n&1) + 2048*(n>>1)}'
def s5_acc(n, tt): return ACC + 16 * n + 4 * tt
def s5_loop(extra_wait):
    G = Gaps3(2, 2); bars = []
    for sig in range(20):
        c, s = divmod(sig, 2)
        nx = sig + 1
        for n in range(6):
            for tt in range(4):
                d = s5_acc(n, tt)
                i = G.add(f'v_mfma_f32_16x16x32_bf16 {q4(d)}, {q4(FR+16*(sig&1)+4*tt)}, {q4(FR+32+4*n)}, ' + ('0' if sig == 0 else q4(d)))
                bar = s == 1 and c < 9
                if n == 1 and tt == 3 and not bar: G.need(i, Need(q4(FR + 32 + 20)))
                if nx > 19: continue
                if bar and n == 0 and tt == 3:
                    G.need(i, Wait(f'c{c+1}', *extra_wait.get(c, []))); G.need(i, 's_waitcnt lgkmcnt(0)')
                    G.fixed(i, ['s_barrier'] + ST(f'b{c}'), 'pre'); bars.append(i)
                if n == 5 and tt == 3: G.need(i, Need(q4(FR + 16*(nx&1) + 12)))
                if tt == 3: G.fixed(i, [s5_b(nx, n)])
                if n in (1, 2) and tt in (0, 1): G.fixed(i, [s5_x(nx, 2*(n-1) + tt)])
                if nx // 2 < 9:
                    if n == 3 and tt == 1: G.fixed(i, [bmp(3 + (nx & 1), nx // 2)])
                    if n == 5 and tt == 3: G.fixed(i, [bmp(5 + (nx & 1), nx // 2)])
    return G, bars

def sched_dma(G, bars, role, seq, u, rate):
    pos = 0.0
    last = {}
    prev = -1
    for it in seq:
        if it[0] == 'pause':
            pos += it[1] * u; continue
        grp, mg = it
        i = max(int(pos), mg)
        i = max(i, prev + 1)
        while not G.can_dma(i): i += 1
        G.dma(i, grp, prev); prev = i
        last[grp[1].tag] = i
        pos = max(pos, mg) + u / rate
    print(role, 'dma margins (chunks):', [round((bars[c-1] - last[f'c{c}']) / u, 2) for c in range(2, 10)], file=sys.stderr)
    return last

def w2f_loads():
    L = []
    for k in range(60):
        i, j = divmod(k, 5)
        g = []
        if j == 0 and i > 0: g.append(f's_add_u32 s{sWB}, s{sWB}, 5120')
        if k == 30: g.append(f's_or_b32 s{t0}, s{sWB}, s3')
        g.append(f'buffer_load_dwordx4 {q4(4*k, "a")}, v{14 if j < 4 else 15}, {q(WS)}, s{t0 if i == 6 else sWB} offen' + (f' offset:{1024*j}' if j < 4 else '') + ' sc1')
        L.append(tuple(g))
    return L
def p2_setup(a, b, c, d):
    mix = CFG.get('mix', True)
    rsub = [f's_lshr_b32 s{b}, s2, 2', f's_and_b32 s{b}, s{b}, 2', f's_lshr_b32 s{c}, s2, 6', f's_xor_b32 s{b}, s{b}, s{c}'] if mix else [f's_bfe_u32 s{b}, s2, 0x20003']
    return [f's_and_b32 s{a}, s2, 6', f's_lshl_b32 s{a}, s{a}, 1'] + rsub + [f's_add_u32 s{a}, s{a}, s{b}', f's_lshl_b32 s{a}, s{a}, 1',
            f's_and_b32 s{c}, s2, 1', f's_add_u32 s{a}, s{a}, s{c}', f's_xor_b32 s{b}, s{a}, 1',
            f's_lshr_b32 s{sPFy}, s{a}, 1', f's_lshl_b32 s{sPFy}, s{sPFy}, 12', f's_add_u32 s{sPFy}, s{sPFy}, {PF}',
            f's_lshl_b32 s{c}, s{c}, 2', f's_add_u32 s{c}, s{c}, s{sW}', (f's_cmp_ge_u32 s{c}, 6', f's_cselect_b32 s3, {OOB}, 0'),
            f's_lshl_b32 s{sPFf}, s{c}, 5', f's_add_u32 s{sPFf}, s{sPFf}, s{sPFy}',
            f's_lshl_b32 s{d}, s{b}, 3', f's_add_u32 s{d}, s{d}, s{c}', f's_mul_i32 s{sA}, s{d}, {12*4096}', f's_lshl_b32 s{sFL}, s{d}, 6', f's_add_u32 s{sFL}, s{sFL}, {AF}',
            f's_lshl_b32 s{d}, s{a}, 3', f's_add_u32 s{d}, s{d}, s{c}', f's_mul_i32 s{sAown}, s{d}, {12*4096}', f's_lshl_b32 s{sFL2}, s{d}, 6', f's_add_u32 s{sFL2}, s{sFL2}, {AF}',
            f's_bfe_u32 s{d}, s2, 0x30003' if mix else f's_lshr_b32 s{d}, s2, 5', f's_mul_i32 s{sC160}, s{d}, 160',
            f's_lshl_b32 s{sWB}, s{d}, 3', f's_add_u32 s{sWB}, s{sWB}, s{c}', f's_mul_i32 s{sWB}, s{sWB}, {12*5120}', f's_add_u32 s{sWB}, s{sWB}, {W2F}',
            f's_mul_i32 s{c}, s{d}, 5', f's_lshr_b32 s{c}, s{c}, 2',
            f's_lshl_b32 s{c}, s{c}, 6', f's_add_u32 s{sPFy}, s{sPFy}, s{c}', f's_lshl_b32 s{c}, s{c}, 2', f's_add_u32 s{sPFf}, s{sPFf}, s{c}',
            f's_lshl_b32 s{c}, s{sW}, 5', f's_add_u32 s{sPFy}, s{sPFy}, s{c}', f's_add_u32 s{sPFy}, s{sPFy}, 3072',
            f's_lshl_b32 s{d}, s{d}, 2', f's_add_u32 s{d}, s{d}, s{sW}',
            f's_lshl_b32 s{c}, s{b}, 5', f's_add_u32 s{c}, s{c}, s{d}', f's_mul_i32 s{sXO}, s{c}, 6272', f's_add_u32 s{sXO}, s{sXO}, {XCH}',
            f's_lshl_b32 s{c}, s{a}, 5', f's_add_u32 s{c}, s{c}, s{d}', f's_mul_i32 s{sXI}, s{c}, 6272', f's_add_u32 s{sXI}, s{sXI}, {XCH}',
            f's_lshl_b32 s{c}, s{a}, 2', f's_add_u32 s{c}, s{c}, s{sW}', f's_mul_i32 s{sOO}, s{c}, {16*1280}', f's_add_u32 s{sOO}, s{sOO}, s{sC160}',
            f's_lshl_b32 s{sSTO}, s{c}, 7', f's_add_u32 s{sSTO}, s{sSTO}, {STAT}']
def warm_flags():
    return [I(f's_buffer_load_dword s{t0}, {q(WS)}, s{sFL} glc', tag='async')] if CFG.get('warm', True) else []
def pf_publish(off, wg):
    return ([(f's_cmp_eq_u32 s{sW}, 0', f's_cselect_b32 s{off}, s{off}, {OOB}')] if wg else []) + \
           [('s_mov_b64 exec, 0xffff', f'buffer_store_dword v13, v231, {q(WS)}, s{off} offen sc1', 's_mov_b64 exec, -1')]
def pf_check(name, which, fb, v):
    n, so = (7, sPFf) if which == 'f' else (5, sPFy)
    if which == 'f': ld = [f'v_and_b32 v{v}, 7, v0', f'v_min_u32 v{v}, 6, v{v}', f'v_and_b32 v{v+1}, 8, v0', f'v_lshl_or_b32 v{v}, v{v+1}, 3, v{v}']
    else: ld = [f'v_min_u32 v{v}, {n-1}, v0']
    ld += [f'v_lshlrev_b32 v{v}, 2, v{v}', f'buffer_load_dword v{v}, v{v}, {q(WS)}, s{so} offen sc1']
    ch, last = chain(list(range(fb, fb + n)))
    blk = [f'L_spin_{name}:', f's_mov_b32 s{t5}, 0']
    for k in range(2 if which == 'f' else 1):
        blk += [f'L_spinl_{name}{k}:', 's_sleep 2', f's_buffer_load_dwordx8 s[{fb}:{fb+7}], {q(WS)}, s{so} offset:{256*k} glc', 's_waitcnt lgkmcnt(0)',
                f's_add_u32 s{t5}, s{t5}, 1', f's_cmp_gt_u32 s{t5}, {SPIN_MAX*2}', f's_cbranch_scc1 L_ret_{name}'] + flat(ch) + [last, f's_cbranch_scc0 L_spinl_{name}{k}']
    SPINS.append(blk + [f's_branch L_ret_{name}'])
    return ld, [Need(f'v{v}'), f'v_cmp_ne_u32 vcc, s{sTAG}, v{v}'], [(f's_cbranch_vccnz L_spin_{name}', f'L_ret_{name}:')]
def pf_place(G, bar, u, name, which, fb, v):
    ld, c1, c2 = pf_check(name, which, fb, v)
    g, left = G.place(ld, bar - int(u * CFG.get('pf_lead', 0.95))); assert not left
    g = bar - u // 8
    G.need(g, c1[0]); G.fixed(g, c1[1:]); G.fixed(bar - 1, flat(c2), 'post')
XL = 122880
def stage_small(v):
    L = [f's_mul_i32 s{t4}, s{sW}, 3072', f's_add_u32 s{t4}, s{t4}, {XL}']
    for i in range(3):
        L += [f'v_add_u32 v{v+1}, {64*i}, v0', f'v_mul_u32_u24 v{v}, 6554, v{v+1}', f'v_lshrrev_b32 v{v}, 16, v{v}', f'v_mul_u32_u24 v{v}, 1120, v{v}', f's_add_u32 m0, s{t4}, {1024*i}',
              f'v_lshl_add_u32 v{v}, v{v+1}, 4, v{v}']
        ld = I(f'buffer_load_dwordx4 v{v}, {q(X)}, s{sOO} offen lds', tag='xd')
        L.append(('s_mov_b32 exec_hi, 0', ld, 's_mov_b32 exec_hi, -1') if i == 2 else ld)
    L += [f'v_add_u32 v{v}, s{sC160}, v14']
    for off, p in ((2560, pDSK), (2720, pB2)):
        L += [f's_add_u32 m0, s{t4}, {off}', ('s_mov_b64 exec, 0x3ff', I(f'global_load_lds_dwordx4 v{v}, {sp(p)}', tag='xd'), 's_mov_b64 exec, -1')]
    L += [f's_add_u32 m0, s{t4}, 2880', ('s_mov_b64 exec, 0xff', I(f'buffer_load_dwordx4 v14, {q(WS)}, s{sSTO} offen sc1 lds', tag='xd'), 's_mov_b64 exec, -1')]
    return L
def flag_store(off):
    return ('s_mov_b64 exec, 1', f'buffer_store_dword v13, v14, {q(WS)}, s{off} offen sc1', 's_mov_b64 exec, -1')

def p2_setup_v():
    L = [f'v_add_u32 v1, s{sWL}, v14']
    for t in range(1, 4): L += [f'v_add_u32 v{1+t}, {1024*t}, v1', f'v_and_b32 v{1+t}, 0xfff, v{1+t}']
    return L

def ffn_prologue(la, lb):
    P = la + srds([(W1, K_W1, 640*3456), (B1, K_B1, 3456), (W2, K_W2, 1728*1280)]) + lb
    A = P.append
    P += ids2() + round1_addr()
    A('v_lshrrev_b32 v11, 3, v0'); A('v_lshrrev_b32 v8, 4, v0'); A('v_lshlrev_b32 v8, 1, v8'); A('v_and_b32 v9, 7, v0')
    A('v_xor_b32 v8, v8, v9'); A('v_lshlrev_b32 v8, 4, v8')
    A('v_mul_u32_u24 v9, 3456, v11'); A('v_add_u32 v9, v9, v8')
    A(f's_mul_i32 s18, s3, 86'); A('s_lshr_b32 s18, s18, 8')
    A('s_mul_i32 s19, s18, 3'); A(f's_sub_u32 s19, s3, s19'); A(f's_mul_i32 s20, s{sCG}, 3'); A('s_add_u32 s19, s19, s20')
    A(f's_mul_i32 s20, s18, {160*3456}'); A('s_lshl_b32 s21, s19, 7'); A('s_add_u32 s20, s20, s21')
    A(f's_mul_i32 s21, s{sW}, {8*3456}'); A('s_add_u32 s20, s20, s21')
    A('s_cmp_lt_u32 s3, 12'); A(f's_cselect_b32 s20, s20, {OOB}')
    P += round1_loads()
    for i in range(5):
        A(f's_add_u32 m0, s{sWL}, {i*4096}')
        if i: A(f's_add_u32 s20, s20, {32*3456}')
        P.append(I(f'buffer_load_dwordx4 v9, {q(W1)}, s20 offen lds', tag='cs'))
    P += [f's_lshl_b32 s21, s{sCG}, 1', f's_add_u32 s21, s21, s{sWF}', 's_mul_i32 s21, s21, 192', 'v_lshlrev_b32 v13, 1, v13']
    P += [f'buffer_load_ushort v{236+b}, v13, {q(B1)}, s21 offen offset:{64*b}' for b in range(3)]
    P += ST('pro')
    A('s_branch L_ffn')
    return P

def ffn_main(vm):
    P = ['L_ffn:']; A = P.append
    A('v_mul_u32_u24 v10, 1280, v11'); A('v_add_u32 v10, v10, v8')
    P += [f's_mov_b32 s{sC1}, 40960', f's_mov_b32 s{sC2}, 81920', f's_mov_b32 s{sC3}, 122880']
    P += xswz(1, 12)
    A(f's_lshl_b32 s{t4}, s{sRB}, 4'); A(f's_add_u32 s{t4}, s{t4}, s{sW}'); A(f's_lshl_b32 s{t4}, s{t4}, 3')
    A(f'v_add_u32 v12, s{t4}, v11'); A('v_mul_u32_u24 v12, 1280, v12'); A('v_add_u32 v1, v1, v12')
    A(f's_lshl_b32 s{t4}, s{sW}, 3'); A(f'v_add_u32 v12, s{t4}, v11'); A('v_mul_u32_u24 v12, 3456, v12')
    A('v_bfe_u32 v13, v0, 4, 1'); A('v_lshlrev_b32 v13, 2, v13'); A('v_and_b32 v2, 7, v0'); A('v_xor_b32 v2, v2, v13'); A('v_lshl_add_u32 v2, v2, 4, v12')
    A(f's_mul_i32 s{sWK}, s{sCG}, 384')
    S = []
    S += ['v_bfe_u32 v12, v0, 1, 3', 'v_lshrrev_b32 v3, 5, v0', 'v_xor_b32 v12, v12, v3', 'v_and_b32 v3, 31, v0', 'v_lshlrev_b32 v3, 7, v3', 'v_lshl_add_u32 v3, v12, 4, v3',
          f's_lshl_b32 s{t4}, s{sWT}, 13', f's_add_u32 s{t4}, s{t4}, {SLOT0}', f'v_add_u32 v3, s{t4}, v3']
    S += [f'v_xor_b32 v{3+s}, {s*32}, v3' for s in range(1, 4)]
    S += ['v_lshrrev_b32 v11, 5, v0', 'v_bfe_u32 v12, v0, 2, 2', 'v_lshl_add_u32 v11, v11, 3, v12', 'v_lshlrev_b32 v11, 7, v11',
          'v_bfe_u32 v12, v0, 3, 1', 'v_lshl_add_u32 v11, v12, 6, v11', 'v_bfe_u32 v12, v0, 4, 1', 'v_lshl_add_u32 v11, v12, 5, v11',
          'v_and_b32 v12, 3, v0', 'v_lshl_add_u32 v11, v12, 3, v11']
    for b in range(3):
        S += [f's_mul_i32 s{t4}, s{sWF}, 3', f's_add_u32 s{t4}, s{t4}, {b}', f's_and_b32 s{t5}, s{t4}, 1', f's_lshl_b32 s{t5}, s{t5}, 6',
              f's_lshr_b32 s{t4}, s{t4}, 1', f's_lshl_b32 s{t4}, s{t4}, 13', f's_add_u32 s{t4}, s{t4}, {SLOT0 + WOFF}',
              f'v_xor_b32 v{7+b}, s{t5}, v11', f'v_add_u32 v{7+b}, s{t4}, v{7+b}']
    S += ['v_lshrrev_b32 v216, 5, v0', 'v_lshlrev_b32 v216, 4, v216', 'v_bfe_u32 v12, v0, 2, 3', 'v_add_u32 v216, v216, v12',
          'v_lshrrev_b32 v12, 1, v12', 'v_lshlrev_b32 v12, 5, v12', 'v_lshl_add_u32 v216, v216, 7, v12', 'v_and_b32 v12, 3, v0', 'v_lshl_add_u32 v216, v12, 3, v216',
          f's_lshl_b32 s{t4}, s{sW}, 5', f'v_xor_b32 v217, s{t4}, v216', f's_lshl_b32 s{t4}, s{sW}, 12', f'v_add_u32 v216, s{t4}, v216']
    S += [f'v_mov_b32 v{160+i}, 0x3f803f80' for i in range(4)]
    S += ['v_lshlrev_b32 v14, 4, v0', 'v_add_u32 v15, 4096, v14']
    S += [f's_lshl_b32 s{sU1}, s19, 6', f's_lshl_b32 s21, s{sW}, 4', f's_add_u32 s{sU1}, s{sU1}, s21', f's_lshl_b32 s{sU1}, s{sU1}, 5', 's_lshl_b32 s21, s18, 3', f's_add_u32 s{sU1}, s{sU1}, s21',
          f's_add_u32 s{sU1}, s{sU1}, {CS}', ('s_cmp_lt_u32 s3, 12', f's_cselect_b32 s{sU1}, s{sU1}, {OOB}'), 'v_lshlrev_b32 v218, 5, v0']
    S += [f's_lshl_b32 s18, s{sCG}, 4', f's_add_u32 s18, s18, s{sRB}', f's_mul_i32 s{r2_}, s18, 4682', f's_lshr_b32 s{r2_}, s{r2_}, 16', f's_mul_i32 s19, s{r2_}, 14', 's_sub_u32 s19, s18, s19',
          's_lshl_b32 s20, s19, 2', f's_add_u32 s20, s20, s{sW}', 's_mul_i32 s21, s20, 3641', 's_lshr_b32 s21, s21, 16', f's_mul_i32 s{t4}, s21, 18', f's_sub_u32 s{t4}, s20, s{t4}',
          f's_mul_i32 s{t4}, s{t4}, 3', f's_add_u32 s{t4}, s{t4}, s21',
          f's_mul_i32 s{r0}, s{t4}, {32*1280}', f's_lshl_b32 s{t4}, s{r2_}, 7', f's_add_u32 s{r0}, s{r0}, s{t4}',
          f's_and_b32 s{r1}, s20, 7', f's_mul_i32 s{r1}, s{r1}, 12', f's_lshr_b32 s{t4}, s20, 3', f's_add_u32 s{r1}, s{r1}, s{t4}', f's_mul_i32 s{r1}, s{r1}, 5120',
          f's_lshl_b32 s21, s{r2_}, 12', f's_add_u32 s{r1}, s{r1}, s21', f's_add_u32 s{r1}, s{r1}, {W2F}',
          ('s_cmp_lt_u32 s20, 54', 's_cselect_b32 s21, s18, 200'), ('s_cmp_lt_u32 s21, 140', f's_cselect_b32 s{r1}, s{r1}, {OOB}', f's_cselect_b32 s{r0}, s{r0}, {OOB}'), f's_lshl_b32 s{r3}, s{sW}, 12',
          's_and_b32 s21, s20, 7', 's_lshl_b32 s21, s21, 3', f's_add_u32 s21, s21, s{t4}', f's_lshl_b32 s{t4}, s{r2_}, 6', f's_add_u32 s21, s21, s{t4}', 's_lshl_b32 s21, s21, 2', f's_add_u32 s21, s21, {PF}',
          'v_lshlrev_b32 v231, 12, v0',
          ('s_cmp_lt_u32 s18, 140', f's_cselect_b32 s{sPUB}, s21, {OOB}')]
    for jj in range(4):
        S += [f's_lshl_b32 s{t4}, s{r2_}, 2', f's_add_u32 s{t4}, s{t4}, {jj}', f's_mul_i32 s{t4}, s{t4}, 52', f's_lshr_b32 s{t4}, s{t4}, 8', f's_mul_i32 s{t4}, s{t4}, {95*5120}', f'v_add_u32 v{232+jj}, s{t4}, v14']
    S += p2_setup(18, 19, 20, 21) + warm_flags()
    S += [f's_lshl_b32 s{t1}, s{sCG}, 1', f's_add_u32 s{t1}, s{t1}, s{sWF}'] + act_offsets(t1, 'f', t2, t3)
    S += [f's_lshl_b32 s{r4}, s{t2}, 6', f's_add_u32 s{r4}, s{r4}, {STAT}', f's_mul_i32 s{r5}, s{t1}, 3072', f's_add_u32 s{r5}, s{r5}, {CS}',
          'v_and_b32 v12, 31, v0', 'v_lshlrev_b32 v219, 3, v12', 'v_lshrrev_b32 v220, 5, v0', 'v_lshlrev_b32 v220, 4, v220', 'v_lshl_add_u32 v220, v12, 5, v220',
          'v_bfe_u32 v11, v0, 4, 1', 'v_lshlrev_b32 v11, 10, v11', 'v_lshrrev_b32 v12, 5, v0', 'v_lshl_add_u32 v11, v12, 8, v11', 'v_and_b32 v12, 15, v0', 'v_lshl_add_u32 v11, v12, 4, v11']
    S += [f'v_mov_b32 v{188+4*k+2+h}, 0' for k in range(5) for h in range(2)]
    S += ['s_mov_b32 s36, -1', 's_mov_b32 s37, 0', 's_mov_b32 s38, 0x07060302', 's_mov_b32 s39, 0x05040302', f's_mov_b32 s{sU0}, 0x01000100']
    d0 = [tuple(g) for g in dma_chunk('ffn', 0)]
    X_, left = sprinkle(S, d0, CFG.get('d0_every', 24)); P += X_ + left
    P += ST('d0') + get_tag() + [f'v_mov_b32 v13, s{sTAG}'] + ST('tag')
    d1 = [tuple(g) for g in dma_chunk('ffn', 1)]
    rl = [(f's_add_u32 m0, s{r3}, {20480 + i*1024}', I(f'buffer_load_dwordx4 v10, {q(W2)}, s{r0} offen lds', tag='rl'), f's_add_u32 s{r0}, s{r0}, {8*1280}') for i in range(4)]
    NPRE = CFG.get('npre', 10)
    T_ = token_stats() + [Wait('cs'), 's_waitcnt lgkmcnt(0)', 's_barrier']
    for ks in range(5):
        for u in range(2): T_.append(f'ds_read_b64_tr_b16 {pr(168+4*ks+2*u)}, v217 offset:{ks*4096+u*1024}')
    for ks in range(5): T_.append(f'v_mfma_f32_16x16x32_bf16 v[164:167], v[160:163], {q4(168+4*ks)}, ' + ('0' if ks == 0 else 'v[164:167]'))
    T_ += ['v_mov_b32 v165, v13', ('s_mov_b64 exec, 0xffff', f'buffer_store_dwordx2 v[164:165], v218, {q(WS)}, s{sU1} offen sc1', 's_mov_b64 exec, -1')]
    if CFG.get('rl_pos', 1) == 0: d1 = rl + d1
    X_, left = sprinkle(T_, d1[:NPRE], CFG.get('d1_every', 12)); P += X_ + ST('stats') + left
    P += [Wait('c0'), 's_barrier'] + ST('bar') + ffn_reads(0)
    rp = CFG.get('rl_pos', 1)
    G, bars = ffn_loop({})
    seq = [(list(g), 0) for g in d1[NPRE:]]
    for c in range(2, 10):
        if rp == c - 1: seq += [(list(g), 0) for g in rl]
        seq += [(g, bars[c-3] if c > 2 else 0) for g in dma_chunk('ffn', c)]
    last = sched_dma(G, bars, 'ffn', seq, 24, CFG.get('rate', 11.0))
    BU = CFG.get('bud', 4)
    g_w = max(last['c9'], int(24 * CFG.get('p_w', 7.5))) + 1
    pf_place(G, g_w, 24, 'pf_ff', 'f', 28, 217)
    S = []
    for jj in range(4):
        S += [f'v_xor_b32 v12, {jj*32}, v216'] + [I(f'ds_read_b64_tr_b16 {pr(152+4*jj+2*u)}, v12 offset:{20480+u*1024}', need=['rl']) for u in range(2)]
    nxt, left = G.place(S, bars[rp] + 1 - CFG.get('rl_early', 0), budget=6); assert not left
    S = [I(f'buffer_store_dwordx4 {q4(152+4*jj)}, v{232+jj}, {q(WS)}, s{r1} offen offset:{1024*jj} sc1', tag='rls') for jj in range(4)]
    g_rl, left = G.place(S, nxt + 1, step=CFG.get('rls_step', 3), budget=8); assert not left
    g_rl, left = G.place([Wait('rls')] + pf_publish(sPUB, False), g_rl + CFG.get('rls_wait', 20)); assert not left
    ld = [f'buffer_load_dwordx2 {pr(168+2*tb)}, v219, {q(WS)}, s{r4} offen offset:{256*tb} sc1' for tb in range(2)] + \
         [f'buffer_load_dwordx4 {q4(172+4*b)}, v220, {q(WS)}, s{r5} offen offset:{1024*b} sc1' for b in range(3)]
    ld = [I(x, tag='ext') for x in ld]
    nxt, left = G.place(ld, max(nxt, int(24 * CFG.get('p_ext', 4.0))), step=CFG.get('ext_step', 4)); assert not left
    S = check('ext', ld, tagacc(12, [169, 171] + [173+2*k for k in range(6)]), ['v_cmp_ne_u32 vcc, 0, v12'])
    EX = 188
    for tb in range(2):
        f = EX + 4 * tb
        S += [f'v_cndmask_b32 v{f+1}, 0, v{168+2*tb}, s[36:37]', f'v_perm_b32 v{f}, v{f+1}, v{f+1}, s{sU0}']
    S += [f'v_add_f32 v{172+4*b}, v{172+4*b}, v{174+4*b}' for b in range(3)] + [f'v_mov_b32 v{173+4*b}, v{172+4*b}' for b in range(3)]
    for b in range(3):
        r = 172 + 4 * b; f = EX + 8 + 4 * b; t = r + 1
        S += [f'v_permlane32_swap_b32 v{r}, v{t}', f'v_add_f32 v{r}, v{r}, v{t}',
              f'v_and_b32 v{t}, 0xffff0000, v{r}', f'v_sub_f32 v{t}, v{r}, v{t}', f'v_perm_b32 v{f}, v{t}, v{r}, s38',
              f'v_and_b32 v{r}, 0xffff0000, v{t}', f'v_sub_f32 v{t}, v{t}, v{r}', f'v_perm_b32 v{f+1}, v{236+b}, v{t}, s39']
    c1 = -2 * math.sqrt(2 / math.pi) * LOG2E; c3 = c1 * 0.044715
    S += [f'v_and_b32 v{212+tb}, 0xffff0000, v{168+2*tb}' for tb in range(2)] + [f'v_rcp_f32 v{169+2*tb}, v{212+tb}' for tb in range(2)]
    for tb in range(2):
        r = 169 + 2 * tb
        S += [f'v_mul_f32 v{208+tb}, {fbits(c1)}, v{r}', f'v_mul_f32 v12, v{r}, v{r}', f'v_mul_f32 v12, v12, v{r}', f'v_mul_f32 v{210+tb}, {fbits(c3)}, v12']
    nxt, left_ext = G.place(S, nxt + 22, budget=BU)
    WL = w2f_loads()
    g3, WL = G.place(WL, g_w, step=CFG.get('w_step', 2), budget=6)
    if CFG.get('stg', 'tail') == 'loop': g3, left = G.place(stage_small(222), bars[8] + 1, budget=6); left_ext += left
    g3, left = G.place(p2_setup_v(), 234, budget=6); left_ext += left
    print('ffn: last dma gap', last['c9'], 'rl', g_rl, 'ext done', nxt, 'left', len(left_ext), 'w2f left', len(WL), file=sys.stderr)
    assert len(WL) >= 25
    P += G.emit() + left_ext + ST('loop')
    P += ffn_mfmas(EX, False)
    return P, WL

def ffn_tail(WL, late):
    P = []
    T = 112; n = 0
    E = []; held = []
    for t in range(6):
        b, tb = divmod(t, 2)
        sel = f'op_sel:[0,{tb},{tb}] op_sel_hi:[1,{tb},{tb}]'
        for piece in range(2):
            o = 128 + 4 * (n % 4); n += 1
            a = lambda p: pr(ACC + 16*t + 8*piece + 2*p)
            tt = lambda p: pr(T + 2*p)
            if n - 1 == CFG.get('late_at', 10): E += late
            if n - 1 == CFG.get('f0_at', 7): E += [Wait('h0'), flag_store(sHF)]
            if n - 1 == CFG.get('f1_at', 11): E += [Wait('h1'), flag_store(sHF + 1)]
            E += [f'v_pk_mul_f32 {tt(p)}, {a(p)}, {a(p)}' for p in range(4)]
            E += [f'v_pk_fma_f32 {tt(p)}, {tt(p)}, v[210:211], v[208:209] {sel}' for p in range(4)]
            E += [f'v_pk_mul_f32 {tt(p)}, {tt(p)}, {a(p)}' for p in range(4)]
            E += [f'v_exp_f32 v{T+p}, v{T+p}' for p in range(8)]
            E += [f'v_pk_fma_f32 {tt(p)}, {tt(p)}, v[212:213], v[212:213] {sel}' for p in range(4)]
            E += [f'v_rcp_f32 v{T+p}, v{T+p}' for p in range(8)]
            E += [f'v_pk_mul_f32 {tt(p)}, {tt(p)}, {a(p)}' for p in range(4)]
            E += [f'v_cvt_pk_bf16_f32 v{o+p}, v{T+2*p}, v{T+2*p+1}' for p in range(4)]
            E.append(I(f'buffer_store_dwordx4 {q4(o)}, v11, {q(WS)}, s{sHA+b} offen offset:{tb*2048+piece*512} sc1', tag=f'h{b}'))
        if tb == 1: E += ST(f'e{b}')
    ld, c1, c2 = pf_check('pf_fy', 'y', 28, 221)
    k = len(E) // 3; nf = len(WL) - 25
    E1, left = sprinkle(E[:k], WL[:nf], CFG.get('w_every', 90))
    E2, WL = sprinkle(E[k:], left + WL[nf:], CFG.get('w_every', 90))
    E = (stage_small(222) if CFG.get('stg', 'tail') == 'tail' else []) + ld + E1 + c1 + E2[:4] + c2 + ['s_barrier'] + E2[4:]
    P += E + ST('t1')
    return P, WL, [[Wait('h2'), flag_store(sHF + 2)]]

def cpow(dst, rho, th, n, t):
    nn = n if isinstance(n, str) else fbits(n)
    return [f'v_mul_f32 v{t}, {nn}, v{rho}', f'v_mul_f32 v{t+1}, {nn}, v{th}', f'v_exp_f32 v{t}, v{t}', f'v_fract_f32 v{t+1}, v{t+1}',
            f'v_cos_f32 v{dst}, v{t+1}', f'v_sin_f32 v{dst+1}, v{t+1}', f'v_mul_f32 v{dst}, v{t}, v{dst}', f'v_mul_f32 v{dst+1}, v{t}, v{dst+1}']
def rho_theta(lr, li, ld, rho):
    return [f'v_lshlrev_b32 v{ld}, 16, v{ld}', f'v_mul_f32 v{ld}, {fbits(LOG2E)}, v{ld}', f'v_exp_f32 v{ld}, v{ld}', f'v_lshlrev_b32 v{lr}, 16, v{lr}', f'v_lshlrev_b32 v{li}, 16, v{li}',
            f'v_cvt_pk_bf16_f32 v{ld}, v{ld}, v{ld}', f'v_and_b32 v{ld}, 0xffff0000, v{ld}',
            f'v_mul_f32 v{rho}, v{ld}, v{lr}', f'v_mul_f32 v{rho+1}, v{ld}, v{li}',
            f'v_mul_f32 v{rho}, {fbits(LOG2E)}, v{rho}', f'v_mul_f32 v{rho+1}, {fbits(1/(2*math.pi))}, v{rho+1}']
BC_LO = 'op_sel:[0,0,0] op_sel_hi:[0,1,1]'
BC_HI = 'op_sel:[1,0,0] op_sel_hi:[1,1,1]'
NEG0 = 'neg_lo:[1,0,0] neg_hi:[1,0,0]'
SWP = 'op_sel:[1,1,0] op_sel_hi:[1,0,1] neg_lo:[1,0,0]'
def cma(dst, a, x, add):
    return [f'v_pk_fma_f32 {pr(add)}, {pr(a)}, {pr(x)}, {pr(add)} {BC_LO}', f'v_pk_fma_f32 {pr(dst)}, {pr(a)}, {pr(x)}, {pr(add)} {SWP}']

PB_ = 168
def par(b, k): return PB_ + 12 * b + k
A1, A8, A16, A128, RT, ASG = [(lambda k: (lambda b: par(b, k)))(k) for k in (0, 2, 4, 6, 8, 10)]
A512 = RT
A16S = 204
PRM = 16
def s5_prologue(la, lb):
    P = ['L_pro_s5:'] + la + srds([(BRE, K_BRE, 819200), (BIM, K_BIM, 819200), (LRE, K_LRE, 1280), (LIM, K_LIM, 1280), (LDT, K_LDT, 1280),
              (CRE, K_CRE, 819200), (CIM, K_CIM, 819200)]) + lb
    A = P.append
    P += ids2() + round1_addr()
    A(f's_sub_u32 s{sU1}, s{sCG}, 9')
    A(f's_mul_i32 s{t2}, s{sU1}, 96')
    A(f's_mul_i32 s{sWK}, s{sWF}, 48'); A(f's_add_u32 s{sWK}, s{sWK}, s{t2}')
    A(f's_lshl_b32 s{t4}, s{sU1}, 4'); A(f's_add_u32 s{t4}, s{t4}, s{sRB}'); A(f's_mul_i32 s{r0}, s{t4}, 6554'); A(f's_lshr_b32 s{r0}, s{r0}, 16')
    A(f's_mul_i32 s{r1}, s{r0}, 10'); A(f's_sub_u32 s{r1}, s{t4}, s{r1}')
    A('v_and_b32 v7, 15, v0'); A('v_lshrrev_b32 v8, 4, v0'); A('v_lshlrev_b32 v9, 1, v7')
    A(f's_cmp_ge_u32 s3, 6'); A(f's_cselect_b32 s{t3}, 1, 0')
    A(f's_mul_i32 s{t4}, s{t3}, 6'); A(f's_sub_u32 s{t4}, s3, s{t4}'); A(f's_lshl_b32 s{t4}, s{t4}, 4'); A(f's_add_u32 s{t4}, s{t4}, s{t2}')
    A(f's_lshl_b32 s{t5}, s{sW}, 2'); A(f's_add_u32 s{t4}, s{t4}, s{t5}')
    A('s_cmp_lt_u32 s3, 12'); A(f's_cselect_b32 s{t4}, s{t4}, 1000')
    A(f'v_add_u32 v10, s{t4}, v8'); A('v_mul_u32_u24 v11, 1280, v10'); A('v_lshl_add_u32 v11, v7, 4, v11')
    A(f's_mov_b32 s{TSRD+2}, 819200'); A(f's_mov_b32 s{TSRD+3}, 0x20000')
    A(f's_lshl_b32 s{t5}, s{r0}, 2'); A(f's_add_u32 s{t5}, s{t5}, s{sW}'); A(f's_lshl_b32 s{t5}, s{t5}, 4'); A(f'v_add_u32 v9, s{sWK}, v0'); A(f'v_add_u32 v13, s{t5}, v7')
    A('v_cmp_eq_u32 vcc, 3, v8'); A('v_cndmask_b32 v9, v9, v13, vcc'); A('v_lshlrev_b32 v9, 1, v9')
    for k, s in enumerate((LRE, LIM, LDT)): A(f'buffer_load_ushort v{PRM+k}, v9, {q(s)}, 0 offen')
    P += round1_loads()
    A(f's_cmp_ge_u32 s3, 6'); A(f's_cselect_b32 s{TSRD}, s{BIM}, s{BRE}'); A(f's_cselect_b32 s{TSRD+1}, s{BIM+1}, s{BRE+1}')
    for i in range(5): A(f'buffer_load_dwordx4 {q4(32+4*i)}, v11, {q(TSRD)}, 0 offen offset:{256*i}')
    A('v_min_u32 v13, 9, v7'); A('v_lshlrev_b32 v13, 7, v13'); A(f'global_load_dword v28, v13, {sp(pDSK)}'); A(f'global_load_dword v29, v13, {sp(pB2)}')
    P += ST('pro')
    A('s_branch L_s5')
    return P

def s5_main(early):
    P = ['L_s5:']; A = P.append
    P += [f's_mov_b32 s{sC1}, 5120', f's_mov_b32 s{sC2}, 81920', f's_mov_b32 s{sC3}, 87040', f's_mov_b32 s{sU0}, 40960']
    P += xswz(2, 12)
    A('v_lshrrev_b32 v12, 5, v0'); A('v_lshlrev_b32 v12, 4, v12'); A('v_bfe_u32 v13, v0, 3, 1'); A('v_lshl_add_u32 v12, v13, 3, v12')
    A('v_bfe_u32 v13, v0, 4, 1'); A('v_add_u32 v12, v12, v13')
    A(f's_lshl_b32 s{t4}, s{sRB}, 2'); A(f's_add_u32 s{t4}, s{t4}, s{sWT}'); A(f's_lshl_b32 s{t4}, s{t4}, 4'); A(f's_add_u32 s{t4}, s{t4}, s{sWF}'); A(f's_lshl_b32 s{t4}, s{t4}, 1')
    A(f'v_add_u32 v12, s{t4}, v12'); A('v_mul_u32_u24 v12, 1280, v12'); A('v_add_u32 v1, v2, v12')
    A(f's_lshl_b32 s{t4}, s{sW}, 3'); A('v_lshrrev_b32 v12, 3, v0'); A(f'v_add_u32 v12, s{t4}, v12'); A('v_mul_u32_u24 v12, 1280, v12'); A('v_add_u32 v206, v2, v12')
    A(f's_mul_i32 s{t4}, s{t2}, 1280'); A(f'v_add_u32 v2, s{t4}, v206')
    S = []
    S += ['v_lshrrev_b32 v12, 1, v7', 'v_xor_b32 v12, v12, v8', 'v_lshlrev_b32 v12, 4, v12', 'v_lshl_add_u32 v12, v7, 7, v12',
          f's_lshl_b32 s{t4}, s{sWT}, 13', f's_add_u32 s{t4}, s{t4}, {SLOT0}', f'v_add_u32 v3, s{t4}, v12', 'v_xor_b32 v4, 64, v3',
          f's_mul_i32 s{t4}, s{sWF}, 6144', f's_add_u32 s{t4}, s{t4}, {SLOT0 + WOFF}', f'v_add_u32 v5, s{t4}, v12', 'v_xor_b32 v6, 64, v5']
    S += ['v_lshlrev_b32 v14, 4, v0', 'v_add_u32 v15, 4096, v14']
    S += [f's_lshl_b32 s{t4}, s{sWT}, 2', f'v_add_u32 v9, s{t4}, v8']
    S += p2_setup(r2_, r3, r4, r5) + warm_flags()
    S += [f's_lshl_b32 s{r2_}, s{sU1}, 1', f's_add_u32 s{r2_}, s{r2_}, s{sWF}'] + act_offsets(r2_, 'y', r3, r4)
    S += [(f's_cmp_lt_u32 s{sWK}, 624', f's_cselect_b32 s{r5}, 0, {OOB}')] + [f's_add_u32 s{k+b}, s{k+b}, s{r5}' for k in (sHA, sHF) for b in (1, 2)]
    S += [f's_lshl_b32 s{r3}, s{r3}, 6', f's_add_u32 s{r3}, s{r3}, {STAT}', f's_lshl_b32 s{r4}, s{sWK}, 4', f's_add_u32 s{r4}, s{r4}, {CS5}']
    T = 56; Q_ = 64
    lr, li, ld = PRM, PRM + 1, PRM + 2
    S += rho_theta(lr, li, ld, Q_ + 8) + cpow(Q_, Q_ + 8, Q_ + 9, 1.0, T)
    def sq(dst, src): return [f'v_pk_mul_f32 {pr(T)}, {pr(src)}, {pr(src)} op_sel:[0,0] op_sel_hi:[0,1]', f'v_pk_fma_f32 {pr(dst)}, {pr(src)}, {pr(src)}, {pr(T)} {SWP}']
    S += sq(Q_+2, Q_) + sq(Q_+2, Q_+2) + sq(Q_+2, Q_+2) + sq(Q_+4, Q_+2) + sq(Q_+6, Q_+4) + sq(Q_+6, Q_+6) * 4
    k = Q_ + 10
    S += [f'v_add_f32 v{T}, -1.0, v{Q_}', f'v_mul_f32 v{T+1}, v{lr}, v{lr}', f'v_fmac_f32 v{T+1}, v{li}, v{li}', f'v_rcp_f32 v{T+1}, v{T+1}',
          f'v_mul_f32 v{k}, v{T}, v{lr}', f'v_fmac_f32 v{k}, v{Q_+1}, v{li}', f'v_mul_f32 v{k+1}, v{Q_+1}, v{lr}', f'v_fma_f32 v{k+1}, -v{T}, v{li}, v{k+1}',
          f'v_add_f32 v{T+1}, v{T+1}, v{T+1}', f'v_mul_f32 v{k}, v{k}, v{T+1}', f'v_mul_f32 v{k+1}, v{k+1}, v{T+1}',
          f'v_mov_b64 {pr(A16S)}, {pr(Q_+4)}', f's_lshl_b32 s{t4}, s{sW}, 12', 'v_mul_u32_u24 v12, 48, v0', f'v_add_u32 v12, s{t4}, v12']
    S += [f'ds_write_b128 v12, {q4(Q_+4*i)} offset:{16*i}' for i in range(3)]
    S += [f'v_lshl_add_u32 v12, v0, 3, s{t4}', f'ds_write_b64 v12, {pr(k)} offset:3072', 'v_mul_u32_u24 v12, 48, v7', f'v_add_u32 v12, s{t4}, v12']
    S += [f'ds_read_b128 {q4(par(b, 4*i))}, v12 offset:{768*b + 16*i}' for b in range(3) for i in range(3)]
    S += ['v_and_b32 v13, 1, v8', f'v_lshl_add_u32 v12, v13, 6, s{t4}'] + [f'ds_read_b128 {q4(208+4*i)}, v12 offset:{3072 + 384 + 16*i}' for i in range(4)]
    S += ['v_lshrrev_b32 v12, 1, v8', 'v_lshl_add_u32 v207, v12, 4, v7', 'v_lshlrev_b32 v207, 7, v207',
          f's_lshl_b32 s{t4}, s{sW}, 1', f'v_add_u32 v62, s{t4}, v13', 'v_lshrrev_b32 v63, 1, v7', 'v_xor_b32 v62, v62, v63', 'v_lshl_add_u32 v207, v62, 4, v207',
          'v_lshlrev_b32 v13, 8, v13', 'v_lshl_add_u32 v13, v7, 4, v13', f's_lshl_b32 s{t4}, s{r1}, 2', f'v_add_u32 v12, s{t4}, v12', f's_mov_b32 s{t5}, {95*5120}']
    for u in range(2):
        S += [f'v_mul_u32_u24 v62, 52, v12', 'v_lshrrev_b32 v62, 8, v62', f'v_mul_u32_u24 v62, s{t5}, v62', f'v_lshl_add_u32 v62, v12, 10, v62', f'v_add_u32 v{224+u}, v62, v13', 'v_add_u32 v12, 2, v12']
    S += [(f's_cmp_ge_u32 s{r0}, 5', f's_cselect_b32 s{t4}, 3, 0'), f's_add_u32 s{t4}, s{t4}, s{r0}', f's_lshl_b32 s{t5}, s{r1}, 4', f's_add_u32 s{t4}, s{t4}, s{t5}', f's_lshl_b32 s{t4}, s{t4}, 2',
          f's_add_u32 s{sPUB}, s{t4}, {PF + 3072}',
          f's_lshl_b32 s{t4}, s{r0}, 2', f's_add_u32 s{t4}, s{t4}, s{sW}', f's_mul_i32 s{t5}, s{t4}, 86', f's_lshr_b32 s{t5}, s{t5}, 8', f's_mul_i32 s{t1}, s{t5}, 3', f's_sub_u32 s{t4}, s{t4}, s{t1}',
          f's_mul_i32 s{t4}, s{t4}, 27', f's_add_u32 s{t4}, s{t4}, 1', f's_lshr_b32 s{t4}, s{t4}, 1', f's_add_u32 s{t4}, s{t4}, s{t5}',
          f's_and_b32 s{t5}, s{t4}, 7', f's_mul_i32 s{t5}, s{t5}, 12', f's_lshr_b32 s{t4}, s{t4}, 3', f's_add_u32 s{t4}, s{t4}, s{t5}', f's_mul_i32 s{t4}, s{t4}, 5120', f's_add_u32 s{r2_}, s{t4}, {W2F + 7*5120}',
          f's_mul_i32 s{r1}, s{r1}, {64*1280}', f's_lshl_b32 s{t4}, s{r0}, 7', f's_add_u32 s{t4}, s{t4}, s{r1}',
          (f's_cmp_lt_u32 s{r0}, 10', f's_cselect_b32 s{r0}, s{t4}, {OOB}', f's_cselect_b32 s{r2_}, s{r2_}, {OOB}', f's_cselect_b32 s{sPUB}, s{sPUB}, {OOB}'), f's_add_u32 s{r1}, s{r0}, {32*1280}']
    d0 = [tuple(g) for g in dma_chunk('s5', 0)]
    X_, left = sprinkle(S, d0, CFG.get('s5_d0', 26)); P += X_ + left
    P += ST('d0') + get_tag() + [f'v_mov_b32 v13, s{sTAG}'] + ST('tag')
    d1 = [tuple(g) for g in dma_chunk('s5', 1)]
    NPRE = CFG.get('npre', 10)
    rl = []
    for part in range(2):
        for hi in range(2):
            rl.append((f's_add_u32 m0, s{sWL}, {20480 + 8192*part + 4096*hi}', I(f'buffer_load_dwordx4 v206, {q(CIM if part else CRE)}, s{r1 if hi else r0} offen lds', tag='rl')))
    T_ = token_stats() + ['v_mov_b32 v56, 0'] + [f'v_dot2c_f32_bf16 v56, 0x3f803f80, v{32+i}' for i in range(20)] + dpp_row_sum(56)
    T_ += ['v_mov_b32 v57, v13', f's_lshl_b32 s{t4}, s{t3}, 3', f's_add_u32 s{t4}, s{t4}, {CS5}',
          'v_lshlrev_b32 v11, 4, v10', 'v_cmp_gt_u32 vcc, 640, v10', f'v_mov_b32 v12, {OOB}', 'v_cndmask_b32 v11, v12, v11, vcc',
          ('s_mov_b32 exec_lo, 0x10001', 's_mov_b32 exec_hi, 0x10001', f'buffer_store_dwordx2 v[56:57], v11, {q(WS)}, s{t4} offen sc1', 's_mov_b64 exec, -1')]
    pre = d1
    X_, left = sprinkle(T_, pre[:NPRE], CFG.get('d1_every', 12)); P += X_ + ST('stats') + left
    P += [Wait('c0'), 's_waitcnt lgkmcnt(0)', 's_barrier'] + ST('bar') + [s5_x(0, 0), s5_b(0, 0)] + [s5_x(0, t) for t in range(1, 4)] + [s5_b(0, n) for n in range(1, 6)] + [bmp(3, 0), bmp(5, 0)]
    rp = CFG.get('rc_pos', 1); c_rl_ack = CFG.get('c_ack5', rp + 4)
    G, bars = s5_loop({rp: ['rl'], c_rl_ack: ['rls']})
    seq = [(list(g), 0) for g in pre[NPRE:]]
    for c in range(2, 10):
        if rp == c - 1: seq += [(list(g), 0) for g in rl]
        seq += [(g, bars[c-3] if c > 2 else 0) for g in dma_chunk('s5', c)]
    last = sched_dma(G, bars, 's5', seq, 48, CFG.get('rate5', 11.0))
    g_w = max(last['c9'], int(48 * CFG.get('p_w5', 7.6))) + 1
    pf_place(G, g_w, 48, 'pf_sf', 'f', 32, 226)
    pf_place(G, bars[8], 48, 'pf_sy', 'y', 32, 250)
    S = []
    D, O, Tm = 228, 236, 244
    for u in range(2):
        S += [f'ds_read_b128 {q4(D+4*part)}, v207 offset:{20480 + 8192*part + 4096*u}' for part in range(2)]
        for k in range(4):
            for h in range(2):
                e = 2 * k + h
                un = (lambda d, s: f'v_lshlrev_b32 v{d}, 16, v{s}') if h == 0 else (lambda d, s: f'v_and_b32 v{d}, 0xffff0000, v{s}')
                kr, ki = 208 + 2 * e, 209 + 2 * e
                S += [un(Tm, D + k), un(Tm + 1, D + 4 + k), f'v_mul_f32 v{Tm+2+h}, v{Tm}, v{kr}', f'v_mul_f32 v{Tm+4+h}, v{Tm}, v{ki}',
                      f'v_fma_f32 v{Tm+2+h}, -v{Tm+1}, v{ki}, v{Tm+2+h}', f'v_fmac_f32 v{Tm+4+h}, v{Tm+1}, v{kr}']
            S += [f'v_cvt_pk_bf16_f32 v{O+k}, v{Tm+2}, v{Tm+3}', f'v_cvt_pk_bf16_f32 v{O+4+k}, -v{Tm+4}, -v{Tm+5}']
        S += [I(f'buffer_store_dwordx4 {q4(O+4*part)}, v{224+u}, {q(WS)}, s{r2_} offen offset:{512*part} sc1', tag='rls') for part in range(2)]
    g_pub, left = G.place(['v_lshlrev_b32 v231, 12, v0'] + pf_publish(sPUB, True), bars[c_rl_ack], budget=3); assert not left
    nxt, left = G.place(S, bars[rp] + 1, budget=CFG.get('bud5', 2)); assert not left and nxt < bars[c_rl_ack], (nxt, bars)
    g_rl = nxt
    CSR = 208
    S = ['v_lshlrev_b32 v223, 3, v0', 'v_lshlrev_b32 v224, 4, v7', f'v_add_u32 v225, s{r5}, v224', (f's_cmp_eq_u32 s{r5}, 0', f's_cselect_b32 s{t4}, s{sTAG}, 0', f'v_mov_b32 v222, s{t4}')]
    nxt, left = G.place(S, nxt, budget=1); assert not left
    ld = [f'buffer_load_dwordx2 v[220:221], v223, {q(WS)}, s{r3} offen sc1'] + \
         [f'buffer_load_dwordx4 {q4(CSR+4*b)}, v{224 if b == 0 else 225}, {q(WS)}, s{r4} offen offset:{256*b} sc1' for b in range(3)]
    ld = [I(x, tag='ext') for x in ld]
    nxt, left = G.place(ld, max(nxt, int(48 * CFG.get('p_ext', 4.0))), step=2*CFG.get('ext_step', 4), budget=1); assert not left
    S = check('ext5', ld, tagacc(12, [221] + [CSR+1+2*k for k in range(6)], [13, 13, 13, 222, 222, 222, 222]), ['v_cmp_ne_u32 vcc, 0, v12'])
    E16 = 8192; GX = 65536
    S += ['v_and_b32 v221, 0xffff0000, v220', 'v_rcp_f32 v221, v221', 'v_lshlrev_b32 v220, 16, v220', 'v_and_b32 v12, 7, v0', 'v_bfe_u32 v11, v0, 3, 1', 'v_lshl_add_u32 v11, v12, 1, v11',
          'v_lshl_add_u32 v11, v8, 4, v11', f's_lshl_b32 s{r0}, s{sW}, 9', f's_add_u32 s{r0}, s{r0}, 37376', f'v_lshl_add_u32 v11, v11, 2, s{r0}',
          'ds_write_b32 v11, v220', 'ds_write_b32 v11, v221 offset:256', f'v_lshl_add_u32 v206, v8, 6, s{r0}',
          f's_mul_i32 s{r0}, s{sWF}, 384', f's_add_u32 s{r0}, s{r0}, {E16}', f'v_lshl_add_u32 v11, v7, 3, s{r0}',
          'v_mul_u32_u24 v12, 768, v9', 'v_add_u32 v12, v12, v11', 'v_lshl_add_u32 v10, v8, 7, v11',
          f's_mul_i32 s{r0}, s{sRB}, {EST_STRIDE}', f's_mul_i32 s{r1}, s{sU1}, 768', f's_add_u32 s{r1}, s{r1}, {EST}', f's_add_u32 s{r1}, s{r1}, s{r0}',
          f's_mul_i32 s{r0}, s{sWF}, 384', f's_add_u32 s{r0}, s{r0}, s{r1}', (f's_cmp_eq_u32 s{sWT}, 0', f's_cselect_b32 s{r0}, s{r0}, {OOB}'),
          f's_add_u32 s{r2_}, s{sW}, 1', f's_mul_i32 s{r3}, s{r2_}, {EST_STRIDE}', f's_sub_u32 s{r1}, s{r1}, s{r3}', f's_sub_u32 s{r2_}, s{sRB}, s{r2_}',
          f's_mul_i32 s{r3}, s{sW}, 768', f's_add_u32 s{r3}, s{r3}, {GX}', f'v_add_u32 v207, s{r3}, v14', 'v_lshlrev_b32 v223, 3, v0',
          'v_lshrrev_b32 v224, 8, v13', 'v_mul_u32_u24 v225, 768, v8', f'v_add_u32 v225, {GX - E16}, v225', 'v_add_u32 v225, v225, v11']
    nxt, left_ext = G.place(S, nxt + 44, budget=1)
    WL = w2f_loads()
    g3, WL = G.place(WL, g_w, step=CFG.get('w_step5', 4), budget=2)
    if CFG.get('stg5', 'pre') == 'loop': g3, left = G.place(stage_small(228), bars[8] + 1); left_ext += left
    g3, left = G.place(p2_setup_v() + [f'ds_read_b128 {q4(112+4*i)}, v206 offset:{16*i}' for i in range(4)], 457); left_ext += left
    print('s5: last dma gap', last['c9'], 'rl done', g_rl, 'ext done', nxt, 'left', len(left_ext), 'w2f left', len(WL), file=sys.stderr)
    assert len(WL) >= 25
    P += G.emit() + left_ext + ST('loop')
    E = []; B = E.append
    NM, R = 112, 128
    E += [f'ds_read_b128 {q4(R+4*i)}, v206 offset:{256+16*i}' for i in range(4)]
    U = lambda b, part, j: s5_acc(2 * b + part, j >> 1) + 2 * (j & 1)
    st = lambda k, b, part: 144 + 12 * k + 4 * b + 2 * part
    def step(b, sre, sim, ure, uim, dre, dim, a=None):
        a = pr(A1(b) if a is None else a)
        return [f'v_pk_fma_f32 {pr(dre)}, {a}, {pr(sre)}, {pr(ure)} {BC_LO}', f'v_pk_fma_f32 {pr(dim)}, {a}, {pr(sim)}, {pr(uim)} {BC_LO}',
                f'v_pk_fma_f32 {pr(dre)}, {a}, {pr(sim)}, {pr(dre)} {BC_HI} {NEG0}', f'v_pk_fma_f32 {pr(dim)}, {a}, {pr(sre)}, {pr(dim)} {BC_HI}']
    for b in range(3):
        for part in range(2):
            E += [f'v_pk_fma_f32 {pr(U(b,part,j))}, {pr(CSR+4*b+2*part)}, {pr(NM+2*j)}, {pr(U(b,part,j))} {BC_LO}' for j in range(8)]
            E += [f'v_pk_mul_f32 {pr(U(b,part,j))}, {pr(U(b,part,j))}, {pr(R+2*j)}' for j in range(8)]
        for j in range(1, 8):
            s = (U(b, 0, 0), U(b, 1, 0)) if j == 1 else (st(j & 1 ^ 1, b, 0), st(j & 1 ^ 1, b, 1))
            E += step(b, s[0], s[1], U(b, 0, j), U(b, 1, j), st(j & 1, b, 0), st(j & 1, b, 1))
        re, im, e, a8 = st(1, b, 0), st(1, b, 1), st(0, b, 0), A8(b)
        E += [f'v_fma_f32 v{e}, v{a8}, v{re}, v{re+1}', f'v_fma_f32 v{e+1}, v{a8}, v{im}, v{im+1}',
              f'v_fma_f32 v{e}, -v{a8+1}, v{im}, v{e}', f'v_fma_f32 v{e+1}, v{a8+1}, v{re}, v{e+1}', f'ds_write_b64 v12, {pr(e)} offset:{128*b}']
    nw = min(CFG.get('s5_w1', 0), len(WL) - 25)
    E, _ = sprinkle(E, WL[:nw], 20); WL = _ + WL[nw:]
    P += E
    P += ['s_waitcnt lgkmcnt(0)', 's_barrier'] + ST('t1')
    PB = 112
    P += [f'ds_read_b64 {pr(PB+2*k)}, v10 offset:{768*k}' for k in range(8)]
    for k in range(4):
        P += [f's_sub_u32 s{32+k}, s{r1}, {4*k*EST_STRIDE}', f's_cmp_ge_i32 s{r2_}, {4*k}', f's_cselect_b32 s{32+k}, s{32+k}, {OOB}', f's_cselect_b32 s{36+k}, 0xff, 0']
    P += [f's_mov_b32 s{t3}, 0xff']
    for k in range(1, 8): P += cma(PB + 2*k if k < 7 else 128, A16S, PB + 2*k - 2, PB + 2*k)
    P += [f'v_bfi_b32 v128, s{t3}, v13, v128', f'v_bfi_b32 v129, s{t3}, v224, v129',
          's_mov_b32 exec_hi, 0xffff', f'buffer_store_dwordx2 v[128:129], v223, {q(WS)}, s{r0} offen sc1', 's_mov_b32 exec_hi, -1']
    P += ST('pub')
    PD = 228
    ld = [('s_mov_b32 exec_hi, 0xffff',) + tuple(f'buffer_load_dwordx4 {q4(PD+4*k)}, v14, {q(WS)}, s{32+k} offen sc1' for k in range(4)) + ('s_mov_b32 exec_hi, -1',)]
    acc = []
    for k in range(4):
        a = PD + 4 * k
        acc += [f'v_xor_b32 v130, v13, v{a}', f'v_bitop3_b32 v130, v130, v{a+1}, v224 bitop3:0xf6', f'v_bitop3_b32 v130, v130, v{a+2}, v13 bitop3:0xf6', f'v_bitop3_b32 v130, v130, v{a+3}, v224 bitop3:0xf6',
                f'v_and_b32 v131, s{36+k}, v130' if k == 0 else f'v_and_or_b32 v131, v130, s{36+k}, v131']
    pd = lambda k, b: 208 + 6 * k + 2 * b if k < 2 else 132 + 6 * (k - 2) + 2 * b
    E = []
    PFX = lambda b: st(0, b, 1)
    eb = lambda k, b: PB + 6 * (k % 3) + 2 * b
    E += [f'ds_read_b64 {pr(eb(k,b))}, v11 offset:{768*k + 128*b}' for k in range(3) for b in range(3)]
    for b in range(3): E += [f'v_mov_b32 v{PFX(b)}, 0', f'v_mov_b32 v{PFX(b)+1}, 0']
    MK = [('0xffff0000', '-1'), ('0', '-1'), ('0', '0xffff0000'), ('0', '0')]
    for k in range(7):
        lo, hi = MK[k & 3]
        sel = (lambda m: f'-1, {m}') if k < 4 else (lambda m: f'{m}, 0')
        grp = [f's_cmp_eq_u32 s{sWT}, 1', f's_cselect_b32 exec_lo, {sel(lo)}', f's_cselect_b32 exec_hi, {sel(hi)}']
        x = [cma(PFX(b), A16(b), PFX(b), eb(k, b)) for b in range(3)]
        grp += [y[0] for y in x] + [y[1] for y in x] + ['s_mov_b64 exec, -1']
        E.append(tuple(grp))
        if k + 3 < 7: E += [f'ds_read_b64 {pr(eb(k+3,b))}, v11 offset:{768*(k+3) + 128*b}' for b in range(3)]
    NPFX = len(E)
    E += ['v_lshlrev_b32 v142, 4, v9', 'v_cvt_f32_u32 v142, v142', 'v_lshlrev_b32 v143, 7, v8', 'v_cvt_f32_u32 v143, v143']
    for b in range(3):
        E += cpow(ASG(b), RT(b), RT(b) + 1, 'v142', 140) + cpow(A512(b), RT(b), RT(b) + 1, 'v143', 140)
    E += [f's_mul_i32 s{t4}, s{sW}, 15360', 'v_mul_u32_u24 v10, 144, v7', 'v_lshl_add_u32 v10, v8, 5, v10', f'v_add_u32 v10, s{t4}, v10',
          'v_bfe_u32 v12, v0, 2, 2', 'v_lshl_add_u32 v11, v8, 3, v12', 'v_mul_u32_u24 v11, 144, v11', 'v_and_b32 v12, 3, v0', 'v_lshl_add_u32 v11, v12, 3, v11', f'v_add_u32 v11, s{t4}, v11']
    gl = [f's_buffer_load_dword s{24+2*k+h}, {q(WS)}, s{32+k} offset:{384*h + 128*((k+h)%3)} glc' for k in range(4) for h in range(2)]
    tst = []
    for k in range(4):
        tst += [f's_xor_b32 s{24+2*k}, s{24+2*k}, s{sTAG}', f's_xor_b32 s{25+2*k}, s{25+2*k}, s{sTAG}', f's_or_b32 s{24+2*k}, s{24+2*k}, s{25+2*k}', f's_and_b32 s{24+2*k}, s{24+2*k}, s{36+k}']
    tst += ['s_or_b32 s24, s24, s26', 's_or_b32 s28, s28, s30', 's_or_b32 s24, s24, s28', 's_cmp_eq_u32 s24, 0']
    nw = CFG.get('s5_w2', 6)
    sg_ = CFG.get('stg5', 'pre')
    eg = CFG.get('eg', True)
    E1, _ = sprinkle(E[:NPFX], WL[:nw], CFG.get('s5_w2e', 14))
    E2, _ = sprinkle(E[NPFX:], _, CFG.get('s5_w2e', 14)); WL = _ + WL[nw:]
    P += (stage_small(140) if sg_ == 'pre' else []) + E1 + (gl if eg else []) + (stage_small(140) if sg_ == 'mid' else []) + E2 + ST('pl0') + (gate('eg', gl, tst) if eg else []) + ld + [fl_load(0)] + ST('t2')
    P += check('est', ld, acc + ['v_cmp_ne_u32 vcc, 0, v131'], [f's_and_b32 vcc_hi, vcc_hi, 0xffff', 's_cmp_eq_u64 vcc, 0'])
    P += ['s_mov_b32 exec_hi, 0xffff'] + [f'ds_write_b128 v207, {q4(PD+4*k)} offset:{3072*k}' for k in range(4)] + ['s_mov_b32 exec_hi, -1', 's_waitcnt lgkmcnt(0)', 's_barrier']
    P += ST('t3') + [f'ds_read_b64 {pr(pd(k, b))}, v225 offset:{3072*k + 128*b}' for k in (3, 2, 1, 0) for b in range(3)]
    E = []
    for k in (2, 1, 0):
        x = [cma(pd(k, b), A128(b), pd(k+1, b), pd(k, b)) for b in range(3)]
        E += [y[0] for y in x] + [y[1] for y in x]
    Z = 112
    for b in range(3):
        E += [f'v_pk_mul_f32 {pr(Z+2*b)}, {pr(A512(b))}, {pr(pd(0,b))} op_sel:[0,0] op_sel_hi:[0,1]']
    for b in range(3):
        E += [f'v_pk_fma_f32 {pr(Z+2*b)}, {pr(A512(b))}, {pr(pd(0,b))}, {pr(Z+2*b)} {SWP}']
    for sw in ('v_permlane16_swap_b32', 'v_permlane32_swap_b32'):
        E += [f'v_mov_b64 {pr(Z+6+2*b)}, {pr(Z+2*b)}' for b in range(3)]
        E += [f'{sw} v{Z+i}, v{Z+6+i}' for i in range(6)]
        E += [f'v_pk_add_f32 {pr(Z+2*b)}, {pr(Z+2*b)}, {pr(Z+6+2*b)}' for b in range(3)]
    PK, FG = 124, 208
    for b in range(3):
        E += cma(PFX(b), ASG(b), Z + 2*b, PFX(b))
        re, im, a8, ca = st(1, b, 0), st(1, b, 1), A8(b), PFX(b)
        E += [f'v_fma_f32 v{re+1}, v{a8}, v{ca}, v{re}', f'v_fma_f32 v{im+1}, v{a8}, v{ca+1}, v{im}',
              f'v_fma_f32 v{re+1}, -v{a8+1}, v{ca+1}, v{re+1}', f'v_fma_f32 v{im+1}, v{a8+1}, v{ca}, v{im+1}',
              f'v_mov_b32 v{re}, v{ca}', f'v_mov_b32 v{im}, v{ca+1}']
    E += [f'v_mov_b64 {pr(140+2*b-2)}, {pr(A1(b))}' for b in (1, 2)] + ST('z')
    P += E; E = []
    A1x = lambda b: A1(0) if b == 0 else 138 + 2*b
    def stores(b):
        fg = FG + 16 * (b & 1)
        return [I(f'buffer_store_dwordx4 {q4(fg+4*tb)}, v14, {q(WS)}, s{sHA+b} offen offset:{1024*tb} sc1', tag=f'h{b}') for tb in range(4)]
    for b in range(3):
        for j in range(8):
            s = (st(1, b, 0), st(1, b, 1)) if j == 0 else (U(b, 0, j - 1), U(b, 1, j - 1))
            E += step(b, s[0], s[1], U(b, 0, j), U(b, 1, j), U(b, 0, j), U(b, 1, j), A1x(b))
            if j & 1:
                E += [f'v_cvt_pk_bf16_f32 v{PK+8*part+4*sub+j//2}, v{U(b,part,j-1)+sub}, v{U(b,part,j)+sub}' for part in range(2) for sub in range(2)]
            if j == 3 and b > 0: E += stores(b - 1) + ST(f'hb{b-1}')
        E += [f'ds_write_b128 v10, {q4(PK+8*part+4*sub)} offset:{2304*part + 16*sub}' for part in range(2) for sub in range(2)]
        fg = FG + 16 * (b & 1)
        E += [f'ds_read_b64_tr_b16 {pr(fg+4*tb+2*u)}, v11 offset:{576*u + 32*tb}' for tb in range(4) for u in range(2)]
    k = next(i for i, x in enumerate(E) if isinstance(x, I) and x.tag == 'h0')
    E1, left = sprinkle(E[:k], early[1], CFG.get('early_e', 8))
    P += early[0] + E1 + left + E[k:] + stores(2) + ST('t4')
    return P, WL, [[Wait(f'h{b}'), flag_store(sHF + b)] for b in range(3)]

SYS = 0
CLS = 40960
NS = 12
STAGES = [(0, 0, 2), (0, 2, 4), (0, 4, 7), (1, 0, 7), (0, 7, 12), (1, 7, 12)]
FB = 24
AA, AB, RING = 16, 96, 176
def fl_load(k):
    h, a, b = STAGES[k]; base = FB + 8 * (k & 1)
    return f's_buffer_load_dwordx8 s[{base}:{base+7}], {q(WS)}, s{sFL2 if h else sFL} offset:{4*a} glc'
def fl_check(name, k):
    h, a, b = STAGES[k]; base = FB + 8 * (k & 1)
    pre = [('s_cmp_lg_u32 s3, 0', f's_cselect_b32 s{base+6-a}, s{sTAG}, s{base+6-a}')] if a <= 6 < b else []
    return check_s(f'{name}_a{k}', fl_load(k), list(range(base, base + b - a)), pre)
SETS = {3: (AB, AB + 20), 4: (AB + 40, AB + 60), 5: (AB, AB + 40)}
def mfma_order():
    L = []
    for i in range(4): L += [(0, i, t, j, AA + 20*t + 4*j, i == 0) for t in range(4) for j in range(5)]
    for t in (1, 2, 3, 0): L += [(0, i, t, j, AA + 20*t + 4*j, False) for i in range(4, 7) for j in range(5)]
    for k in (3, 4, 5):
        h, a, b = STAGES[k]
        for p in range(4): L += [(h, i, 3 - p, j, SETS[k][p & 1] + 4*j, p == 0 and i == a) for j in range(5) for i in range(a, b)]
    return L
PRE = [q4(RING + 4*k) for k in range(8)] + [q4(240 + 4*k, 'a') for k in range(4)]
def a_plan(npre, name):
    M = mfma_order()
    fu = {}; lu = {}; wl = {}
    for g, (h, i, t, j, d, f) in enumerate(M):
        fu.setdefault((h, i, t), g); lu[h, i, t] = g; wl[i, j] = g
    GR = sorted(fu, key=lambda x: fu[x])
    areg = {}; agap = {}
    free = [(q4(RING + 32 + 4*k), -1, CFG.get('v_end', 330)) for k in range(4)] + [(q4(AB + 40 + 4*k), -1, 270) for k in range(10)]
    free += [(q4(20*i + 4*j, 'a'), wl[i, j], 999) for i in range(7) for j in range(5)]
    prev = CFG.get('a_first_' + name, 4 if name == 'ff' else 14) - CFG.get('a_pace', 4)
    for n, gr in enumerate(GR):
        if n < 12: reg, av, lim = PRE[n], -1, (999 if n >= 8 else CFG.get('v_end', 330))
        else:
            cand = sorted((x for x in free if x[2] > lu[gr]), key=lambda x: x[1])
            reg, av, lim = cand[0]; free.remove(cand[0])
        if n >= npre:
            la = CFG.get('la1', 56) if n <= 16 else CFG.get('la2', 75)
            if n == 56: la = CFG.get('la_y', 66)
            g = max(prev + CFG.get('a_pace', 4), fu[gr] - la, av)
            agap[gr] = g; prev = g
            assert g + 16 < fu[gr], (gr, g, fu[gr])
        areg[gr] = reg
        free.append((reg, lu[gr], lim))
    return M, GR, fu, areg, agap
def a_load(areg, gr, n):
    h, i, t = gr
    g = [f's_add_u32 s{t1}, s{sAown if h else sA}, {4096*i}'] if (n >= 16 or t == 0) else []
    if i == 6: g.append(f's_or_b32 s{t1}, s{t1}, s3')
    return g + [f'buffer_load_dwordx4 {areg[gr]}, v{1+t}, {q(WS)}, s{t1} offen sc1']
def p2_first(name, npre):
    M, GR, fu, areg, agap = a_plan(npre, name)
    return (fl_check(name, 0) if name == 'ff' else check_s('sy_a01', fl_load(0), list(range(FB, FB + (4 if npre > 8 else 2))))) + ST('a0'), [tuple(a_load(areg, GR[n], n)) for n in range(npre)]

def phase2(name, npre, WL, flags):
    P = []; A = P.append
    M, GR, fu, areg, agap = a_plan(npre, name)
    NG = 40 * NS
    SK = 224; RAW = 244
    def unpack(dst, src, n): return [x for k in range(n) for x in (f'v_lshlrev_b32 v{dst+2*k}, 16, v{src+k}', f'v_and_b32 v{dst+2*k+1}, 0xffff0000, v{src+k}')]
    nw0 = CFG.get('p2_wpre_' + name, 2 if name == 'ff' else 0)
    P += WL[:nw0]; WL = WL[nw0:]
    k0 = 1 if npre <= 8 else 2
    def x_read(dst, va): return [f'ds_read_b64 {pr(dst+4*j+2)}, v{va} offset:{32*j}' for j in range(5)]
    def x_unp(dst, j): a = dst + 4*j; return [f'v_lshlrev_b32 v{a}, 16, v{a+2}', f'v_and_b32 v{a+1}, 0xffff0000, v{a+2}', f'v_lshlrev_b32 v{a+2}, 16, v{a+3}', f'v_and_b32 v{a+3}, 0xffff0000, v{a+3}']
    sl = [f'buffer_load_dwordx2 v[254:255], v12, {q(WS)}, s{sSTO} offen sc1']
    EN = ['v_and_b32 v12, 15, v0', 'v_lshrrev_b32 v11, 4, v0', 'v_lshlrev_b32 v11, 3, v11', f's_mul_i32 s{r0}, s{sW}, 3072', f's_add_u32 s{r0}, s{r0}, {XL}', f'v_add_u32 v8, s{r0}, v11',
          'v_mul_u32_u24 v6, 160, v12', 'v_add_u32 v5, v6, v8', f's_sub_u32 s{r1}, s{sW}, 1', f's_and_b32 s{r1}, s{r1}, 3', f's_mul_i32 s{r0}, s{r1}, 3072', f's_add_u32 s{r0}, s{r0}, {XL}',
          f'v_add3_u32 v6, v6, v11, s{r0}', 'v_lshlrev_b32 v12, 3, v12', f'v_add_u32 v254, s{r0}, v12', 'ds_read_b64 v[254:255], v254 offset:2880'] + x_read(SK, 6)
    EN += [f'ds_read_b64 {pr(AB+4*j+2)}, v8 offset:{2720 + 32*j}' for j in range(5)] + [f'ds_read_b64 {pr(RAW+2*j)}, v8 offset:{2560 + 32*j}' for j in range(5)]
    P += ([fl_load(k0)] + flat(flags[0]) + EN if name == 'sy' else EN + [fl_load(k0)] + flat(flags[0])) + ST('a1')
    flags = flags[1:]
    G = Gaps3(2, 2)
    last_of = {}
    for g, (h, i, t, j, d, first) in enumerate(M):
        c = q4(d) if (not first or (h, i) == (1, 0)) else (q4(SK + 4*j) if (h, i) == (1, 7) else '0')
        G.add(f'v_mfma_f32_16x16x32_bf16 {q4(d)}, {q4(20*i+4*j, "a")}, {areg[h, i, t]}, {c}')
        if g % 20 == 0: G.fixed(g, ST(f's{g//20}'))
        last_of[h, i >= 7, t, j] = g
    for n, gr in enumerate(GR):
        h, i, t = gr
        if n < 28:
            if fu[gr] > 0: G.need(fu[gr] - 1, Need(areg[gr] + ' ' + q4(20*i+16, 'a')))
        elif i in (0, 7): G.need(fu[gr] - 1, Need(areg[h, 6 if i == 0 else 11, t] + ' ' + q4(236 if i == 7 else 0, 'a')))
    pg = -1
    for n, gr in enumerate(GR):
        if gr not in agap: continue
        g = agap[gr]; L = a_load(areg, gr, n)
        if len(L) == 3: G.fixed(g - 1, L[:2], 'post')
        elif len(L) == 2: G.scalar_before(g, L[0], pg)
        G.fixed(g, L[-1:]); pg = g
    ph = 0; win = {}
    for k in (3, 4, 5):
        h, a, b = STAGES[k]; n = b - a
        tid = str(k) in CFG.get('tid', '')
        for p in range(3):
            for j in range(5):
                e = last_of[h, a >= 7, 3 - p, j]; off = 20480 * (ph & 1) + 1024 * j
                src = SETS[k][p & 1] + 4*j; dst = SETS[k][(p + 1) & 1] + 4*j
                if tid:
                    W = [I(f'ds_write_addtid_b32 v{src+r} offset:{off + 256*r}', tag=f'sw{ph}{j}') for r in range(4)]
                    R = [f'ds_read2st64_b32 {pr(dst+2*r)}, v6 offset0:{off//256 + 2*r} offset1:{off//256 + 2*r + 1}' for r in range(2)]
                else:
                    W = [I(f'ds_write_b128 v11, {q4(src)} offset:{off}', tag=f'sw{ph}{j}')]
                    R = [f'ds_read_b128 {q4(dst)}, v7 offset:{off}']
                gw, left = G.place(W, e + CFG.get('sy_w', 4)); assert not left
                gb = gw + CFG.get('sy_b', 3 if tid else 4)
                if CFG.get('bar_split', True):
                    gb += 1
                    while G.g[gb]['mem'] or G.g[gb]['used'] > 0 or G.g[gb]['fs'] or G.g[gb-1]['first']: gb += 1
                    G.need(gb - 1, Wait(f'sw{ph}{j}')); G.g[gb]['first'].append('s_barrier'); G.g[gb]['fs'] = True; G.g[gb]['used'] += 1; G.g[gb]['nomem'] = True
                else:
                    while G.g[gb]['used'] > 0: gb += 1
                    G.need(gb, Wait(f'sw{ph}{j}')); G.fixed(gb, ['s_barrier'], 'pre'); G.g[gb]['used'] = 2
                gr_, left = G.place(R, gb + 1); assert not left
                use = e + 1 + 4 * n
                assert gr_ + 4 < use, (k, p, j, gr_, use)
                G.need(min(use - 1, gr_ + 7) if (p, j) == (2, 4) else use - 1, Need(q4(dst)))
                if (p, j) == (2, 4): win[k] = [gr_ + 8]
                if (p, j) == (0, 0) and k > 3: win[k-1].append(gb - 2)
            ph += 1
    first_of = lambda k: min(g for (h, i, t), g in agap.items() if h == STAGES[k][0] and STAGES[k][1] <= i < STAGES[k][2])
    for fl, gf in zip(flags, CFG.get('f2_gaps', (30, 58))):
        gf, left = G.place(fl, gf, budget=3); assert not left and gf < first_of(4) - 20
    pchk = -1
    for k in range(k0, 4):
        gl = first_of(k)
        ck = fl_check(name, k)
        g0 = max(0, gl - 3 - int(1.6 * len(ck)))
        assert g0 > pchk, (k, g0, pchk)
        if k > k0: G.fixed(max(pchk + 1, g0 - CFG.get('fl_lead', 28)), [fl_load(k)])
        pchk, left = G.place(ck, g0, budget=2); assert not left and pchk < gl, (k, pchk, gl)
        if k == k0: g_k0 = pchk
    gl = first_of(4)
    g_yfl = gl - 8 - CFG.get('yfl_lead', 34)
    if name == 'sy' or CFG.get('yf_vec'):
        g, left = G.place([f'buffer_load_dword v9, v9, {q(WS)}, 0 offen offset:28 sc1'], g_yfl); assert not left
        G.need(gl - 7, Need('v9')); g, left = G.place([f'v_cmp_ne_u32 vcc, s{sTAG}, v9'], gl - 7); assert not left
        assert g + 1 < gl
        G.fixed(gl - 1, [f's_cbranch_vccnz L_spin_{name}_yf', f'L_ret_{name}_yf:'], 'post')
    else:
        G.fixed(gl - 1, [f's_branch L_spin_{name}_yf', f'L_ret_{name}_yf:'], 'post')
    ch, last_ = chain(list(range(FB, FB + 5)) + list(range(FB + 8, FB + 13)))
    SPINS.append([f'L_spin_{name}_yf:', f's_mov_b32 s{t5}, 0', f'L_spinl_{name}_yf:', fl_load(4), fl_load(5), 's_waitcnt lgkmcnt(0)', f's_add_u32 s{t5}, s{t5}, 1', f's_cmp_gt_u32 s{t5}, {SPIN_MAX*2}',
                  f's_cbranch_scc1 L_ret_{name}_yf'] + flat(ch) + [last_, f's_cbranch_scc0 L_spinl_{name}_yf', f's_branch L_ret_{name}_yf'])
    gi = CFG.get('p2_wfirst', 22)
    for m, w in enumerate(WL):
        k = 60 - len(WL) + m
        gi, left = G.place([w], gi, budget=2); assert not left
        assert gi + 40 < (280 if k >= 35 else fu[0, k // 5, 0 if k < 20 else 1]), ('weight load too late', k, gi)
        gi += max(2, min(CFG.get('p2_wstep', 14), 200 // len(WL)))
    S = [f's_lshl_b32 s{r0}, s{r1}, 7', f's_andn2_b32 s{sSTO}, s{sSTO}, 0x180', f's_add_u32 s{sSTO}, s{sSTO}, s{r0}',
         'v_mul_u32_u24 v10, 160, v12', f'v_add3_u32 v10, v10, v11, s{sOO}', 'v_lshlrev_b32 v10, 1, v10',
         f's_mul_i32 s{r0}, s{r1}, 5120', f'v_add_u32 v7, s{r0}, v14', f'v_lshl_add_u32 v6, v0, 2, s{r0}', f's_mul_i32 m0, s{sW}, 5120', 'v_add_u32 v11, m0, v14',
         'v_and_b32 v9, 7, v0', 'v_min_u32 v9, 4, v9', f'v_lshl_add_u32 v9, v9, 2, s{sFL}', 'v_and_b32 v8, 8, v0', 'v_lshlrev_b32 v8, 6, v8', 'v_xor_b32 v9, v9, v8',
         f's_mul_i32 s{r0}, s{sW}, 15360', f'v_add_u32 v8, s{r0}, v14',
         f's_mov_b32 s{r2_}, 0x07060100', f's_add_u32 s{r1}, s{sXI}, 3072', f's_add_u32 s{r4}, s{sXO}, 3072', f's_mov_b32 s{t2}, {fbits(-LOG2E)}', f's_mov_b32 s{t3}, {fbits(-LOG2E)}']
    nxt, left = G.place(S, 0); assert not left and nxt < g_yfl
    nxt = max(nxt, g_k0 + 1)
    g_b0, left = G.place(['s_barrier'], CFG.get('bar0', 86)); assert not left
    g = g_b0 + 1.0; gcb = {}
    for t in range(1, 4):
        for j in range(5):
            g = max(g, last_of[0, False, t, j] + 5)
            nx2, left = G.place([I(f'ds_write_b128 v8, {q4(AA + 20*t + 4*j)} offset:{CLS + (t-1)*5120 + 1024*j}', tag=f'cw{t}')], int(g)); assert not left
            g = max(g, nx2) + CFG.get('red_step', 2.0)
        if t > 1:
            gb = nx2 + 5
            while G.g[gb]['used'] > 0: gb += 1
            G.need(gb, Wait(f'cw{t}')); G.fixed(gb, ['s_barrier'], 'pre'); G.g[gb]['used'] = 2; gcb[t] = gb
    gcb[1] = gcb[2]; g_b1 = gcb[3]
    S = check(f'{name}_st', sl, [], [f'v_cmp_ne_u32 vcc, s{sTAG}, v255'])
    S += ['v_and_b32 v255, 0xffff0000, v254', 'v_rcp_f32 v255, v255', 'v_lshlrev_b32 v254, 16, v254', 'v_mul_f32 v254, v254, v255']
    for j in range(5): S += x_unp(SK, j) + [f'v_fma_f32 v{SK+4*j+r}, v{SK+4*j+r}, v255, v254' for r in range(4)]
    for k in range(20): S += [f'v_and_b32 v12, 0xffff0000, v{RAW+k//2}' if k & 1 else f'v_lshlrev_b32 v12, 16, v{RAW+k//2}', f'v_mul_f32 v{SK+k}, v{SK+k}, v12']
    g_sk, left = G.place(sum((x_unp(AB, j) for j in range(5)), []) + S, nxt); assert not left and g_sk < 134, g_sk
    g2 = g_sk; gr = {}
    for t in range(1, 4):
        g2, left = G.place([f's_sub_u32 s{r0}, s{sW}, {t}', f's_and_b32 s{r0}, s{r0}, 3', f's_mul_i32 s{r0}, s{r0}, 15360', f'v_add_u32 v{252+t}, s{r0}, v14'], g2); assert not left
    for t in range(1, 4):
        g2, left = G.place([f'ds_read_b128 {q4(AA + 20*t + 4*j)}, v{252+t} offset:{CLS + (t-1)*5120 + 1024*j}' for j in range(5)], max(g2, gcb[t] + 1)); assert not left
        gr[t] = g2
    def pack(a):
        L = []
        for g in range(3):
            gl = [f'v_cvt_pk_bf16_f32 v{AA+4*g+k}, v{a+7*g+2*k}, v{a+7*g+2*k+1}' for k in range(3)]
            if g < 2: gl += [f'v_cvt_pk_bf16_f32 v{AA+4*g+3}, v{a+7*g+6}, v{a+7*g+6}', f'v_perm_b32 v{AA+4*g+3}, v{AA+4*g+3}, v13, s{r2_}']
            else: gl += [f'v_mov_b32 v{AA+11}, v13']
            L.append(gl)
        return L
    st = lambda g, so: f'buffer_store_dwordx4 {q4(AA+4*g)}, v14, {q(WS)}, s{so} offen offset:{1024*g} sc1'
    g, left = G.place([Need(q4(AA + 56))] + [f'v_add_f32 v{AA+20+k}, v{AA+20+k}, v{AA+40+k}' for k in range(20)], gr[2] + 4); assert not left
    g, left = G.place([f'v_add_f32 v{AA+k}, v{AA+k}, v{AA+20+k}' for k in range(20)], max(g, 144)); assert not left
    g, left = G.place([Need(q4(AA + 76))] + [f'v_add_f32 v{AA+k}, v{AA+k}, v{AA+60+k}' for k in range(20)], max(g, gr[3] + 4)); assert not left
    g, left = G.place(sum(pack(AA), []), g); assert not left
    g_f, left = G.place([st(k, sXO) for k in range(3)], g + 1, step=CFG.get('x_step', 12)); assert not left
    pk = pack(SETS[4][1]); g_y = g_f
    for k, j in enumerate((1, 3, 4)):
        g_y, left = G.place(pk[k] + [st(k, r4)], max(g_y, last_of[0, True, 0, j] + 4)); assert not left
    FT, XU, T, YU = SETS[3][1], AA + 20, AA + 40, AA + 60
    def xch(b, so): return [f'buffer_load_dwordx4 {q4(b+4*g)}, v14, {q(WS)}, s{so} offen offset:{1024*g} sc1' for g in range(3)]
    def recv_check(nm, b, ld): return check(f'{name}_{nm}', ld, tagacc(8, [b + 3, b + 7, b + 11]) + ['v_and_b32 v8, 0xffff, v8'], ['v_cmp_ne_u32 vcc, 0, v8'])
    def run(d, k, b=RAW):
        g, e = divmod(k, 7); r = b + 4 * g + e // 2
        return f'v_and_b32 v{d}, 0xffff0000, v{r}' if (e & 1 or e == 6) else f'v_lshlrev_b32 v{d}, 16, v{r}'
    for k, nm, off, msk in ((3, 'gf', 12, True), (4, 'gy', 6144, False)):
        if nm[1] not in CFG.get('xg', 'fy'): continue
        l_ = I(f's_buffer_load_dword s24, {q(WS)}, s{sXI} offset:{off} glc', tag='async')
        tst = ([f's_xor_b32 s24, s24, s{sTAG}', 's_and_b32 s24, s24, 0xffff', 's_cmp_eq_u32 s24, 0'] if msk else [f's_cmp_eq_u32 s24, s{sTAG}'])
        G.fixed(win[k][0], [l_], 'post'); G.need(win[k][1], 's_waitcnt lgkmcnt(0)'); G.fixed(win[k][1], flat(gate(f'{name}_{nm}', [l_], tst)), 'post')
    g_hb, left = G.place([f's_add_u32 s{r3}, s{sXO}, 6144', flag_store(r3)], CFG.get('hb_gap', 326), budget=3); assert not left
    ly = xch(RAW, r1)
    g_ly, left = G.place(ly, win[4][0] + g_y - g_hb + CFG.get('y_ld', 12), step=2); assert not left
    lf = xch(YU, sXI)
    g_lf, left = G.place(lf, max(win[3][1] + 1, win[3][0] + 2 * CFG.get('x_step', 12) + CFG.get('f_ld', 10)), step=3); assert not left
    g, left = G.place(x_read(XU, 5) + [Need(pr(XU + 18))], max(g, g_sk)); assert not left and g < win[3][0], g
    g, left = G.place(sum((x_unp(XU, j) for j in range(5)), []), g); assert not left
    g_fr, left = G.place(recv_check('xf', YU, lf) + [run(T + k, k, YU) for k in range(20)], max(g, g_lf + 28)); assert not left
    g_fu = g_fr
    for j in range(5):
        g_fr, left = G.place([f'v_add_f32 v{FT+k}, v{FT+k}, v{T+k}' for k in range(4*j, 4*j + 4)], max(g_fr, last_of[1, False, 0, j] + 5)); assert not left
    g = g_fr; done = 0; vleft = []
    while done < 5 and g < NG - CFG.get('silu_stop', 10):
        a = T + 4*done; f = FT + 4*done
        S = [f'v_mul_f32 v{a+r}, s{t2}, v{f+r}' for r in range(4)] + [f'v_exp_f32 v{a+r}, v{a+r}' for r in range(4)] + [f'v_add_f32 v{a+r}, 1.0, v{a+r}' for r in range(4)] + \
            [f'v_rcp_f32 v{a+r}, v{a+r}' for r in range(4)] + [f'v_mul_f32 v{a+r}, v{a+r}, v{f+r}' for r in range(4)]
        g, vleft = G.place(S, g); done += 1
    def silu(j):
        f = FT + 4*j; t = T + 4*j
        return [f'v_pk_mul_f32 {pr(t+2*h)}, {pr(f+2*h)}, s[{t2}:{t3}]' for h in range(2)] + [f'v_exp_f32 v{t+r}, v{t+r}' for r in range(4)] + \
               [f'v_pk_add_f32 {pr(t+2*h)}, {pr(t+2*h)}, 1.0 op_sel_hi:[1,0]' for h in range(2)] + [f'v_rcp_f32 v{t+r}, v{t+r}' for r in range(4)] + \
               [f'v_pk_mul_f32 {pr(t+2*h)}, {pr(t+2*h)}, {pr(f+2*h)}' for h in range(2)]
    print(name, 'w left', len(WL), 'bars', g_b0, g_b1, 'win', win, 'hb', g_hb, 'skip', g_sk, 'last a load', max(agap.values()), 'f sent', g_f, 'f recv', g_lf, g_fu, g_fr, 'y sent', g_y, 'y ld', g_ly, 'silu', done, g, 'left', len(vleft), file=sys.stderr)
    body = []
    for x in G.emit():
        if not isinstance(x, PSEUDO):
            y = mk(x); d = CFG.get('drop', '')
            if 'A' in d and y.op == 'buffer_load_dwordx4' and f's{t1} offen' in y.text: continue
            if 'W' in d and y.op == 'buffer_load_dwordx4' and (f's{t0} offen' in y.text or f's{sWB} offen' in y.text): continue
            if 'L' in d and (y.kind == 'ds' or y.op == 's_barrier'): continue
            if 'B' in d and y.op == 's_barrier': continue
            if 'V' in d and y.kind == 'valu' and not y.op.startswith('v_cmp') and min(r[1] for r in y.defs) >= 16: continue
            if 'X' in d and ((y.kind == 'vmem' and y.wide_store) or 'spin_' + name + '_xf' in y.text): continue
            if 'F' in d and y.op.startswith('s_cbranch') and ('_a' in y.text or '_yf' in y.text): continue
            if 'S' in d and y.kind == 'smem' and 'glc' in y.text: continue
        body.append(x)
    P += body + ST('p2end') + ST('xw') + (recv_check('xy', RAW, ly) if not CFG.get('drop') else []) + ST('xok')
    Y = SETS[5][1]
    for j in range(5):
        if j == done - 1: P += vleft
        if j >= done: P += silu(j)
        P += [run(YU + 4*j + r, 4*j + r) for r in range(4)]
        P += [f'v_pk_add_f32 {pr(Y+4*j+2*h)}, {pr(Y+4*j+2*h)}, {pr(YU+4*j+2*h)}' for h in range(2)]
        P += [f'v_pk_fma_f32 {pr(T+4*j+2*h)}, {pr(T+4*j+2*h)}, {pr(Y+4*j+2*h)}, {pr(XU+4*j+2*h)}' for h in range(2)]
        A(f'global_store_dwordx4 v10, {q4(T+4*j)}, {sp(pOUT)} offset:{64*j} sc1')
    if name == 'sy':
        P += [f's_lshl_b32 s{t4}, s{sW}, 8', f's_or_b32 s{t4}, s{t4}, s2', f's_cmp_eq_u32 s{t4}, 191', f's_mov_b32 s{t4}, {EPO}', f's_cselect_b32 s{t4}, s{t4}, {OOB}', flag_store(t4)]
    P += ST('fin') + ST_dump() + ['s_endpgm']
    return P

def with_state(segs):
    vm, lg = [], []
    out = []
    for s in segs:
        out.append(add_waits(flat(s), vm, lg))
    return out, vm, lg

def diag(seq):
    out = []
    for x in seq:
        if isinstance(x, I) and ((x.tag == 'rl' and CFG.get('no_rl_ld')) or (x.tag == 'rls' and CFG.get('no_rl_st')) or (x.tag == 'ext' and CFG.get('no_ext'))): continue
        if isinstance(x, str) and CFG.get('no_ext') and ('L_spin_ext' in x and 'branch' in x): continue
        out.append(x)
    return out

def build():
    del SPINS[:]; del NOPSTATS[:]
    ent, la, lb = entry()
    fp = ffn_prologue(la, lb); fm, fWL = ffn_main(None)
    sp_ = s5_prologue(la, lb); sm, sWL_, sfl = s5_main(p2_first('sy', CFG.get('npre_s', 8)))
    vm0, lg0 = [], []
    ent = add_waits(flat(ent), vm0, lg0)
    vm, lg = list(vm0), list(lg0)
    a_fp = add_waits(flat(fp), vm, lg)
    tl, wl, fl = ffn_tail(fWL, [fl_load(0)])
    a_fm = add_waits(diag(flat(fm)) + flat(tl + sum(p2_first('ff', 8), []) + phase2('ff', 8, wl, fl)), vm, lg)
    vm, lg = list(vm0), list(lg0)
    a_sp = add_waits(flat(sp_), vm, lg)
    a_sm = add_waits(diag(flat(sm)) + flat(phase2('sy', CFG.get('npre_s', 8), sWL_, sfl)), vm, lg)
    code = add_nops([mk(x) for x in ent], NOPSTATS) + add_nops(a_fp, NOPSTATS) + add_nops(a_sp, NOPSTATS) + add_nops(a_fm, NOPSTATS) + add_nops(a_sm, NOPSTATS)
    code.append(mk('L_spins:'))
    for blk in SPINS: code += add_nops([mk('s_nop 4')] * 0 + [mk(x) for x in blk])
    code.append(mk('L_end:'))
    pend = None
    for x in code:
        if ('vcc', 0) in x.uses or x.op.startswith('s_cbranch_vcc'): pend = None
        if ('vcc', 0) in x.defs:
            assert pend is None or CFG.get('drop'), (pend.text, x.text)
            pend = x
    if CFG.get('align', True):
        code, a, b = align_runs(code, CFG.get('minrun', 6)); print('aligned', a, b, file=sys.stderr)
    return kg.single(render(code), 256, 256, 163840, 512, accum=256)

if __name__ == '__main__':
    out = sys.argv[1] if len(sys.argv) > 1 else 'v2.s'
    for kv in sys.argv[2:]:
        k, v = kv.split('='); CFG[k] = eval(v)
    open(out, 'w').write(build())
    from collections import Counter
    print('nops inserted:', len(NOPSTATS), 'states', sum(p for p, _ in NOPSTATS), Counter(t.split()[0] for p, t in NOPSTATS).most_common(8), file=sys.stderr)
```

```python
import sys, re, kg
from asmlib import *
def wrap(src, out, k, use_max=True, sel=None):
    s = open(src).read()
    body = s[s.index(kg.KN + ':\n') + len(kg.KN) + 2: s.index('.section .rodata')]
    body = body.rsplit('s_endpgm', 1)[0]
    P = ['s_load_dwordx2 s[8:9], s[0:1], 128', 's_mov_b32 s10, 0x2000000', 's_mov_b32 s11, 0x20000', 's_cmp_lg_u32 s2, 0', 's_cbranch_scc1 L_fe', 's_waitcnt lgkmcnt(0)',
         'v_lshlrev_b32 v1, 11, v0', 's_mov_b32 s12, 0x10A0000']
    for i in range(4):
        P += [f'buffer_load_dword v{4+i}, v1, s[8:11], s12 offen offset:{512*i}', f'buffer_load_dword v{8+i}, v1, s[8:11], s12 offen offset:{512*i+4*k}']
    P += ['s_waitcnt vmcnt(0)', 'v_min3_u32 v4, v4, v5, v6', 'v_min_u32 v4, v4, v7']
    op = 'max' if use_max else 'min'
    P += [f'v_{op}3_u32 v8, v8, v9, v10', f'v_{op}_u32 v8, v8, v11']
    P += ['s_mov_b32 s20, -1', f's_mov_b32 s21, {0 if use_max else -1}']
    for l in range(64):
        P += [f'v_readlane_b32 s22, v4, {l}', f'v_readlane_b32 s23, v8, {l}', 's_nop 0', 's_min_u32 s20, s20, s22', f's_{op}_u32 s21, s21, s23']
    P += ['s_sub_u32 s21, s21, s20' if k >= 0 else 's_mov_b32 s21, 0', 's_add_u32 s21, s21, 10000', 's_mov_b32 s24, 0',
          'L_fl:', 's_memrealtime s[26:27]', 's_waitcnt lgkmcnt(0)', 's_sub_u32 s25, s26, s20', 's_add_u32 s24, s24, 1', 's_cmp_gt_u32 s24, 100000', 's_cbranch_scc1 L_fe',
          's_cmp_lt_u32 s25, s21', 's_cbranch_scc1 L_fl', 'L_fe:']
    P = [x.replace('offset:-4','offset:0') for x in P]
    ks = [dict(name='main_kernel', body=body, grid=256, block=256, lds=163840, vgpr=512, accum=256),
          dict(name='probe_kernel', body=render(add_nops([mk(x) for x in P])), grid=1, block=64, lds=0, vgpr=16)]
    open(out, 'w').write(kg.multi(ks))
src = sys.argv[1]
wrap(src, 'probe/r0.s', 0, use_max=False)
wrap(src, 'probe/r1.s', 0)
wrap(src, 'probe/r2.s', 1)
wrap(src, 'probe/r3.s', 3)
wrap(src, 'probe/r4.s', 5)
wrap(src, 'probe/r5.s', 1, use_max=False)
```

```python
import sys, struct, math
from asmlib import *
import kg

def fbits(x): return '0x%08x' % struct.unpack('<I', struct.pack('<f', x))[0]

K_X, K_LRE, K_LIM, K_BRE, K_BIM, K_CRE, K_CIM, K_LDT, K_DSK, K_W1, K_B1, K_W2, K_B2, K_OUT, K_DBG, K_WS = \
    0, 8, 16, 24, 32, 40, 48, 56, 64, 80, 88, 96, 104, 112, 120, 128
ACT = 0
W2F = 0xC00000
STAT = 0x1000000
CS = 0x1010000
EST = 0x1040000; EST_STRIDE = 768 * 8
EPO = 78 * 4096
PF = 0x10C0000
PFY = 0x10000
AF = 0x1780000
def afm(): return {'pack': (6, 2), 'line': (7, 2), 'full': (11, 7)}[CFG.get('af', 'pack')]
CS5 = 0x1030000
STAMP_OFF = 0x10A0000
XCH = 0x1100000
WS_USED = 0x1B00000
OOB = 0x40000000
PFS = 3840
LOG2E = 1.4426950408889634
SPIN_MAX = 20000

CFG = dict(stamps=False, w_every=45, eg=False, npre_s=8, s5_w1=6, s5_w2=10, yf_vec=1, la2=60, la_y=56, swap=False, wrot=0, stg5='poll', est='direct', thin5=False, warm=False, rate5=12, x_step=6, f_ld=6, f_wait=22, af='line', pf_rep=4, f0_at=8, f1_at=12)

X, WS = 4, 8
pOUT, pDSK, pB2 = 12, 14, 16
sHA, sHF = 18, 21
W1, W2, B1 = 24, 28, 72
BRE, BIM, CRE, CIM, LRE, LIM, LDT = 24, 28, 32, 36, 40, 44, 48
TSRD = 72
def q(s): return f's[{s}:{s+3}]'
def sp(s): return f's[{s}:{s+1}]'
sA, sAown, sFL, sFL2, sXO, sXI, sOO, sC160, sSTO, sPFf, sPFy, sPUB = range(40, 52)
sW, sRB, sCG, sTAG, sC1, sC2, sC3, sWL, sWK, sWT, sWF, sWB, r0, r1 = range(52, 66)
t0, t1, t2, t3, t4, t5 = range(66, 72)
r2_, r3, r4, r5, sU0, sU1 = range(72, 78)
NSTAMP = 12
STSETS = {
 'A': ['entry','bar','loop','t1','t3','t4','s1','s7','s12','s19','p2end','end'],
 'S': ['entry','loop','t4','p2end','fin','end','te','s4','bar','loop#','s4#','fin#'],
 'H': ['entry','loop','t4','s4','s9','s12','s14','s16','s18','s21','p2end','fin'],
 'K': ['entry','bar','b4','loop','s4','fin','entry#','bar#','b4#','loop#','s4#','fin#'],
 'B': ['entry','pro','d0','tag','stats','bar','b0','b1','b2','b3','b4','end'],
 'F': ['entry','bar','b0','b1','b2','b3','b4','b5','b6','b7','b8','loop'],
 'G': ['entry','loop','t1','pub','pl0','t2','t3','z','a0','hb0','hb1','t4'],
 'C': ['entry','loop','e0','e1','t1','t4','a0','a1','s0','s1','s2','s3'],
 'D': ['entry','s3','s4','s5','s6','s7','s8','s9','s10','s11','s12','s13'],
 'E': ['entry','s13','s15','s17','s19','s21','s23','p2end','xw','xok','fin','end'],
}
def ST(name):
    if not CFG['stamps']: return []
    L = STSETS[CFG['stamps']]
    out = []
    for nm, op in ((name, 's_memrealtime'), (name + '#', 's_memtime')):
        if nm in L: k = L.index(nm); out.append(f'{op} s[{78+2*k}:{79+2*k}]')
    return out
def ST_dump():
    if not CFG['stamps']: return []
    L = ['s_waitcnt vmcnt(0)'] + ST('end') + ['s_waitcnt lgkmcnt(0)', f's_lshl_b32 s{t0}, s2, 2', f's_add_u32 s{t0}, s{t0}, s{sW}', f's_lshl_b32 s{t0}, s{t0}, 7',
         f's_add_u32 s{t0}, s{t0}, {STAMP_OFF}', 'v_mov_b32 v1, 0', 's_mov_b64 exec, 1']
    for k in range(NSTAMP):
        L += [f'v_mov_b32 v2, s{78+2*k}', f'buffer_store_dword v2, v1, {q(WS)}, s{t0} offen offset:{4*k}']
    return L

def srd(s, koff, size):
    return [f's_load_dwordx2 s[{s}:{s+1}], s[0:1], {koff}'], [f's_mov_b32 s{s+2}, {size}', f's_mov_b32 s{s+3}, 0x20000']
def srds(lst):
    a, b = [], []
    for s, k, z in lst:
        x, y = srd(s, k, z); a += x; b += y
    return a + b
def pr(r): return f'v[{r}:{r+1}]'
def q4(r, f='v'): return f'{f}[{r}:{r+3}]'

NOPSTATS = []
def fin(P): return finalize(flat(P), NOPSTATS)

SPINS = []
def check(name, loads, accum, cond):
    br_bad, br_ok = ('s_cbranch_vccnz', 's_cbranch_vccz') if cond[-1].startswith('v_cmp') else ('s_cbranch_scc0', 's_cbranch_scc1')
    blk = [f'L_spin_{name}:', f's_mov_b32 s{t5}, 0', f'L_spinl_{name}:', 's_sleep 1'] + [mk(x).text for x in flat(loads)] + ['s_waitcnt vmcnt(0)'] + flat(accum) + \
          [f's_add_u32 s{t5}, s{t5}, 1', f's_cmp_gt_u32 s{t5}, {SPIN_MAX}', f's_cbranch_scc1 L_ret_{name}'] + cond + [f'{br_bad} L_spinl_{name}', f's_branch L_ret_{name}']
    SPINS.append(blk)
    return list(accum) + [tuple(cond + [f'{br_bad} L_spin_{name}', f'L_ret_{name}:'])]

def chain(regs):
    L = []; cur = regs[0]
    for r in regs[1:]:
        L.append((f's_cmp_eq_u32 s{cur}, s{sTAG}', f's_cselect_b32 s{regs[0]}, s{r}, s{cur}')); cur = regs[0]
    return L, f's_cmp_eq_u32 s{cur}, s{sTAG}'
def check_s(name, load, regs, pre=[], sleep=0):
    ch, last = chain(regs)
    blk = [f'L_spin_{name}:', f's_mov_b32 s{t5}, 0', f'L_spinl_{name}:'] + ([f's_sleep {sleep}'] if sleep else []) + [mk(x).text for x in flat([load])] + ['s_waitcnt lgkmcnt(0)',
           f's_add_u32 s{t5}, s{t5}, 1', f's_cmp_gt_u32 s{t5}, {SPIN_MAX*2}', f's_cbranch_scc1 L_ret_{name}'] + flat(pre) + flat(ch) + [last, f's_cbranch_scc0 L_spinl_{name}', f's_branch L_ret_{name}']
    SPINS.append(blk)
    return list(pre) + ch + [(last, f's_cbranch_scc0 L_spin_{name}', f'L_ret_{name}:')]

def gate(name, loads, test):
    SPINS.append([f'L_spin_{name}:', f's_mov_b32 s{t5}, 0', f'L_spinl_{name}:'] + [mk(x).text for x in loads] + ['s_waitcnt lgkmcnt(0)', f's_add_u32 s{t5}, s{t5}, 1',
                  f's_cmp_gt_u32 s{t5}, {SPIN_MAX*2}', f's_cbranch_scc1 L_ret_{name}'] + flat(test) + [f's_cbranch_scc0 L_spinl_{name}', f's_branch L_ret_{name}'])
    return list(test[:-1]) + [(test[-1], f's_cbranch_scc0 L_spin_{name}', f'L_ret_{name}:')]

def tagacc(acc, regs, exp=None):
    L = []
    for i, r in enumerate(regs):
        e = f's{sTAG}' if exp is None else f'v{exp[i]}'
        if i == 0: L.append(f'v_xor_b32 v{acc}, {e}, v{r}')
        else: L.append(f'v_bitop3_b32 v{acc}, v{acc}, v{r}, {e} bitop3:0xf6')
    return L

def dpp_row_sum(v):
    return [f'v_add_f32_dpp v{v}, v{v}, v{v} row_ror:{n} row_mask:0xf bank_mask:0xf' for n in (8, 4, 2, 1)]

VTK, VST = 254, 240
def entry():
    P = ['L_base:'] + ST('entry') + [f's_getpc_b64 s[{t0}:{t1}]', 'L_pc:'] + [f's_load_dwordx2 {sp(p)}, s[0:1], {k}' for p, k in ((X, K_X), (WS, K_WS), (pDSK, K_DSK))] + [
        's_cmp_ge_u32 s2, 256', 's_cbranch_scc1 L_end',
        f's_lshr_b32 s{t3}, s2, 3', 'v_lshrrev_b32 v11, 4, v0', f'v_lshl_add_u32 v11, s{t3}, 4, v11', 'v_lshlrev_b32 v11, 7, v11', 'v_min_u32 v11, (L_end-L_pc), v11',
        f'global_load_dword v253, v11, s[{t0}:{t1}]',
        f's_and_b32 s{t4}, s2, 1', f's_lshl_b32 s{t4}, s{t4}, 3', f's_and_b32 s{t5}, s{t3}, 7', f's_add_u32 s{sRB}, s{t4}, s{t5}',
        f's_and_b32 s{t4}, s2, 6', f's_lshr_b32 s{t5}, s2, 6', f's_add_u32 s{t4}, s{t4}, s{t5}', f's_cmp_ge_u32 s{t5}, 2', f's_cselect_b32 s{t5}, 7, 0', f's_add_u32 s{sCG}, s{t4}, s{t5}',
        f's_cmp_eq_u32 s{sCG}, 16', f's_cselect_b32 s{sCG}, 8, s{sCG}', f's_lshl4_add_u32 s{t4}, s{sRB}, s{sCG}',
        f'v_lshrrev_b32 v{VTK}, 5, v0', f'v_lshl_add_u32 v{VTK}, s{t4}, 3, v{VTK}', f'v_mul_u32_u24 v12, 1280, v{VTK}', 'v_and_b32 v13, 31, v0', 'v_lshl_add_u32 v12, v13, 3, v12',
        'v_lshrrev_b32 v1, 6, v0', 'v_and_b32 v0, 63, v0', f's_cmp_ge_u32 s{sCG}, 9', f'v_readfirstlane_b32 s{sW}, v1']
    P += [f'global_load_dwordx2 {pr(VST+2*i)}, v12, {sp(X)} offset:{256*i}' for i in range(5)]
    P += ['s_cbranch_scc1 L_pro_s5']
    late = [f's_load_dwordx2 {sp(p)}, s[0:1], {k}' for p, k in ((pOUT, K_OUT), (pB2, K_B2))] + srd(WS, K_WS, WS_USED)[1] + srd(X, K_X, 2621440)[1]
    return P, late

def ids2():
    duty = [f's_lshr_b32 s3, s{sRB}, 2', f's_sub_u32 s3, s{sRB}, s3', 's_sub_u32 s3, s3, 1', f's_and_b32 s{t4}, s{sRB}, 3', 's_cselect_b32 s3, s3, 12'] if CFG.get('duty', 'even') == 'even' else [f's_mov_b32 s3, s{sRB}']
    return duty + [
            f's_lshl_b32 s{sWL}, s{sW}, 10', f's_and_b32 s{sWT}, s{sW}, 1', f's_lshr_b32 s{sWF}, s{sW}, 1']
def get_tag():
    return [f's_mul_i32 s{sTAG}, s{sTAG}, 0x9e3779b1', f's_add_u32 s{sTAG}, s{sTAG}, 0x7f4a7c15']
def preloop(S, d0):
    n0 = CFG.get('d0_first', 3); k = 0; a = 0
    while k < len(S) and a < CFG.get('st_at', 150):
        a += Gaps.cost(flat([S[k]])); k += 1
    while k < len(S) and any((f's', t4) in mk(y).uses for x in S[k:k+1] for y in flat([x]) if not isinstance(y, PSEUDO)): k += 1
    S = S[:k] + get_tag() + token_stats() + S[k:]
    tot = Gaps.cost(flat(S))
    X_, left = sprinkle(S, d0[n0:], max(1, int((tot - CFG.get('d0_skip', 100)) / (len(d0) - n0 + 0.5))), start=CFG.get('d0_skip', 100))
    return d0[:n0] + X_ + left
def token_stats():
    a, b, c, d = 250, 251, 252, 253
    L = [f'v_mov_b32 v{a}, 0', f'v_mov_b32 v{b}, 0']
    for i in range(10):
        L += [f'v_dot2c_f32_bf16 v{a}, 0x3f803f80, v{VST+i}', f'v_dot2c_f32_bf16 v{b}, v{VST+i}, v{VST+i}']
    for x, y in zip(dpp_row_sum(a), dpp_row_sum(b)): L += [x, y]
    L += [f'v_mov_b32 v{c}, v{a}', f'v_mov_b32 v{d}, v{b}', f'v_permlane16_swap_b32 v{a}, v{c}', f'v_permlane16_swap_b32 v{b}, v{d}',
          f'v_add_f32 v{a}, v{a}, v{c}', f'v_add_f32 v{b}, v{b}, v{d}',
          f'v_mul_f32 v{a}, {fbits(1/640)}, v{a}', f'v_mul_f32 v{b}, {fbits(1/640)}, v{b}',
          f'v_fma_f32 v{b}, -v{a}, v{a}, v{b}', f'v_max_f32 v{b}, 0, v{b}',
          f'v_cvt_pk_bf16_f32 v{b}, v{b}, v{b}', f'v_and_b32 v{b}, 0xffff0000, v{b}',
          f'v_add_f32 v{b}, {fbits(1e-5)}, v{b}', f'v_cvt_pk_bf16_f32 v{b}, v{b}, v{b}', f'v_and_b32 v{b}, 0xffff0000, v{b}',
          f'v_sqrt_f32 v{b}, v{b}', f'v_mov_b32 v{d}, s{sTAG}', f'v_lshlrev_b32 v{VTK}, 3, v{VTK}',
          f'v_cvt_pk_bf16_f32 v{c}, -v{a}, v{b}', f'v_add_u32 v{VTK}, {STAT}, v{VTK}',
          ('s_mov_b32 exec_lo, 1', 's_mov_b32 exec_hi, 1', f'buffer_store_dwordx2 {pr(c)}, v{VTK}, {q(WS)}, 0 offen sc1', 's_mov_b64 exec, -1')]
    return L

def xswz(dst, tmp):
    return [f's_lshl_b32 s{t4}, s{sWT}, 2', f'v_lshrrev_b32 v{tmp}, 4, v0', f'v_add_u32 v{tmp}, s{t4}, v{tmp}',
            f'v_and_b32 v{dst}, 7, v0', f'v_xor_b32 v{dst}, v{dst}, v{tmp}', f'v_lshlrev_b32 v{dst}, 4, v{dst}']

def act_offsets(n, role, a, b_):
    L = [f's_lshl_b32 s{a}, s{sRB}, 1', f's_add_u32 s{a}, s{a}, s{sWT}', f's_lshl_b32 s{a}, s{a}, 3']
    for b in range(3):
        d, fl = sHA + b, sHF + b
        L += [f's_add_u32 s{d}, s{n}, {(0,18,36)[b] if role == "f" else 56 + (0,14,27)[b]}', f's_and_b32 s{b_}, s{d}, 7', f's_add_u32 s{b_}, s{b_}, s{a}', f's_lshr_b32 s{d}, s{d}, 3',
              f's_lshl_b32 s{fl}, s{b_}, {afm()[0] - afm()[1]}', f's_add_u32 s{fl}, s{fl}, s{d}', f's_lshl_b32 s{fl}, s{fl}, {afm()[1]}', f's_add_u32 s{fl}, s{fl}, {AF}',
              f's_mul_i32 s{b_}, s{b_}, 12', f's_add_u32 s{d}, s{d}, s{b_}', f's_lshl_b32 s{d}, s{d}, 12']
    return L

SLOT0 = 40960; SLOT = 40960; WOFF = 16384
ACC = 16; FR = 112

VX2, VW2 = 252, 253
def dma_chunk(role, c):
    slot = SLOT0 + SLOT * (c % 3)
    soff = ['0', f's{sC1}', f's{sC2}', f's{sC3}']
    vx, vw = (1, 2) if c % 2 == 0 else ((VX2, VW2) if c > 1 else (238 if role == 's5' else 239, 239 if role == 's5' else 215))
    if role == 'ffn' and c % 2: vx, vw = 214, 215
    ce = c & ~1
    xs = [[f's_add_u32 m0, s{sWL}, {slot + 4096*n - 128*ce}',
           I(f'buffer_load_dwordx4 v{vx}, {q(X)}, {soff[n]} offen offset:{128*ce} lds', tag=f'c{c}')] for n in range(4)]
    ws = []
    if role == 's5':
        so = ['0', f's{sU0}', f's{sC2}']
        for n in range(6):
            ws.append([f's_add_u32 m0, s{sWL}, {slot + WOFF + 12288*(n%2) + 4096*(n//2) - 128*ce}',
                       I(f'buffer_load_dwordx4 v{vw}, {q(BIM if n % 2 else BRE)}, {so[n//2]} offen offset:{128*ce} lds', tag=f'c{c}')])
    else:
        for hi in range(2):
            for cb in range(3):
                g = [f's_add_u32 m0, s{sWL}, {slot + WOFF + 8192*cb + 4096*hi - 128*cb}',
                     I(f'buffer_load_dwordx4 v{vw}, {q(W1)}, s{sWK} offen offset:{128*cb} lds', tag=f'c{c}')]
                if cb == 2:
                    if hi == 0: g.append(f's_add_u32 s{sWK}, s{sWK}, {32*3456}')
                    elif c % 2 == 0: g.append(f's_sub_u32 s{sWK}, s{sWK}, {32*3456}')
                    else: g.append(f's_add_u32 s{sWK}, s{sWK}, {96*3456}')
                ws.append(g)
    return [xs[0], ws[0], ws[1], xs[1], ws[2], xs[2], ws[3], ws[4], xs[3], ws[5]]
def pair_swap(role):
    ox, ow = (214, 215) if role == 'ffn' else (238, 239)
    ks = 64 * 3456 if role == 'ffn' else 128
    par = [f's_lshr_b32 s{t4}, s2, 3', f's_lshr_b32 s{t5}, s2, 6', f's_xor_b32 s{t4}, s{t4}, s{t5}', f's_and_b32 s{t4}, s{t4}, 1'] if CFG.get('swap', True) else [f's_mov_b32 s{t4}, 0']
    return par + [f's_lshl_b32 s{t5}, s{t4}, 7', f'v_add_u32 v1, s{t5}, v1', f's_xor_b32 s{t5}, s{t5}, 128', f's_lshl_b32 s{t1}, s{t4}, 7', f's_sub_u32 s{t5}, s{t5}, s{t1}', f'v_add_u32 v{ox}, s{t5}, v1',
                  f's_mul_i32 s{t5}, s{t4}, {ks}', f'v_add_u32 v2, s{t5}, v2', f's_lshl_b32 s{t5}, s{t5}, 1', f's_sub_u32 s{t5}, {ks}, s{t5}', f'v_add_u32 v{ow}, s{t5}, v2']

def bmp(v, c):
    return f'v_add_u32 v{v}, 40960, v{v}' if c % 3 != 2 else f'v_subrev_u32 v{v}, 81920, v{v}'

def ffn_reads(sig):
    c, s = divmod(sig, 4)
    f = FR + 20 * (sig & 1)
    x = lambda tb: f'ds_read_b128 {q4(f+4*tb)}, v{3+s} offset:{4096*tb}'
    w = lambda b, u: f'ds_read_b64_tr_b16 {pr(f+8+4*b+2*u)}, v{7+b} offset:{(16*s+4*u)*128}'
    R = [x(0), w(0, 0), w(0, 1), x(1), w(1, 0), w(1, 1), w(2, 0), w(2, 1)]
    if c < 9:
        R.append(bmp(3 + s, c))
        if s == 3: R += [bmp(7, c), bmp(8, c), bmp(9, c)]
    return R
def ffn_mfmas(f, first):
    M = []
    for t in range(6):
        d = ACC + 16 * t
        M.append(f'v_mfma_f32_32x32x16_bf16 v[{d}:{d+15}], {q4(f+8+4*(t//2))}, {q4(f+4*(t%2))}, ' + ('0' if first else f'v[{d}:{d+15}]'))
    return M
def ffn_loop(extra_wait):
    G = Gaps3(6, 5); bars = []
    for sig in range(40):
        c, s = divmod(sig, 4)
        M = ffn_mfmas(FR + 20 * (sig & 1), sig == 0)
        R = ffn_reads(sig + 1) if sig < 39 else []
        bar = (s == 3 and c < 9)
        for t in range(6):
            i = G.add(M[t])
            if t == 1:
                if bar:
                    G.need(i, Wait(f'c{c+1}', *extra_wait.get(c, []))); G.need(i, 's_waitcnt lgkmcnt(0)')
                    G.fixed(i, ['s_barrier'] + ST(f'b{c}'), 'pre'); bars.append(i)
                else: G.need(i, Need(f'v[{FR + 20*(sig&1)}:{FR + 20*(sig&1) + 19}]'))
            if t == 5 and sig < 39: G.need(i, Need(q4(FR + 20*((sig+1)&1) + 4)))
            if t >= (1 if bar else 0):
                n = 2 if t < 5 else len(R)
                if s == 2 and t >= 3 and t < 5: n = 3
                G.fixed(i, R[:n]); R = R[n:]
    return G, bars

def s5_x(sig, tt): return f'ds_read_b128 {q4(FR + 16*(sig&1) + 4*tt)}, v{3+(sig&1)} offset:{2048*tt}'
def s5_b(sig, n): return f'ds_read_b128 {q4(FR + 32 + 4*n)}, v{5+(sig&1)} offset:{12288*(n&1) + 2048*(n>>1)}'
def s5_acc(n, tt): return ACC + 16 * n + 4 * tt
def s5_loop(extra_wait):
    G = Gaps3(2, 2); bars = []
    for sig in range(20):
        c, s = divmod(sig, 2)
        nx = sig + 1
        for n in range(6):
            for tt in range(4):
                d = s5_acc(n, tt)
                i = G.add(f'v_mfma_f32_16x16x32_bf16 {q4(d)}, {q4(FR+16*(sig&1)+4*tt)}, {q4(FR+32+4*n)}, ' + ('0' if sig == 0 else q4(d)))
                bar = s == 1 and c < 9
                if n == 1 and tt == 3 and not bar: G.need(i, Need(q4(FR + 32 + 20)))
                if nx > 19: continue
                if bar and n == 0 and tt == 3:
                    G.need(i, Wait(f'c{c+1}', *extra_wait.get(c, []))); G.need(i, 's_waitcnt lgkmcnt(0)')
                    G.fixed(i, ['s_barrier'] + ST(f'b{c}'), 'pre'); bars.append(i)
                if n == 5 and tt == 3: G.need(i, Need(q4(FR + 16*(nx&1) + 12)))
                if tt == 3: G.fixed(i, [s5_b(nx, n)])
                if n in (1, 2) and tt in (0, 1): G.fixed(i, [s5_x(nx, 2*(n-1) + tt)])
                if nx // 2 < 9:
                    if n == 3 and tt == 1: G.fixed(i, [bmp(3 + (nx & 1), nx // 2)])
                    if n == 5 and tt == 3: G.fixed(i, [bmp(5 + (nx & 1), nx // 2)])
    return G, bars

def sched_dma(G, bars, role, seq, u, rate):
    pos = 0.0
    last = {}
    prev = -1
    for it in seq:
        if it[0] == 'pause':
            pos += it[1] * u; continue
        grp, mg = it
        i = max(int(pos), mg)
        i = max(i, prev + 1)
        while not G.can_dma(i): i += 1
        G.dma(i, grp, prev); prev = i
        last[grp[1].tag] = i
        pos = max(pos, mg) + u / rate
    print(role, 'dma margins (chunks):', [round((bars[c-1] - last[f'c{c}']) / u, 2) for c in range(2, 10)], file=sys.stderr)
    return last

def w2f_loads(rot=0):
    L = []
    for i in [(rot + x) % 7 for x in range(7)] + list(range(7, 12)):
        for j in range(5):
            k = 5 * i + j
            g = []
            if j == 0: g.append(f's_add_u32 s{t0}, s{sWB}, {5120*i}')
            if k == 30: g.append(f's_or_b32 s{t0}, s{t0}, s3')
            g.append(I(f'buffer_load_dwordx4 {q4(4*k, "a")}, v{14 if j < 4 else 15}, {q(WS)}, s{t0} offen' + (f' offset:{1024*j}' if j < 4 else '') + ' sc1', tag=f'w{k}'))
            L.append(tuple(g))
    return L
def p2_setup(a, b, c, d):
    mix = CFG.get('mix', True)
    rsub = [f's_lshr_b32 s{b}, s2, 2', f's_and_b32 s{b}, s{b}, 2', f's_lshr_b32 s{c}, s2, 6', f's_xor_b32 s{b}, s{b}, s{c}'] if mix else [f's_bfe_u32 s{b}, s2, 0x20003']
    return [f's_and_b32 s{a}, s2, 6', f's_lshl_b32 s{a}, s{a}, 1'] + rsub + [f's_add_u32 s{a}, s{a}, s{b}', f's_lshl_b32 s{a}, s{a}, 1',
            f's_and_b32 s{c}, s2, 1', f's_add_u32 s{a}, s{a}, s{c}', f's_xor_b32 s{b}, s{a}, 1',
            f's_lshr_b32 s{sPFy}, s{a}, 1', f's_and_b32 s{sPFy}, s{sPFy}, {CFG.get("pf_rep", 16) - 1}', f's_mul_i32 s{sPFy}, s{sPFy}, {PFS}', f's_add_u32 s{sPFy}, s{sPFy}, {PF}',
            f's_lshl_b32 s{c}, s{c}, 2', f's_add_u32 s{c}, s{c}, s{sW}', (f's_cmp_ge_u32 s{c}, 6', f's_cselect_b32 s3, {OOB}, 0'),
            f's_lshl_b32 s{sPFf}, s{c}, 5', f's_add_u32 s{sPFf}, s{sPFf}, s{sPFy}',
            f's_lshl_b32 s{d}, s{b}, 3', f's_add_u32 s{d}, s{d}, s{c}', f's_mul_i32 s{sA}, s{d}, {12*4096}', f's_lshl_b32 s{sFL}, s{d}, {afm()[0]}', f's_add_u32 s{sFL}, s{sFL}, {AF + (4 if afm()[1] == 7 else 0)}',
            f's_lshl_b32 s{d}, s{a}, 3', f's_add_u32 s{d}, s{d}, s{c}', f's_mul_i32 s{sAown}, s{d}, {12*4096}',
            f's_bfe_u32 s{d}, s2, 0x30003' if mix else f's_lshr_b32 s{d}, s2, 5', f's_mul_i32 s{sC160}, s{d}, 160', f's_xor_b32 s{sFL2}, s{sFL}, {8 << afm()[0]}',
            f's_lshl_b32 s{sWB}, s{d}, 3', f's_add_u32 s{sWB}, s{sWB}, s{c}', f's_mul_i32 s{sWB}, s{sWB}, {12*5120}', f's_add_u32 s{sWB}, s{sWB}, {W2F}',
            f's_mul_i32 s{c}, s{d}, 5', f's_lshr_b32 s{c}, s{c}, 2',
            f's_lshl_b32 s{c}, s{c}, 8', f's_add_u32 s{sPFf}, s{sPFf}, s{c}', f's_add_u32 s{sPFy}, s{sPFf}, {PFY}',
            f's_lshl_b32 s{d}, s{d}, 2', f's_add_u32 s{d}, s{d}, s{sW}',
            f's_lshl_b32 s{c}, s{b}, 5', f's_add_u32 s{c}, s{c}, s{d}', f's_mul_i32 s{sXO}, s{c}, 6272', f's_add_u32 s{sXO}, s{sXO}, {XCH}',
            f's_lshl_b32 s{c}, s{a}, 5', f's_add_u32 s{c}, s{c}, s{d}', f's_mul_i32 s{sXI}, s{c}, 6272', f's_add_u32 s{sXI}, s{sXI}, {XCH}',
            f's_lshl_b32 s{c}, s{a}, 2', f's_add_u32 s{c}, s{c}, s{sW}', f's_mul_i32 s{sOO}, s{c}, {16*1280}', f's_add_u32 s{sOO}, s{sOO}, s{sC160}',
            f's_sub_u32 s{d}, s{sW}, 1', f's_and_b32 s{d}, s{d}, 3', f's_lshl_b32 s{c}, s{a}, 2', f's_add_u32 s{c}, s{c}, s{d}',
            f's_lshl_b32 s{sSTO}, s{c}, 7', f's_add_u32 s{sSTO}, s{sSTO}, {STAT}']
def warm_flags():
    L = [I(f's_buffer_load_dword s{t0}, {q(WS)}, s{x} glc', tag='async') for x in (sFL, sFL2)] if CFG.get('warm', True) else []
    if CFG.get('warm_pf'):
        L += [f's_lshl4_add_u32 s{t1}, s{sCG}, s{sRB}', f's_lshl2_add_u32 s{t1}, s{t1}, s{sW}', f's_lshl_b32 s{t1}, s{t1}, 7', f's_add_u32 s{t1}, s{t1}, {PF}',
              I(f's_buffer_load_dword s{t0}, {q(WS)}, s{t1} glc', tag='async')]
    return L
def pf_publish(off, wg, v=231):
    return ([(f's_cmp_eq_u32 s{sW}, 0', f's_cselect_b32 s{off}, s{off}, {OOB}')] if wg else []) + \
           [(f's_mov_b64 exec, {(1 << CFG.get("pf_rep", 16)) - 1}', f'buffer_store_dword v13, v{v}, {q(WS)}, s{off} offen sc1', 's_mov_b64 exec, -1')]
def pf_check(name, which, fb, v):
    n, so = (7, sPFf) if which == 'f' else (5, sPFy)
    if which == 'f': ld = [f'v_and_b32 v{v}, 7, v0', f'v_min_u32 v{v}, 6, v{v}', f'v_and_b32 v{v+1}, 8, v0', f'v_lshl_or_b32 v{v}, v{v+1}, 3, v{v}']
    else: ld = [f'v_min_u32 v{v}, {n-1}, v0']
    ld += [f'v_lshlrev_b32 v{v}, 2, v{v}', f'buffer_load_dword v{v}, v{v}, {q(WS)}, s{so} offen sc1']
    ch, last = chain(list(range(fb, fb + n)))
    blk = [f'L_spin_{name}:', f's_mov_b32 s{t5}, 0']
    for k in range(2 if which == 'f' else 1):
        blk += [f'L_spinl_{name}{k}:', 's_sleep 2', f's_buffer_load_dwordx8 s[{fb}:{fb+7}], {q(WS)}, s{so} offset:{256*k} glc', 's_waitcnt lgkmcnt(0)',
                f's_add_u32 s{t5}, s{t5}, 1', f's_cmp_gt_u32 s{t5}, {SPIN_MAX*2}', f's_cbranch_scc1 L_ret_{name}'] + flat(ch) + [last, f's_cbranch_scc0 L_spinl_{name}{k}']
    SPINS.append(blk + [f's_branch L_ret_{name}'])
    return ld, [Need(f'v{v}'), f'v_cmp_ne_u32 vcc, s{sTAG}, v{v}'], [(f's_cbranch_vccnz L_spin_{name}', f'L_ret_{name}:')]
def pf_place(G, bar, u, name, which, fb, v):
    ld, c1, c2 = pf_check(name, which, fb, v)
    g, left = G.place(ld, bar - int(u * CFG.get('pf_lead', 0.95))); assert not left
    g = bar - u // 8
    G.need(g, c1[0]); G.fixed(g, c1[1:]); G.fixed(bar - 1, flat(c2), 'post')
XL = 122880
def stage_small(v):
    L = [f's_mul_i32 s{t4}, s{sW}, 3072', f's_add_u32 s{t4}, s{t4}, {XL}', f's_sub_u32 s{t2}, s{sSTO}, {STAT}', f's_mul_i32 s{t2}, s{t2}, 160', f's_add_u32 s{t2}, s{t2}, s{sC160}']
    for i in range(3):
        L += [f'v_add_u32 v{v+1}, {64*i}, v0', f'v_mul_u32_u24 v{v}, 6554, v{v+1}', f'v_lshrrev_b32 v{v}, 16, v{v}', f'v_mul_u32_u24 v{v}, 1120, v{v}', f's_add_u32 m0, s{t4}, {1024*i}',
              f'v_lshl_add_u32 v{v}, v{v+1}, 4, v{v}']
        ld = I(f'buffer_load_dwordx4 v{v}, {q(X)}, s{t2} offen lds', tag='xd')
        L.append(('s_mov_b32 exec_hi, 0', ld, 's_mov_b32 exec_hi, -1') if i == 2 else ld)
    L += [f'v_add_u32 v{v}, s{sC160}, v14']
    for off, p in ((2560, pDSK), (2720, pB2)):
        L += [f's_add_u32 m0, s{t4}, {off}', ('s_mov_b64 exec, 0x3ff', I(f'global_load_lds_dwordx4 v{v}, {sp(p)}', tag='xd'), 's_mov_b64 exec, -1')]
    L += [f's_add_u32 m0, s{t4}, 2880', ('s_mov_b64 exec, 0xff', I(f'buffer_load_dwordx4 v14, {q(WS)}, s{sSTO} offen sc1 lds', tag='xd'), 's_mov_b64 exec, -1')]
    return L
def flag8(off):
    if afm()[1] == 2: return flag_store(off)
    return ('s_mov_b64 exec, 0xff', f'buffer_store_dwordx4 v[12:15], v14, {q(WS)}, s{off} offen sc1', 's_mov_b64 exec, -1')
def flag_store(off):
    return ('s_mov_b64 exec, 1', f'buffer_store_dword v13, v14, {q(WS)}, s{off} offen sc1', 's_mov_b64 exec, -1')

def p2_setup_v():
    L = [f'v_add_u32 v1, s{sWL}, v14']
    for t in range(1, 4): L += [f'v_add_u32 v{1+t}, {1024*t}, v1', f'v_and_b32 v{1+t}, 0xfff, v{1+t}']
    return L

def ffn_prologue(late):
    P = srds([(W1, K_W1, 640*3456)])
    A = P.append
    P += ids2()
    A('v_lshrrev_b32 v11, 3, v0'); A('v_lshrrev_b32 v8, 4, v0'); A('v_lshlrev_b32 v8, 1, v8'); A('v_and_b32 v9, 7, v0')
    A('v_xor_b32 v8, v8, v9'); A('v_lshlrev_b32 v8, 4, v8')
    A('v_mul_u32_u24 v9, 3456, v11'); A('v_add_u32 v9, v9, v8')
    A(f's_mul_i32 s18, s3, 86'); A('s_lshr_b32 s18, s18, 8')
    A('s_mul_i32 s19, s18, 3'); A(f's_sub_u32 s19, s3, s19'); A(f's_mul_i32 s20, s{sCG}, 3'); A('s_add_u32 s19, s19, s20')
    A(f's_mul_i32 s20, s18, {160*3456}'); A('s_lshl_b32 s21, s19, 7'); A('s_add_u32 s20, s20, s21')
    A(f's_mul_i32 s21, s{sW}, {8*3456}'); A('s_add_u32 s20, s20, s21')
    A('s_cmp_lt_u32 s3, 12'); A(f's_cselect_b32 s20, s20, {OOB}')
    for i in range(5):
        A(f's_add_u32 m0, s{sWL}, {i*4096}')
        if i: A(f's_add_u32 s20, s20, {32*3456}')
        P.append(I(f'buffer_load_dwordx4 v9, {q(W1)}, s20 offen lds', tag='cs'))
    P += srds([(B1, K_B1, 3456), (W2, K_W2, 1728*1280)]) + late
    P += [f's_lshl_b32 s21, s{sCG}, 1', f's_add_u32 s21, s21, s{sWF}', 's_mul_i32 s21, s21, 192', 'v_lshlrev_b32 v13, 1, v13']
    P += [f'buffer_load_ushort v{236+b}, v13, {q(B1)}, s21 offen offset:{64*b}' for b in range(3)]
    P += [f's_load_dword s{sTAG}, {sp(WS)}, {EPO}'] + ST('pro')
    A('s_branch L_ffn')
    return P

def ffn_main(vm):
    P = ['L_ffn:']; A = P.append
    A('v_mul_u32_u24 v10, 1280, v11'); A('v_add_u32 v10, v10, v8')
    P += [f's_mov_b32 s{sC1}, 40960', f's_mov_b32 s{sC2}, 81920', f's_mov_b32 s{sC3}, 122880']
    P += xswz(1, 12)
    A(f's_lshl_b32 s{t4}, s{sRB}, 4'); A(f's_add_u32 s{t4}, s{t4}, s{sW}'); A(f's_lshl_b32 s{t4}, s{t4}, 3')
    A(f'v_add_u32 v12, s{t4}, v11'); A('v_mul_u32_u24 v12, 1280, v12'); A('v_add_u32 v1, v1, v12')
    A(f's_lshl_b32 s{t4}, s{sW}, 3'); A(f'v_add_u32 v12, s{t4}, v11'); A('v_mul_u32_u24 v12, 3456, v12')
    A('v_bfe_u32 v13, v0, 4, 1'); A('v_lshlrev_b32 v13, 2, v13'); A('v_and_b32 v2, 7, v0'); A('v_xor_b32 v2, v2, v13'); A('v_lshl_add_u32 v2, v2, 4, v12')
    A(f's_mul_i32 s{sWK}, s{sCG}, 384')
    P += pair_swap('ffn')
    S = []
    S += [f's_lshl_b32 s{sU1}, s19, 6', f's_lshl_b32 s21, s{sW}, 4', f's_add_u32 s{sU1}, s{sU1}, s21', f's_lshl_b32 s{sU1}, s{sU1}, 5', 's_lshl_b32 s21, s18, 3', f's_add_u32 s{sU1}, s{sU1}, s21',
          f's_add_u32 s{sU1}, s{sU1}, {CS}', ('s_cmp_lt_u32 s3, 12', f's_cselect_b32 s{sU1}, s{sU1}, {OOB}'), 'v_lshlrev_b32 v218, 5, v0']
    S += p2_setup(18, 19, 20, 21) + warm_flags()
    S += ['v_bfe_u32 v12, v0, 1, 3', 'v_lshrrev_b32 v3, 5, v0', 'v_xor_b32 v12, v12, v3', 'v_and_b32 v3, 31, v0', 'v_lshlrev_b32 v3, 7, v3', 'v_lshl_add_u32 v3, v12, 4, v3',
          f's_lshl_b32 s{t4}, s{sWT}, 13', f's_add_u32 s{t4}, s{t4}, {SLOT0}', f'v_add_u32 v3, s{t4}, v3']
    S += [f'v_xor_b32 v{3+s}, {s*32}, v3' for s in range(1, 4)]
    S += ['v_lshrrev_b32 v11, 5, v0', 'v_bfe_u32 v12, v0, 2, 2', 'v_lshl_add_u32 v11, v11, 3, v12', 'v_lshlrev_b32 v11, 7, v11',
          'v_bfe_u32 v12, v0, 3, 1', 'v_lshl_add_u32 v11, v12, 6, v11', 'v_bfe_u32 v12, v0, 4, 1', 'v_lshl_add_u32 v11, v12, 5, v11',
          'v_and_b32 v12, 3, v0', 'v_lshl_add_u32 v11, v12, 3, v11']
    for b in range(3):
        S += [f's_mul_i32 s{t4}, s{sWF}, 3', f's_add_u32 s{t4}, s{t4}, {b}', f's_and_b32 s{t5}, s{t4}, 1', f's_lshl_b32 s{t5}, s{t5}, 6',
              f's_lshr_b32 s{t4}, s{t4}, 1', f's_lshl_b32 s{t4}, s{t4}, 13', f's_add_u32 s{t4}, s{t4}, {SLOT0 + WOFF}',
              f'v_xor_b32 v{7+b}, s{t5}, v11', f'v_add_u32 v{7+b}, s{t4}, v{7+b}']
    S += ['v_lshrrev_b32 v216, 5, v0', 'v_lshlrev_b32 v216, 4, v216', 'v_bfe_u32 v12, v0, 2, 3', 'v_add_u32 v216, v216, v12',
          'v_lshrrev_b32 v12, 1, v12', 'v_lshlrev_b32 v12, 5, v12', 'v_lshl_add_u32 v216, v216, 7, v12', 'v_and_b32 v12, 3, v0', 'v_lshl_add_u32 v216, v12, 3, v216',
          f's_lshl_b32 s{t4}, s{sW}, 5', f'v_xor_b32 v217, s{t4}, v216', f's_lshl_b32 s{t4}, s{sW}, 12', f'v_add_u32 v216, s{t4}, v216']
    S += [f'v_mov_b32 v{160+i}, 0x3f803f80' for i in range(4)]
    S += ['v_lshlrev_b32 v14, 4, v0', 'v_add_u32 v15, 4096, v14']
    S += [f's_lshl_b32 s18, s{sCG}, 4', f's_add_u32 s18, s18, s{sRB}', f's_mul_i32 s{r2_}, s18, 4682', f's_lshr_b32 s{r2_}, s{r2_}, 16', f's_mul_i32 s19, s{r2_}, 14', 's_sub_u32 s19, s18, s19',
          's_lshl_b32 s20, s19, 2', f's_add_u32 s20, s20, s{sW}', 's_mul_i32 s21, s20, 3641', 's_lshr_b32 s21, s21, 16', f's_mul_i32 s{t4}, s21, 18', f's_sub_u32 s{t4}, s20, s{t4}',
          f's_mul_i32 s{t4}, s{t4}, 3', f's_add_u32 s{t4}, s{t4}, s21',
          f's_mul_i32 s{r0}, s{t4}, {32*1280}', f's_lshl_b32 s{t4}, s{r2_}, 7', f's_add_u32 s{r0}, s{r0}, s{t4}',
          f's_and_b32 s{r1}, s20, 7', f's_mul_i32 s{r1}, s{r1}, 12', f's_lshr_b32 s{t4}, s20, 3', f's_add_u32 s{r1}, s{r1}, s{t4}', f's_mul_i32 s{r1}, s{r1}, 5120',
          f's_lshl_b32 s21, s{r2_}, 12', f's_add_u32 s{r1}, s{r1}, s21', f's_add_u32 s{r1}, s{r1}, {W2F}',
          ('s_cmp_lt_u32 s20, 54', 's_cselect_b32 s21, s18, 200'), ('s_cmp_lt_u32 s21, 140', f's_cselect_b32 s{r1}, s{r1}, {OOB}', f's_cselect_b32 s{r0}, s{r0}, {OOB}'), f's_lshl_b32 s{r3}, s{sW}, 12',
          's_and_b32 s21, s20, 7', 's_lshl_b32 s21, s21, 3', f's_add_u32 s21, s21, s{t4}', f's_lshl_b32 s{t4}, s{r2_}, 6', f's_add_u32 s21, s21, s{t4}', 's_lshl_b32 s21, s21, 2', f's_add_u32 s21, s21, {PF}',
          f'v_mul_u32_u24 v231, {PFS}, v0',
          ('s_cmp_lt_u32 s18, 140', f's_cselect_b32 s{sPUB}, s21, {OOB}')]
    for jj in range(4):
        S += [f's_lshl_b32 s{t4}, s{r2_}, 2', f's_add_u32 s{t4}, s{t4}, {jj}', f's_mul_i32 s{t4}, s{t4}, 52', f's_lshr_b32 s{t4}, s{t4}, 8', f's_mul_i32 s{t4}, s{t4}, {95*5120}', f'v_add_u32 v{232+jj}, s{t4}, v14']
    S += [f's_lshl_b32 s{t1}, s{sCG}, 1', f's_add_u32 s{t1}, s{t1}, s{sWF}'] + act_offsets(t1, 'f', t2, t3)
    S += [f's_lshl_b32 s{r4}, s{t2}, 6', f's_add_u32 s{r4}, s{r4}, {STAT}', f's_mul_i32 s{r5}, s{t1}, 3072', f's_add_u32 s{r5}, s{r5}, {CS}',
          'v_and_b32 v12, 31, v0', 'v_lshlrev_b32 v219, 3, v12', 'v_lshrrev_b32 v220, 5, v0', 'v_lshlrev_b32 v220, 4, v220', 'v_lshl_add_u32 v220, v12, 5, v220',
          'v_bfe_u32 v11, v0, 4, 1', 'v_lshlrev_b32 v11, 10, v11', 'v_lshrrev_b32 v12, 5, v0', 'v_lshl_add_u32 v11, v12, 8, v11', 'v_and_b32 v12, 15, v0', 'v_lshl_add_u32 v11, v12, 4, v11']
    S += [f'v_mov_b32 v{188+4*k+2+h}, 0' for k in range(5) for h in range(2)]
    S += ['s_mov_b32 s36, -1', 's_mov_b32 s37, 0', 's_mov_b32 s38, 0x07060302', 's_mov_b32 s39, 0x05040302', f's_mov_b32 s{sU0}, 0x01000100']
    d0 = [tuple(g) for g in dma_chunk('ffn', 0)]
    P += preloop(S, d0) + ST('d0') + [f'v_mov_b32 v13, s{sTAG}'] + ST('tag')
    d1 = [tuple(g) for g in dma_chunk('ffn', 1)]
    rl = [(f's_add_u32 m0, s{r3}, {20480 + i*1024}', I(f'buffer_load_dwordx4 v10, {q(W2)}, s{r0} offen lds', tag='rl'), f's_add_u32 s{r0}, s{r0}, {8*1280}') for i in range(4)]
    NPRE = CFG.get('npre', 10)
    T_ = [Wait('cs'), 's_waitcnt lgkmcnt(0)', 's_barrier']
    for ks in range(5):
        for u in range(2): T_.append(f'ds_read_b64_tr_b16 {pr(168+4*ks+2*u)}, v217 offset:{ks*4096+u*1024}')
    for ks in range(5): T_.append(f'v_mfma_f32_16x16x32_bf16 v[164:167], v[160:163], {q4(168+4*ks)}, ' + ('0' if ks == 0 else 'v[164:167]'))
    T_ += ['v_mov_b32 v165, v13', ('s_mov_b64 exec, 0xffff', f'buffer_store_dwordx2 v[164:165], v218, {q(WS)}, s{sU1} offen sc1', 's_mov_b64 exec, -1')]
    if CFG.get('rl_pos', 1) == 0: d1 = rl + d1
    X_, left = sprinkle(T_, d1[:NPRE], CFG.get('d1_every', 6)); P += X_ + ST('stats') + left
    P += [Wait('c0'), 's_barrier'] + ST('bar') + ffn_reads(0)
    rp = CFG.get('rl_pos', 1)
    G, bars = ffn_loop({})
    seq = [(list(g), 0) for g in d1[NPRE:]]
    for c in range(2, 10):
        if rp == c - 1: seq += [(list(g), 0) for g in rl] + [('pause', CFG.get('rl_pause', 0))]
        seq += [(g, bars[c-3] if c > 2 else 0) for g in dma_chunk('ffn', c)]
    last = sched_dma(G, bars, 'ffn', seq, 24, CFG.get('rate', 11.0))
    BU = CFG.get('bud', 4)
    g_w = max(last['c9'], int(24 * CFG.get('p_w', 7.5))) + 1
    pf_place(G, g_w, 24, 'pf_ff', 'f', 28, 217)
    S = []
    for jj in range(4):
        S += [f'v_xor_b32 v12, {jj*32}, v216'] + [I(f'ds_read_b64_tr_b16 {pr(152+4*jj+2*u)}, v12 offset:{20480+u*1024}', need=['rl']) for u in range(2)]
    nxt, left = G.place(S, bars[rp] + 1 - CFG.get('rl_early', 0), budget=6); assert not left
    S = [I(f'buffer_store_dwordx4 {q4(152+4*jj)}, v{232+jj}, {q(WS)}, s{r1} offen offset:{1024*jj} sc1', tag='rls') for jj in range(4)]
    g_rl, left = G.place(S, nxt + 1, step=CFG.get('rls_step', 3), budget=8); assert not left
    g_rl, left = G.place([Wait('rls')] + pf_publish(sPUB, False), g_rl + CFG.get('rls_wait', 20)); assert not left
    ld = [f'buffer_load_dwordx2 {pr(168+2*tb)}, v219, {q(WS)}, s{r4} offen offset:{256*tb} sc1' for tb in range(2)] + \
         [f'buffer_load_dwordx4 {q4(172+4*b)}, v220, {q(WS)}, s{r5} offen offset:{1024*b} sc1' for b in range(3)]
    ld = [I(x, tag='ext') for x in ld]
    nxt, left = G.place(ld, max(nxt, int(24 * CFG.get('p_ext', 4.0))), step=CFG.get('ext_step', 4)); assert not left
    S = check('ext', ld, tagacc(12, [169, 171] + [173+2*k for k in range(6)]), ['v_cmp_ne_u32 vcc, 0, v12'])
    EX = 188
    for tb in range(2):
        f = EX + 4 * tb
        S += [f'v_cndmask_b32 v{f+1}, 0, v{168+2*tb}, s[36:37]', f'v_perm_b32 v{f}, v{f+1}, v{f+1}, s{sU0}']
    S += [f'v_add_f32 v{172+4*b}, v{172+4*b}, v{174+4*b}' for b in range(3)] + [f'v_mov_b32 v{173+4*b}, v{172+4*b}' for b in range(3)]
    for b in range(3):
        r = 172 + 4 * b; f = EX + 8 + 4 * b; t = r + 1
        S += [f'v_permlane32_swap_b32 v{r}, v{t}', f'v_add_f32 v{r}, v{r}, v{t}',
              f'v_and_b32 v{t}, 0xffff0000, v{r}', f'v_sub_f32 v{t}, v{r}, v{t}', f'v_perm_b32 v{f}, v{t}, v{r}, s38',
              f'v_and_b32 v{r}, 0xffff0000, v{t}', f'v_sub_f32 v{t}, v{t}, v{r}', f'v_perm_b32 v{f+1}, v{236+b}, v{t}, s39']
    c1 = -2 * math.sqrt(2 / math.pi) * LOG2E; c3 = c1 * 0.044715
    S += [f'v_and_b32 v{212+tb}, 0xffff0000, v{168+2*tb}' for tb in range(2)] + [f'v_rcp_f32 v{169+2*tb}, v{212+tb}' for tb in range(2)]
    for tb in range(2):
        r = 169 + 2 * tb
        S += [f'v_mul_f32 v{208+tb}, {fbits(c1)}, v{r}', f'v_mul_f32 v12, v{r}, v{r}', f'v_mul_f32 v12, v12, v{r}', f'v_mul_f32 v{210+tb}, {fbits(c3)}, v12']
    nxt, left_ext = G.place(S, nxt + 22, budget=BU)
    WL = w2f_loads()
    g3, WL = G.place(WL, g_w, step=CFG.get('w_step', 2), budget=6)
    if CFG.get('stg', 'tail') == 'loop': g3, left = G.place(stage_small(222), bars[8] + 1, budget=6); left_ext += left
    g3, left = G.place(p2_setup_v(), 234, budget=6); left_ext += left
    print('ffn: last dma gap', last['c9'], 'rl', g_rl, 'ext done', nxt, 'left', len(left_ext), 'w2f left', len(WL), file=sys.stderr)
    assert len(WL) >= 25
    P += G.emit() + left_ext + ST('loop')
    if CFG.get('warm2', True): P += [I(f's_buffer_load_dword s{t1}, {q(WS)}, s{sHF+b} glc', tag='async') for b in range(3)]
    P += ffn_mfmas(EX, False)
    return P, WL

def ffn_tail(WL, late):
    P = []
    T = 112; n = 0
    E = []; held = []
    for t in range(6):
        b, tb = divmod(t, 2)
        sel = f'op_sel:[0,{tb},{tb}] op_sel_hi:[1,{tb},{tb}]'
        for piece in range(2):
            o = 128 + 4 * (n % 4); n += 1
            a = lambda p: pr(ACC + 16*t + 8*piece + 2*p)
            tt = lambda p: pr(T + 2*p)
            if n - 1 == CFG.get('late_at', 10): E += late
            if n - 1 == CFG.get('f0_at', 7): E += [Wait('h0'), flag8(sHF)]
            if n - 1 == CFG.get('f1_at', 11): E += [Wait('h1'), flag8(sHF + 1)]
            E += [f'v_pk_mul_f32 {tt(p)}, {a(p)}, {a(p)}' for p in range(4)]
            E += [f'v_pk_fma_f32 {tt(p)}, {tt(p)}, v[210:211], v[208:209] {sel}' for p in range(4)]
            E += [f'v_pk_mul_f32 {tt(p)}, {tt(p)}, {a(p)}' for p in range(4)]
            E += [f'v_exp_f32 v{T+p}, v{T+p}' for p in range(8)]
            E += [f'v_pk_fma_f32 {tt(p)}, {tt(p)}, v[212:213], v[212:213] {sel}' for p in range(4)]
            E += [f'v_rcp_f32 v{T+p}, v{T+p}' for p in range(8)]
            E += [f'v_pk_mul_f32 {tt(p)}, {tt(p)}, {a(p)}' for p in range(4)]
            E += [f'v_cvt_pk_bf16_f32 v{o+p}, v{T+2*p}, v{T+2*p+1}' for p in range(4)]
            E.append(I(f'buffer_store_dwordx4 {q4(o)}, v11, {q(WS)}, s{sHA+b} offen offset:{tb*2048+piece*512} sc1', tag=f'h{b}'))
        if tb == 1: E += ST(f'e{b}')
    if CFG.get('f1_at', 11) >= 12: E += [Wait('h1'), flag8(sHF + 1)]
    nf = len(WL) - 25
    E, left = sprinkle(E, WL[:nf], CFG.get('w_every', 90)); WL = left + WL[nf:]
    E = (stage_small(222) if CFG.get('stg', 'tail') == 'tail' else []) + E
    P += E + ST('t1') + ST('te')
    return P, WL, [[Wait('h2'), flag8(sHF + 2)]]

def cpow(dst, rho, th, n, t):
    nn = n if isinstance(n, str) else fbits(n)
    return [f'v_mul_f32 v{t}, {nn}, v{rho}', f'v_mul_f32 v{t+1}, {nn}, v{th}', f'v_exp_f32 v{t}, v{t}', f'v_fract_f32 v{t+1}, v{t+1}',
            f'v_cos_f32 v{dst}, v{t+1}', f'v_sin_f32 v{dst+1}, v{t+1}', f'v_mul_f32 v{dst}, v{t}, v{dst}', f'v_mul_f32 v{dst+1}, v{t}, v{dst+1}']
def rho_theta(lr, li, ld, rho):
    return [f'v_lshlrev_b32 v{ld}, 16, v{ld}', f'v_mul_f32 v{ld}, {fbits(LOG2E)}, v{ld}', f'v_exp_f32 v{ld}, v{ld}', f'v_lshlrev_b32 v{lr}, 16, v{lr}', f'v_lshlrev_b32 v{li}, 16, v{li}',
            f'v_cvt_pk_bf16_f32 v{ld}, v{ld}, v{ld}', f'v_and_b32 v{ld}, 0xffff0000, v{ld}',
            f'v_mul_f32 v{rho}, v{ld}, v{lr}', f'v_mul_f32 v{rho+1}, v{ld}, v{li}',
            f'v_mul_f32 v{rho}, {fbits(LOG2E)}, v{rho}', f'v_mul_f32 v{rho+1}, {fbits(1/(2*math.pi))}, v{rho+1}']
BC_LO = 'op_sel:[0,0,0] op_sel_hi:[0,1,1]'
BC_HI = 'op_sel:[1,0,0] op_sel_hi:[1,1,1]'
NEG0 = 'neg_lo:[1,0,0] neg_hi:[1,0,0]'
SWP = 'op_sel:[1,1,0] op_sel_hi:[1,0,1] neg_lo:[1,0,0]'
def cma(dst, a, x, add):
    return [f'v_pk_fma_f32 {pr(add)}, {pr(a)}, {pr(x)}, {pr(add)} {BC_LO}', f'v_pk_fma_f32 {pr(dst)}, {pr(a)}, {pr(x)}, {pr(add)} {SWP}']

PB_ = 168
def par(b, k): return PB_ + 12 * b + k
A1, A8, A16, A128, RT, ASG = [(lambda k: (lambda b: par(b, k)))(k) for k in (0, 2, 4, 6, 8, 10)]
A512 = RT
A16S = 204
PRM = 16
def s5_prologue(late):
    P = ['L_pro_s5:'] + [srd(x, k, 0)[0][0] for x, k in ((BRE, K_BRE), (BIM, K_BIM), (LRE, K_LRE), (LIM, K_LIM), (LDT, K_LDT))]
    A = P.append
    P += ids2()
    A(f's_sub_u32 s{sU1}, s{sCG}, 9')
    A(f's_mul_i32 s{t2}, s{sU1}, 96')
    A('v_and_b32 v7, 15, v0'); A('v_lshrrev_b32 v8, 4, v0')
    A(f's_mul_i32 s{sWK}, s{sWF}, 48'); A(f's_add_u32 s{sWK}, s{sWK}, s{t2}')
    A(f's_lshl4_add_u32 s{t4}, s{sU1}, s{sRB}'); A(f's_mul_i32 s{r0}, s{t4}, 6554'); A(f's_lshr_b32 s{r0}, s{r0}, 16')
    A('v_cmp_eq_u32 vcc, 3, v8'); A(f's_lshl2_add_u32 s{t5}, s{r0}, s{sW}'); A(f'v_add_u32 v9, s{sWK}, v0'); A(f'v_lshl_add_u32 v13, s{t5}, 4, v7')
    A('v_cndmask_b32 v9, v9, v13, vcc'); A('v_min_u32 v9, 639, v9'); A('v_lshlrev_b32 v9, 1, v9')
    A(f's_mul_i32 s{r1}, s{r0}, 10'); A(f's_sub_u32 s{r1}, s{t4}, s{r1}')
    A(f's_cmp_ge_u32 s3, 6'); A(f's_cselect_b32 s{t3}, 1, 0')
    A(f's_mul_i32 s{t4}, s{t3}, 6'); A(f's_sub_u32 s{t4}, s3, s{t4}'); A(f's_lshl4_add_u32 s{t4}, s{t4}, s{t2}'); A(f's_lshl2_add_u32 s{t4}, s{sW}, s{t4}')
    A('s_cmp_lt_u32 s3, 12'); A(f's_cselect_b32 s{t4}, s{t4}, 1000')
    A(f'v_add_u32 v10, s{t4}, v8'); A('v_mul_u32_u24 v11, 1280, v10'); A('v_lshl_add_u32 v11, v7, 4, v11')
    A(f's_mov_b32 s{TSRD+2}, 819200'); A(f's_mov_b32 s{TSRD+3}, 0x20000')
    for k, s in enumerate((LRE, LIM, LDT)): A(f'global_load_ushort v{PRM+k}, v9, {sp(s)}')
    A(f's_cmp_ge_u32 s3, 6'); A(f's_cselect_b32 s{TSRD}, s{BIM}, s{BRE}'); A(f's_cselect_b32 s{TSRD+1}, s{BIM+1}, s{BRE+1}')
    for i in range(5): A(f'buffer_load_dwordx4 {q4(32+4*i)}, v11, {q(TSRD)}, 0 offen offset:{256*i}')
    P += srds([(CRE, K_CRE, 819200), (CIM, K_CIM, 819200)]) + late + srd(BRE, 0, 819200)[1] + srd(BIM, 0, 819200)[1]
    A('v_min_u32 v13, 9, v7'); A('v_lshlrev_b32 v13, 7, v13'); A(f'global_load_dword v28, v13, {sp(pDSK)}'); A(f'global_load_dword v29, v13, {sp(pB2)}')
    P += [f's_load_dword s{sTAG}, {sp(WS)}, {EPO}'] + ST('pro')
    A('s_branch L_s5')
    return P

def s5_main(early):
    P = ['L_s5:']; A = P.append
    P += [f's_mov_b32 s{sC1}, 5120', f's_mov_b32 s{sC2}, 81920', f's_mov_b32 s{sC3}, 87040', f's_mov_b32 s{sU0}, 40960']
    P += xswz(2, 12)
    A('v_lshrrev_b32 v12, 5, v0'); A('v_lshlrev_b32 v12, 4, v12'); A('v_bfe_u32 v13, v0, 3, 1'); A('v_lshl_add_u32 v12, v13, 3, v12')
    A('v_bfe_u32 v13, v0, 4, 1'); A('v_add_u32 v12, v12, v13')
    A(f's_lshl_b32 s{t4}, s{sRB}, 2'); A(f's_add_u32 s{t4}, s{t4}, s{sWT}'); A(f's_lshl_b32 s{t4}, s{t4}, 4'); A(f's_add_u32 s{t4}, s{t4}, s{sWF}'); A(f's_lshl_b32 s{t4}, s{t4}, 1')
    A(f'v_add_u32 v12, s{t4}, v12'); A('v_mul_u32_u24 v12, 1280, v12'); A('v_add_u32 v1, v2, v12')
    A(f's_lshl_b32 s{t4}, s{sW}, 3'); A('v_lshrrev_b32 v12, 3, v0'); A(f'v_add_u32 v12, s{t4}, v12'); A('v_mul_u32_u24 v12, 1280, v12'); A('v_add_u32 v206, v2, v12')
    A(f's_mul_i32 s{t4}, s{t2}, 1280'); A(f'v_add_u32 v2, s{t4}, v206')
    P += pair_swap('s5')
    S = []
    S += ['v_lshrrev_b32 v12, 1, v7', 'v_xor_b32 v12, v12, v8', 'v_lshlrev_b32 v12, 4, v12', 'v_lshl_add_u32 v12, v7, 7, v12',
          f's_lshl_b32 s{t4}, s{sWT}, 13', f's_add_u32 s{t4}, s{t4}, {SLOT0}', f'v_add_u32 v3, s{t4}, v12', 'v_xor_b32 v4, 64, v3',
          f's_mul_i32 s{t4}, s{sWF}, 6144', f's_add_u32 s{t4}, s{t4}, {SLOT0 + WOFF}', f'v_add_u32 v5, s{t4}, v12', 'v_xor_b32 v6, 64, v5']
    S += ['v_lshlrev_b32 v14, 4, v0', 'v_add_u32 v15, 4096, v14']
    S += [f's_lshl_b32 s{t4}, s{sWT}, 2', f'v_add_u32 v9, s{t4}, v8']
    SC = p2_setup(t1, t2, t4, r3) if CFG.get('thin5', True) else p2_setup(r2_, r3, r4, r5) + warm_flags()
    SC += [f's_lshl_b32 s{t1}, s{sU1}, 1', f's_add_u32 s{t1}, s{t1}, s{sWF}'] + act_offsets(t1, 'y', r3, r4)
    SC += [(f's_cmp_lt_u32 s{sWK}, 624', f's_cselect_b32 s{r5}, 0, {OOB}')] + [f's_add_u32 s{k+b}, s{k+b}, s{r5}' for k in (sHA, sHF) for b in (1, 2)]
    SC += [f's_lshl_b32 s{r3}, s{r3}, 6', f's_add_u32 s{r3}, s{r3}, {STAT}', f's_lshl_b32 s{r4}, s{sWK}, 4', f's_add_u32 s{r4}, s{r4}, {CS5}']
    if not CFG.get('thin5', True): S += SC; SC = []
    T = 56; Q_ = 64
    lr, li, ld = PRM, PRM + 1, PRM + 2
    S += rho_theta(lr, li, ld, Q_ + 8) + cpow(Q_, Q_ + 8, Q_ + 9, 1.0, T)
    def sq(dst, src): return [f'v_pk_mul_f32 {pr(T)}, {pr(src)}, {pr(src)} op_sel:[0,0] op_sel_hi:[0,1]', f'v_pk_fma_f32 {pr(dst)}, {pr(src)}, {pr(src)}, {pr(T)} {SWP}']
    S += sq(Q_+2, Q_) + sq(Q_+2, Q_+2) + sq(Q_+2, Q_+2) + sq(Q_+4, Q_+2) + sq(Q_+6, Q_+4) + sq(Q_+6, Q_+6) * 4
    k = Q_ + 10
    S += [f'v_add_f32 v{T}, -1.0, v{Q_}', f'v_mul_f32 v{T+1}, v{lr}, v{lr}', f'v_fmac_f32 v{T+1}, v{li}, v{li}', f'v_rcp_f32 v{T+1}, v{T+1}',
          f'v_mul_f32 v{k}, v{T}, v{lr}', f'v_fmac_f32 v{k}, v{Q_+1}, v{li}', f'v_mul_f32 v{k+1}, v{Q_+1}, v{lr}', f'v_fma_f32 v{k+1}, -v{T}, v{li}, v{k+1}',
          f'v_add_f32 v{T+1}, v{T+1}, v{T+1}', f'v_mul_f32 v{k}, v{k}, v{T+1}', f'v_mul_f32 v{k+1}, v{k+1}, v{T+1}',
          f'v_mov_b64 {pr(A16S)}, {pr(Q_+4)}', f's_lshl_b32 s{t4}, s{sW}, 12', 'v_mul_u32_u24 v12, 48, v0', f'v_add_u32 v12, s{t4}, v12']
    S += [f'ds_write_b128 v12, {q4(Q_+4*i)} offset:{16*i}' for i in range(3)]
    S += [f's_lshl_b32 s{t5}, s{sW}, 9', f'v_lshl_add_u32 v12, v0, 3, s{t5}', f'ds_write_b64 v12, {pr(k)} offset:16384', 'v_mul_u32_u24 v12, 48, v7', f'v_add_u32 v12, s{t4}, v12']
    S += [f'ds_read_b128 {q4(par(b, 4*i))}, v12 offset:{768*b + 16*i}' for b in range(3) for i in range(3)]
    S += ['v_and_b32 v13, 1, v8', f'v_lshl_add_u32 v231, v13, 6, s{t5}',
          'v_lshrrev_b32 v12, 1, v8', 'v_lshl_add_u32 v229, v12, 4, v7', 'v_lshlrev_b32 v229, 7, v229',
          f's_lshl_b32 s{t4}, s{sW}, 1', f'v_add_u32 v62, s{t4}, v13', 'v_lshrrev_b32 v63, 1, v7', 'v_xor_b32 v62, v62, v63', 'v_lshl_add_u32 v229, v62, 4, v229',
          'v_lshlrev_b32 v13, 8, v13', 'v_lshl_add_u32 v13, v7, 4, v13', f's_lshl_b32 s{t4}, s{r1}, 2', f'v_add_u32 v12, s{t4}, v12',
          f's_lshl2_add_u32 s{t4}, s{r0}, s{sW}', f's_mul_i32 s{t5}, s{t4}, 86', f's_lshr_b32 s{t5}, s{t5}, 8', f's_mul_i32 s{t1}, s{t5}, 3', f's_sub_u32 s{t4}, s{t4}, s{t1}',
          f's_mul_i32 s{t4}, s{t4}, 27', f's_add_u32 s{t4}, s{t4}, 1', f's_lshr_b32 s{t4}, s{t4}, 1', f's_add_u32 s{t4}, s{t4}, s{t5}',
          f's_and_b32 s{t5}, s{t4}, 7', f's_lshr_b32 s{t4}, s{t4}, 3',
          f's_lshl3_add_u32 s{t1}, s{r1}, s{t5}', f's_lshl3_add_u32 s{t1}, s{t1}, s{t4}', f's_lshl_b32 s{t1}, s{t1}, 2', f's_add_u32 s{sPUB}, s{t1}, {PF + PFY}',
          f's_mul_i32 s{t5}, s{t5}, 12', f's_add_u32 s{t4}, s{t4}, s{t5}', f's_mul_i32 s{t4}, s{t4}, 5120', f's_add_u32 s{r2_}, s{t4}, {W2F + 7*5120}',
          f's_mul_i32 s{r1}, s{r1}, {64*1280}', f's_lshl_b32 s{t4}, s{r0}, 7', f's_add_u32 s{t4}, s{t4}, s{r1}',
          (f's_cmp_lt_u32 s{r0}, 10', f's_cselect_b32 s{r0}, s{t4}, {OOB}', f's_cselect_b32 s{r2_}, s{r2_}, {OOB}', f's_cselect_b32 s{sPUB}, s{sPUB}, {OOB}'),
          f'v_add_u32 v228, s{r0}, v206', f'v_add_u32 v13, s{r2_}, v13', f's_mov_b32 s{t5}, {95*5120}']
    for u in range(2):
        S += [f'v_mul_u32_u24 v62, 52, v12', 'v_lshrrev_b32 v62, 8, v62', f'v_mul_u32_u24 v62, s{t5}, v62', f'v_lshl_add_u32 v62, v12, 10, v62', f'v_add_u32 v{(230, 255)[u]}, v62, v13', 'v_add_u32 v12, 2, v12']
    d0 = [tuple(g) for g in dma_chunk('s5', 0)]
    P += preloop(S, d0) + ST('d0') + [f'v_mov_b32 v13, s{sTAG}'] + ST('tag')
    d1 = [tuple(g) for g in dma_chunk('s5', 1)]
    NPRE = CFG.get('npre', 10)
    rl = []
    for part in range(2):
        for hi in range(2):
            rl.append((f's_add_u32 m0, s{sWL}, {20480 + 8192*part + 4096*hi}', I(f'buffer_load_dwordx4 v228, {q(CIM if part else CRE)}, {"s%d" % sU0 if hi else 0} offen lds', tag='rl')))
    T_ = ['v_mov_b32 v56, 0'] + [f'v_dot2c_f32_bf16 v56, 0x3f803f80, v{32+i}' for i in range(20)] + dpp_row_sum(56)
    T_ += ['v_mov_b32 v57, v13', f's_lshl_b32 s{t4}, s{t3}, 3', f's_add_u32 s{t4}, s{t4}, {CS5}',
          'v_lshlrev_b32 v11, 4, v10', 'v_cmp_gt_u32 vcc, 640, v10', f'v_mov_b32 v12, {OOB}', 'v_cndmask_b32 v11, v12, v11, vcc',
          ('s_mov_b32 exec_lo, 0x10001', 's_mov_b32 exec_hi, 0x10001', f'buffer_store_dwordx2 v[56:57], v11, {q(WS)}, s{t4} offen sc1', 's_mov_b64 exec, -1')]
    pre = d1
    X_, left = sprinkle(T_, pre[:NPRE], CFG.get('d1_every', 6)); P += X_ + ST('stats') + left
    P += [f'v_mov_b32 v{VX2}, v238', f'v_mov_b32 v{VW2}, v239', Wait('c0'), 's_waitcnt lgkmcnt(0)', 's_barrier'] + ST('bar') + [s5_x(0, 0), s5_b(0, 0)] + [s5_x(0, t) for t in range(1, 4)] + [s5_b(0, n) for n in range(1, 6)] + [bmp(3, 0), bmp(5, 0)]
    rp = CFG.get('rc_pos', 8)
    G, bars = s5_loop({rp: ['rl']})
    seq = [(list(g), 0) for g in pre[NPRE:]]
    for c in range(2, 11):
        if rp == c - 1: seq += [(list(g), 0) for g in rl] + [('pause', CFG.get('rc_pause', 0))]
        if c < 10: seq += [(g, bars[c-3] if c > 2 else 0) for g in dma_chunk('s5', c)]
    last = sched_dma(G, bars, 's5', seq, 48, CFG.get('rate5', 11.0))
    g_w = max(last['c9'], last['rl'] + 1, int(48 * CFG.get('p_w5', 7.6))) + 1
    pf_place(G, g_w, 48, 'pf_sf', 'f', 32, 226)
    CM = []
    KR = lambda k: 248 + 0 * k
    for u in range(2):
        D = 232 + 8 * u
        CM += [f'ds_read_b128 {q4(D+4*part)}, v229 offset:{20480 + 8192*part + 4096*u}' for part in range(2)]
    TA, TB = (220, 221, 222, 226), (227, 254, 252, 253)
    for k in range(4):
        CM += [f'ds_read_b128 {q4(248)}, v231 offset:{16384 + 384 + 16*k}']
        first = True
        for u in range(2):
            D = 232 + 8 * u
            a0, b0, a1, b1 = TA; r0_, i0, r1_, i1 = TB
            CM += [f'v_lshlrev_b32 v{a0}, 16, v{D+k}', f'v_lshlrev_b32 v{b0}, 16, v{D+4+k}', f'v_and_b32 v{a1}, 0xffff0000, v{D+k}', f'v_and_b32 v{b1}, 0xffff0000, v{D+4+k}']
            if first: CM.append(Need(q4(248))); first = False
            CM += [f'v_mul_f32 v{r0_}, v{a0}, v248', f'v_mul_f32 v{i0}, v{a0}, v249', f'v_mul_f32 v{r1_}, v{a1}, v250', f'v_mul_f32 v{i1}, v{a1}, v251',
                   f'v_fma_f32 v{r0_}, -v{b0}, v249, v{r0_}', f'v_fmac_f32 v{i0}, v{b0}, v248', f'v_fma_f32 v{r1_}, -v{b1}, v251, v{r1_}', f'v_fmac_f32 v{i1}, v{b1}, v250',
                   f'v_cvt_pk_bf16_f32 v{D+k}, v{r0_}, v{r1_}', f'v_cvt_pk_bf16_f32 v{D+4+k}, -v{i0}, -v{i1}']
    CST = [I(f'buffer_store_dwordx4 {q4(232+8*u+4*part)}, v{(230, 255)[u]}, {q(WS)}, 0 offen offset:{512*part} sc1', tag='rls') for u in range(2) for part in range(2)]
    nxt = g_rl = 40
    g_sc, left = G.place(SC, 0, thin=True); assert not left
    nxt = max(nxt, g_sc + 1)
    CSR = 208
    S = ['v_lshlrev_b32 v223, 3, v0', 'v_lshlrev_b32 v224, 4, v7', f'v_add_u32 v225, s{r5}, v224', (f's_cmp_eq_u32 s{r5}, 0', f's_cselect_b32 s{t4}, s{sTAG}, 0', f'v_mov_b32 v222, s{t4}')]
    nxt, left = G.place(S, nxt, budget=1); assert not left
    ld = [f'buffer_load_dwordx2 v[220:221], v223, {q(WS)}, s{r3} offen sc1'] + \
         [f'buffer_load_dwordx4 {q4(CSR+4*b)}, v{224 if b == 0 else 225}, {q(WS)}, s{r4} offen offset:{256*b} sc1' for b in range(3)]
    ld = [I(x, tag='ext') for x in ld]
    nxt, left = G.place(ld, max(nxt, int(48 * CFG.get('p_ext', 4.0))), step=2*CFG.get('ext_step', 4), budget=1); assert not left
    S = check('ext5', ld, tagacc(12, [221] + [CSR+1+2*k for k in range(6)], [13, 13, 13, 222, 222, 222, 222]), ['v_cmp_ne_u32 vcc, 0, v12'])
    E16 = 8192; GX = 65536
    S += ['v_and_b32 v221, 0xffff0000, v220', 'v_rcp_f32 v221, v221', 'v_lshlrev_b32 v220, 16, v220', 'v_and_b32 v12, 7, v0', 'v_bfe_u32 v11, v0, 3, 1', 'v_lshl_add_u32 v11, v12, 1, v11',
          'v_lshl_add_u32 v11, v8, 4, v11', f's_lshl_b32 s{r0}, s{sW}, 9', f's_add_u32 s{r0}, s{r0}, 37376', f'v_lshl_add_u32 v11, v11, 2, s{r0}',
          'ds_write_b32 v11, v220', 'ds_write_b32 v11, v221 offset:256', f'v_lshl_add_u32 v206, v8, 6, s{r0}',
          f's_mul_i32 s{r0}, s{sWF}, 384', f's_add_u32 s{r0}, s{r0}, {E16}', f'v_lshl_add_u32 v11, v7, 3, s{r0}',
          'v_mul_u32_u24 v12, 768, v9', 'v_add_u32 v12, v12, v11', 'v_lshl_add_u32 v10, v8, 7, v11',
          f's_mul_i32 s{r0}, s{sRB}, {EST_STRIDE}', f's_mul_i32 s{r1}, s{sU1}, 768', f's_add_u32 s{r1}, s{r1}, {EST}', f's_add_u32 s{r1}, s{r1}, s{r0}',
          f's_mul_i32 s{r0}, s{sWF}, 384', f's_add_u32 s{r0}, s{r0}, s{r1}', (f's_cmp_eq_u32 s{sWT}, 0', f's_cselect_b32 s{r0}, s{r0}, {OOB}'),
          f's_add_u32 s{r2_}, s{sW}, 1', f's_mul_i32 s{r3}, s{r2_}, {EST_STRIDE}', f's_sub_u32 s{r1}, s{r1}, s{r3}', f's_sub_u32 s{r2_}, s{sRB}, s{r2_}',
          f's_mul_i32 s{r3}, s{sW}, 768', f's_add_u32 s{r3}, s{r3}, {GX}', f'v_add_u32 v207, s{r3}, v14', 'v_lshlrev_b32 v223, 3, v0',
          'v_lshrrev_b32 v224, 8, v13', 'v_mul_u32_u24 v225, 768, v8', f'v_add_u32 v225, {GX - E16}, v225', 'v_add_u32 v225, v225, v11']
    direct = CFG.get('est') == 'direct'
    if direct:
        S = S[:-3] + [f's_lshl_b32 s{r1}, s{sWK}, 3', f's_add_u32 s{r1}, s{r1}, {EST}', f's_sub_u32 s{r3}, s{sRB}, 1', f'v_sub_u32 v225, s{r3}, v8', f's_mov_b32 s{r3}, {EST_STRIDE}', 'v_lshlrev_b32 v207, 3, v7']
        PAS = [f'v_mov_b32 v240, {OOB}', 'v_mov_b32 v241, 0xff']
        for k in range(4):
            PAS += [f'v_cmp_le_i32 vcc, {4*k}, v225', f'v_subrev_u32 v{232+k}, {4*k}, v225', f'v_mad_u32_u24 v{232+k}, v{232+k}, s{r3}, v207',
                    f'v_cndmask_b32 v{236+k}, 0, v241, vcc', f'v_cndmask_b32 v{232+k}, v240, v{232+k}, vcc']
    nxt, left_ext = G.place(S, nxt + 44, budget=1)
    WL = w2f_loads(CFG.get('wrot', 3))
    g3, WL = G.place(WL, g_w, step=CFG.get('w_step5', 4), budget=2)
    if CFG.get('stg5', 'pre') == 'loop': g3, left = G.place(stage_small(228), bars[8] + 1); left_ext += left
    g3, left = G.place(p2_setup_v() + [f'ds_read_b128 {q4(112+4*i)}, v206 offset:{16*i}' for i in range(4)], 457); left_ext += left
    g3, cm_left = G.place(CM, max(bars[rp], nxt, g_w, last['c9']) + 1)
    if not cm_left: g3, CST = G.place(CST, g3 + 1, step=CFG.get('cst_step', 4), budget=3)
    print('cm left', len(cm_left), len(CST), g3, file=sys.stderr)
    PUBY = [f'v_mul_u32_u24 v130, {PFS}, v0', Wait('rls')] + pf_publish(sPUB, False, 130)
    py_at = CFG.get('py_at', 't3' if CST else 'pub')
    print('s5: last dma gap', last['c9'], 'rl done', g_rl, 'sc', g_sc, 'ext done', nxt, 'left', len(left_ext), 'w2f left', len(WL), file=sys.stderr)
    assert len(WL) >= 25
    P += G.emit() + left_ext + ST('loop')
    E = []; B = E.append
    NM, R = 112, 128
    E += [f'ds_read_b128 {q4(R+4*i)}, v206 offset:{256+16*i}' for i in range(4)]
    U = lambda b, part, j: s5_acc(2 * b + part, j >> 1) + 2 * (j & 1)
    st = lambda k, b, part: 144 + 12 * k + 4 * b + 2 * part
    def step(b, sre, sim, ure, uim, dre, dim, a=None):
        a = pr(A1(b) if a is None else a)
        return [f'v_pk_fma_f32 {pr(dre)}, {a}, {pr(sre)}, {pr(ure)} {BC_LO}', f'v_pk_fma_f32 {pr(dim)}, {a}, {pr(sim)}, {pr(uim)} {BC_LO}',
                f'v_pk_fma_f32 {pr(dre)}, {a}, {pr(sim)}, {pr(dre)} {BC_HI} {NEG0}', f'v_pk_fma_f32 {pr(dim)}, {a}, {pr(sre)}, {pr(dim)} {BC_HI}']
    for b in range(3):
        for part in range(2):
            E += [f'v_pk_fma_f32 {pr(U(b,part,j))}, {pr(CSR+4*b+2*part)}, {pr(NM+2*j)}, {pr(U(b,part,j))} {BC_LO}' for j in range(8)]
            E += [f'v_pk_mul_f32 {pr(U(b,part,j))}, {pr(U(b,part,j))}, {pr(R+2*j)}' for j in range(8)]
        for j in range(1, 8):
            s = (U(b, 0, 0), U(b, 1, 0)) if j == 1 else (st(j & 1 ^ 1, b, 0), st(j & 1 ^ 1, b, 1))
            E += step(b, s[0], s[1], U(b, 0, j), U(b, 1, j), st(j & 1, b, 0), st(j & 1, b, 1))
        re, im, e, a8 = st(1, b, 0), st(1, b, 1), st(0, b, 0), A8(b)
        E += [f'v_fma_f32 v{e}, v{a8}, v{re}, v{re+1}', f'v_fma_f32 v{e+1}, v{a8}, v{im}, v{im+1}',
              f'v_fma_f32 v{e}, -v{a8+1}, v{im}, v{e}', f'v_fma_f32 v{e+1}, v{a8+1}, v{re}, v{e+1}', f'ds_write_b64 v12, {pr(e)} offset:{128*b}']
    nw = min(CFG.get('s5_w1', 0), len(WL) - 25)
    E, _ = sprinkle(E, WL[:nw], 20); WL = _ + WL[nw:]
    P += E
    P += ['s_waitcnt lgkmcnt(0)', 's_barrier'] + ST('t1')
    PB = 112
    P += [f'ds_read_b64 {pr(PB+2*k)}, v10 offset:{768*k}' for k in range(8)]
    for k in range(0 if direct else 4):
        P += [f's_sub_u32 s{32+k}, s{r1}, {4*k*EST_STRIDE}', f's_cmp_ge_i32 s{r2_}, {4*k}', f's_cselect_b32 s{32+k}, s{32+k}, {OOB}', f's_cselect_b32 s{36+k}, 0xff, 0']
    P += [f's_mov_b32 s{t3}, 0xff']
    for k in range(1, 8): P += cma(PB + 2*k if k < 7 else 128, A16S, PB + 2*k - 2, PB + 2*k)
    P += [f'v_bfi_b32 v128, s{t3}, v13, v128', f'v_bfi_b32 v129, s{t3}, v224, v129',
          's_mov_b32 exec_hi, 0xffff', f'buffer_store_dwordx2 v[128:129], v223, {q(WS)}, s{r0} offen sc1', 's_mov_b32 exec_hi, -1']
    P += ST('pub') + cm_left + CST + (PUBY if py_at == 'pub' else []) + PAS
    PD = 228
    ld = [('s_mov_b32 exec_hi, 0xffff',) + tuple(f'buffer_load_dwordx4 {q4(PD+4*k)}, v14, {q(WS)}, s{32+k} offen sc1' for k in range(4)) + ('s_mov_b32 exec_hi, -1',)]
    acc = []
    for k in range(4):
        a = PD + 4 * k
        acc += [f'v_xor_b32 v130, v13, v{a}', f'v_bitop3_b32 v130, v130, v{a+1}, v224 bitop3:0xf6', f'v_bitop3_b32 v130, v130, v{a+2}, v13 bitop3:0xf6', f'v_bitop3_b32 v130, v130, v{a+3}, v224 bitop3:0xf6',
                f'v_and_b32 v131, s{36+k}, v130' if k == 0 else f'v_and_or_b32 v131, v130, s{36+k}, v131']
    pd = lambda k, b: 208 + 6 * k + 2 * b if k < 2 else 132 + 6 * (k - 2) + 2 * b
    if direct:
        pd = lambda k, b: 208 + 6 * k + 2 * b if k < 2 else 240 + 6 * (k - 2) + 2 * b
        ld = [f'buffer_load_dwordx2 {pr(pd(k, b))}, v{232+k}, {q(WS)}, s{r1} offen offset:{128*b} sc1' for k in (3, 2, 1, 0) for b in range(3)]
        acc = []
        for k in (3, 2, 1, 0):
            acc += [f'v_xor_b32 v130, v13, v{pd(k,0)}'] + [f'v_bitop3_b32 v130, v130, v{pd(k,0)+i}, v{224 if i & 1 else 13} bitop3:0xf6' for i in range(1, 6)]
            acc += [f'v_and_b32 v131, v{236+k}, v130' if k == 3 else f'v_and_or_b32 v131, v130, v{236+k}, v131']
    E = []
    PFX = lambda b: st(0, b, 1)
    eb = lambda k, b: PB + 6 * (k % 3) + 2 * b
    E += [f'ds_read_b64 {pr(eb(k,b))}, v11 offset:{768*k + 128*b}' for k in range(3) for b in range(3)]
    for b in range(3): E += [f'v_mov_b32 v{PFX(b)}, 0', f'v_mov_b32 v{PFX(b)+1}, 0']
    MK = [('0xffff0000', '-1'), ('0', '-1'), ('0', '0xffff0000'), ('0', '0')]
    for k in range(7):
        lo, hi = MK[k & 3]
        sel = (lambda m: f'-1, {m}') if k < 4 else (lambda m: f'{m}, 0')
        grp = [f's_cmp_eq_u32 s{sWT}, 1', f's_cselect_b32 exec_lo, {sel(lo)}', f's_cselect_b32 exec_hi, {sel(hi)}']
        x = [cma(PFX(b), A16(b), PFX(b), eb(k, b)) for b in range(3)]
        grp += [y[0] for y in x] + [y[1] for y in x] + ['s_mov_b64 exec, -1']
        E.append(tuple(grp))
        if k + 3 < 7: E += [f'ds_read_b64 {pr(eb(k+3,b))}, v11 offset:{768*(k+3) + 128*b}' for b in range(3)]
    NPFX = len(E)
    E += ['v_lshlrev_b32 v142, 4, v9', 'v_cvt_f32_u32 v142, v142', 'v_lshlrev_b32 v143, 7, v8', 'v_cvt_f32_u32 v143, v143']
    for b in range(3):
        E += cpow(ASG(b), RT(b), RT(b) + 1, 'v142', 140) + cpow(A512(b), RT(b), RT(b) + 1, 'v143', 140)
    E += [f's_mul_i32 s{t4}, s{sW}, 15360', 'v_mul_u32_u24 v10, 144, v7', 'v_lshl_add_u32 v10, v8, 5, v10', f'v_add_u32 v10, s{t4}, v10',
          'v_bfe_u32 v12, v0, 2, 2', 'v_lshl_add_u32 v11, v8, 3, v12', 'v_mul_u32_u24 v11, 144, v11', 'v_and_b32 v12, 3, v0', 'v_lshl_add_u32 v11, v12, 3, v11', f'v_add_u32 v11, s{t4}, v11']
    gl = [f's_buffer_load_dword s{24+2*k+h}, {q(WS)}, s{32+k} offset:{384*h + 128*((k+h)%3)} glc' for k in range(4) for h in range(2)]
    tst = []
    for k in range(4):
        tst += [f's_xor_b32 s{24+2*k}, s{24+2*k}, s{sTAG}', f's_xor_b32 s{25+2*k}, s{25+2*k}, s{sTAG}', f's_or_b32 s{24+2*k}, s{24+2*k}, s{25+2*k}', f's_and_b32 s{24+2*k}, s{24+2*k}, s{36+k}']
    tst += ['s_or_b32 s24, s24, s26', 's_or_b32 s28, s28, s30', 's_or_b32 s24, s24, s28', 's_cmp_eq_u32 s24, 0']
    nw = min(CFG.get('s5_w2', 6), len(WL) - 25)
    sg_ = CFG.get('stg5', 'pre')
    eg = CFG.get('eg', True)
    E1, _ = sprinkle(E[:NPFX], WL[:nw], CFG.get('s5_w2e', 14))
    E2, _ = sprinkle(E[NPFX:], _, CFG.get('s5_w2e', 14)); WL = _ + WL[nw:]
    P += (stage_small(140) if sg_ == 'pre' else []) + E1 + (gl if eg else []) + (stage_small(140) if sg_ == 'mid' else []) + E2 + ST('pl0') + (gate('eg', gl, tst) if eg else []) + ld + (stage_small(130 if direct else 140) if sg_ == 'poll' else []) + WL[:len(WL) - 25] + [fl_load(0)] + ST('t2'); WL = WL[-25:]
    if direct:
        P += check('est', ld, acc, ['v_cmp_ne_u32 vcc, 0, v131']) + (PUBY if py_at == 't3' else []) + ST('t3')
    else:
        P += check('est', ld, acc + ['v_cmp_ne_u32 vcc, 0, v131'], [f's_and_b32 vcc_hi, vcc_hi, 0xffff', 's_cmp_eq_u64 vcc, 0'])
        P += ['s_mov_b32 exec_hi, 0xffff'] + [f'ds_write_b128 v207, {q4(PD+4*k)} offset:{3072*k}' for k in range(4)] + ['s_mov_b32 exec_hi, -1', 's_waitcnt lgkmcnt(0)', 's_barrier']
        P += ST('t3') + [f'ds_read_b64 {pr(pd(k, b))}, v225 offset:{3072*k + 128*b}' for k in (3, 2, 1, 0) for b in range(3)]
    E = []
    for k in (2, 1, 0):
        x = [cma(pd(k, b), A128(b), pd(k+1, b), pd(k, b)) for b in range(3)]
        E += [y[0] for y in x] + [y[1] for y in x]
    Z = 112
    for b in range(3):
        E += [f'v_pk_mul_f32 {pr(Z+2*b)}, {pr(A512(b))}, {pr(pd(0,b))} op_sel:[0,0] op_sel_hi:[0,1]']
    for b in range(3):
        E += [f'v_pk_fma_f32 {pr(Z+2*b)}, {pr(A512(b))}, {pr(pd(0,b))}, {pr(Z+2*b)} {SWP}']
    for sw in ('v_permlane16_swap_b32', 'v_permlane32_swap_b32'):
        E += [f'v_mov_b64 {pr(Z+6+2*b)}, {pr(Z+2*b)}' for b in range(3)]
        E += [f'{sw} v{Z+i}, v{Z+6+i}' for i in range(6)]
        E += [f'v_pk_add_f32 {pr(Z+2*b)}, {pr(Z+2*b)}, {pr(Z+6+2*b)}' for b in range(3)]
    PK, FG = 124, 208
    for b in range(3):
        E += cma(PFX(b), ASG(b), Z + 2*b, PFX(b))
        re, im, a8, ca = st(1, b, 0), st(1, b, 1), A8(b), PFX(b)
        E += [f'v_fma_f32 v{re+1}, v{a8}, v{ca}, v{re}', f'v_fma_f32 v{im+1}, v{a8}, v{ca+1}, v{im}',
              f'v_fma_f32 v{re+1}, -v{a8+1}, v{ca+1}, v{re+1}', f'v_fma_f32 v{im+1}, v{a8+1}, v{ca}, v{im+1}',
              f'v_mov_b32 v{re}, v{ca}', f'v_mov_b32 v{im}, v{ca+1}']
    E += [f'v_mov_b64 {pr(140+2*b-2)}, {pr(A1(b))}' for b in (1, 2)] + ST('z')
    P += E; E = []
    A1x = lambda b: A1(0) if b == 0 else 138 + 2*b
    def stores(b):
        fg = FG + 16 * (b & 1)
        return [I(f'buffer_store_dwordx4 {q4(fg+4*tb)}, v14, {q(WS)}, s{sHA+b} offen offset:{1024*tb} sc1', tag=f'h{b}') for tb in range(4)]
    for b in range(3):
        for j in range(8):
            s = (st(1, b, 0), st(1, b, 1)) if j == 0 else (U(b, 0, j - 1), U(b, 1, j - 1))
            E += step(b, s[0], s[1], U(b, 0, j), U(b, 1, j), U(b, 0, j), U(b, 1, j), A1x(b))
            if j & 1:
                E += [f'v_cvt_pk_bf16_f32 v{PK+8*part+4*sub+j//2}, v{U(b,part,j-1)+sub}, v{U(b,part,j)+sub}' for part in range(2) for sub in range(2)]
            if j == 3 and b > 0: E += stores(b - 1) + ST(f'hb{b-1}')
        E += [f'ds_write_b128 v10, {q4(PK+8*part+4*sub)} offset:{2304*part + 16*sub}' for part in range(2) for sub in range(2)]
        fg = FG + 16 * (b & 1)
        E += [f'ds_read_b64_tr_b16 {pr(fg+4*tb+2*u)}, v11 offset:{576*u + 32*tb}' for tb in range(4) for u in range(2)]
    k = next(i for i, x in enumerate(E) if isinstance(x, I) and x.tag == 'h0')
    E1, left = sprinkle(E[:k], early[1], CFG.get('early_e', 8))
    P += early[0] + E1 + left + E[k:] + stores(2) + ST('t4')
    return P, WL, [[Wait(f'h{b}'), flag8(sHF + b)] for b in range(3)]

SYS = 0
CLS = 40960
NS = 12
STAGES = [(0, 0, 2), (0, 2, 4), (0, 4, 7), (1, 0, 7), (0, 7, 12), (1, 7, 12)]
FB = 24
AA, AB, RING = 16, 96, 176
def fl_load(k):
    h, a, b = STAGES[k]; base = FB + 8 * (k == 5)
    if afm()[1] == 7: return tuple(f's_buffer_load_dword s{base+i-a}, {q(WS)}, s{sFL2 if h else sFL} offset:{128*i} glc' for i in range(a, b))
    return (f's_buffer_load_dwordx8 s[{base}:{base+7}], {q(WS)}, s{sFL2 if h else sFL} offset:{4*a} glc',)
def fl_check(name, k):
    h, a, b = STAGES[k]; base = FB + 8 * (k == 5)
    pre = [('s_cmp_lg_u32 s3, 0', f's_cselect_b32 s{base+6-a}, s{sTAG}, s{base+6-a}')] if a <= 6 < b else []
    return check_s(f'{name}_a{k}', fl_load(k), list(range(base, base + b - a)), pre, sleep=CFG.get('af_sleep', 0))
SETS = {3: (AB, AB + 20), 4: (AB + 40, AB + 60), 5: (AB, AB + 40)}
def mfma_order():
    L = []
    for i in range(4): L += [(0, i, t, j, AA + 20*t + 4*j, i == 0) for t in range(4) for j in range(5)]
    for t in (1, 2, 3, 0): L += [(0, i, t, j, AA + 20*t + 4*j, False) for i in range(4, 7) for j in range(5)]
    for k in (3, 4, 5):
        h, a, b = STAGES[k]
        for p in range(4): L += [(h, i, 3 - p, j, SETS[k][p & 1] + 4*j, p == 0 and i == a) for j in range(5) for i in range(a, b)]
    return L
PRE = [q4(RING + 4*k) for k in range(8)] + [q4(240 + 4*k, 'a') for k in range(4)]
def a_plan(npre, name):
    M = mfma_order()
    fu = {}; lu = {}; wl = {}
    for g, (h, i, t, j, d, f) in enumerate(M):
        fu.setdefault((h, i, t), g); lu[h, i, t] = g; wl[i, j] = g
    GR = sorted(fu, key=lambda x: fu[x])
    areg = {}; agap = {}
    free = [(q4(RING + 32 + 4*k), -1, CFG.get('v_end', 330)) for k in range(4)] + [(q4(AB + 40 + 4*k), -1, 270) for k in range(10)]
    free += [(q4(20*i + 4*j, 'a'), wl[i, j], 999) for i in range(7) for j in range(5)]
    prev = CFG.get('a_first_' + name, 4 if name == 'ff' else 14) - CFG.get('a_pace', 4)
    for n, gr in enumerate(GR):
        if n < 12: reg, av, lim = PRE[n], -1, (999 if n >= 8 else CFG.get('v_end', 330))
        else:
            cand = sorted((x for x in free if x[2] > lu[gr]), key=lambda x: x[1])
            reg, av, lim = cand[0]; free.remove(cand[0])
        if n >= npre:
            la = CFG.get('la1', 56) if n <= 16 else CFG.get('la2', 75)
            if n == 56: la = CFG.get('la_y', 66)
            g = max(prev + CFG.get('a_pace', 4), fu[gr] - la, av)
            agap[gr] = g; prev = g
            assert g + 16 < fu[gr], (gr, g, fu[gr])
        areg[gr] = reg
        free.append((reg, lu[gr], lim))
    return M, GR, fu, areg, agap
def a_load(areg, gr, n):
    h, i, t = gr
    g = [f's_add_u32 s{t1}, s{sAown if h else sA}, {4096*i}'] if (n >= 16 or t == 0) else []
    if i == 6: g.append(f's_or_b32 s{t1}, s{t1}, s3')
    return g + [f'buffer_load_dwordx4 {areg[gr]}, v{1+t}, {q(WS)}, s{t1} offen sc1']
def p2_first(name, npre):
    M, GR, fu, areg, agap = a_plan(npre, name)
    return (fl_check(name, 0) if name == 'ff' else check_s('sy_a01', fl_load(0), list(range(FB, FB + (4 if npre > 8 else 2))))) + ST('a0'), [tuple(a_load(areg, GR[n], n)) for n in range(npre)]

def phase2(name, npre, WL, flags):
    P = []; A = P.append
    M, GR, fu, areg, agap = a_plan(npre, name)
    NG = 40 * NS
    SK = 224; RAW = 244
    def unpack(dst, src, n): return [x for k in range(n) for x in (f'v_lshlrev_b32 v{dst+2*k}, 16, v{src+k}', f'v_and_b32 v{dst+2*k+1}, 0xffff0000, v{src+k}')]
    nw0 = len(WL) - 25
    if name == 'ff' and CFG.get('stg', 'tail') == 'p2': P += stage_small(224)
    P += WL[:nw0]; WL = WL[nw0:]
    k0 = 1 if npre <= 8 else 2
    def x_read(dst, va): return [f'ds_read_b64 {pr(dst+4*j+2)}, v{va} offset:{32*j}' for j in range(5)]
    def x_unp(dst, j): a = dst + 4*j; return [f'v_lshlrev_b32 v{a}, 16, v{a+2}', f'v_and_b32 v{a+1}, 0xffff0000, v{a+2}', f'v_lshlrev_b32 v{a+2}, 16, v{a+3}', f'v_and_b32 v{a+3}, 0xffff0000, v{a+3}']
    sl = [f'buffer_load_dwordx2 v[254:255], v12, {q(WS)}, s{sSTO} offen sc1']
    EN = ['v_and_b32 v12, 15, v0', 'v_lshrrev_b32 v11, 4, v0', 'v_lshlrev_b32 v11, 3, v11', f's_mul_i32 s{r0}, s{sW}, 3072', f's_add_u32 s{r0}, s{r0}, {XL}', f'v_add_u32 v8, s{r0}, v11',
          'v_mul_u32_u24 v5, 160, v12', 'v_add_u32 v6, v5, v8', 'v_lshlrev_b32 v12, 3, v12', f'v_add_u32 v254, s{r0}, v12', Wait('xd'), 'ds_read_b64 v[254:255], v254 offset:2880'] + x_read(SK, 6)
    EN += [f'ds_read_b64 {pr(AB+4*j+2)}, v8 offset:{2720 + 32*j}' for j in range(5)] + [f'ds_read_b64 {pr(RAW+2*j)}, v8 offset:{2560 + 32*j}' for j in range(5)]
    pl = [f's_buffer_load_dwordx4 s[{FB+8+4*k}:{FB+11+4*k}], {q(WS)}, s{sPFy} offset:{256*k} glc' for k in range(2)] + [f's_buffer_load_dword s{sHA+k}, {q(WS)}, s{sPFy} offset:{256*k+16} glc' for k in range(2)]
    kp = CFG.get('kp_' + name, 1)
    if kp == k0: P += pl
    if kp == 0:
        ch, last_ = chain(list(range(FB + 8, FB + 16)) + [sHA, sHA + 1])
        nwy = CFG.get('nwy', 6)
        P += pl + flat(flags[0]) + gate(f'{name}_py', pl, ch + [last_]) + WL[:nwy]; WL = WL[nwy:]; flags = [[]] + flags[1:]; w0 = CFG.get('p2_wfirst', 22)
    P += ([fl_load(k0)] + flat(flags[0]) + EN if (name == 'sy' or CFG.get('stg', 'tail') == 'p2') else EN + [fl_load(k0)] + flat(flags[0])) + ST('a1')
    flags = flags[1:]
    G = Gaps3(2, 2)
    last_of = {}
    for g, (h, i, t, j, d, first) in enumerate(M):
        c = q4(d) if (not first or (h, i) == (1, 0)) else (q4(SK + 4*j) if (h, i) == (1, 7) else '0')
        G.add(f'v_mfma_f32_16x16x32_bf16 {q4(d)}, {q4(20*i+4*j, "a")}, {areg[h, i, t]}, {c}')
        if g % 20 == 0: G.fixed(g, ST(f's{g//20}'))
        last_of[h, i >= 7, t, j] = g
    for n, gr in enumerate(GR):
        h, i, t = gr
        if n < 28:
            if fu[gr] > 0: G.need(fu[gr] - 1, Need(areg[gr] + ' ' + q4(20*i+16, 'a')))
        elif i in (0, 7): G.need(fu[gr] - 1, Need(areg[h, 6 if i == 0 else 11, t] + ' ' + q4(236 if i == 7 else 0, 'a')))
    pg = -1
    for n, gr in enumerate(GR):
        if gr not in agap: continue
        g = agap[gr]; L = a_load(areg, gr, n)
        if len(L) == 3: G.fixed(g - 1, L[:2], 'post')
        elif len(L) == 2: G.scalar_before(g, L[0], pg)
        G.fixed(g, L[-1:]); pg = g
    ph = 0; win = {}
    for k in (3, 4, 5):
        h, a, b = STAGES[k]; n = b - a
        tid = str(k) in CFG.get('tid', '')
        for p in range(3):
            for j in range(5):
                e = last_of[h, a >= 7, 3 - p, j]; off = 20480 * (ph & 1) + 1024 * j
                src = SETS[k][p & 1] + 4*j; dst = SETS[k][(p + 1) & 1] + 4*j
                if tid:
                    W = [I(f'ds_write_addtid_b32 v{src+r} offset:{off + 256*r}', tag=f'sw{ph}{j}') for r in range(4)]
                    R = [f'ds_read2st64_b32 {pr(dst+2*r)}, v6 offset0:{off//256 + 2*r} offset1:{off//256 + 2*r + 1}' for r in range(2)]
                else:
                    W = [I(f'ds_write_b128 v11, {q4(src)} offset:{off}', tag=f'sw{ph}{j}')]
                    R = [f'ds_read_b128 {q4(dst)}, v7 offset:{off}']
                gw, left = G.place(W, e + CFG.get('sy_w', 4)); assert not left
                gb = gw + CFG.get('sy_b', 3 if tid else 4)
                if CFG.get('bar_split', True):
                    gb += 1
                    while G.g[gb]['mem'] or G.g[gb]['used'] > 0 or G.g[gb]['fs'] or G.g[gb-1]['first']: gb += 1
                    G.need(gb - 1, Wait(f'sw{ph}{j}')); G.g[gb]['first'].append('s_barrier'); G.g[gb]['fs'] = True; G.g[gb]['used'] += 1; G.g[gb]['nomem'] = True
                else:
                    while G.g[gb]['used'] > 0: gb += 1
                    G.need(gb, Wait(f'sw{ph}{j}')); G.fixed(gb, ['s_barrier'], 'pre'); G.g[gb]['used'] = 2
                gr_, left = G.place(R, gb + 1); assert not left
                use = e + 1 + 4 * n
                assert gr_ + 4 < use, (k, p, j, gr_, use)
                G.need(min(use - 1, gr_ + 7) if (p, j) == (2, 4) else use - 1, Need(q4(dst)))
                if (p, j) == (2, 4): win[k] = [gr_ + 8]
                if (p, j) == (0, 0) and k > 3: win[k-1].append(gb - 2)
            ph += 1
    first_of = lambda k: min(g for (h, i, t), g in agap.items() if h == STAGES[k][0] and STAGES[k][1] <= i < STAGES[k][2])
    for fl, gf in zip(flags, CFG.get('f2_gaps', (30, 58))):
        gf, left = G.place(fl, gf, budget=3); assert not left and gf < first_of(4) - 20
    pchk = -1
    for k in range(k0, 4):
        gl = first_of(k)
        ck = fl_check(name, k)
        g0 = max(0, gl - 3 - int(1.6 * len(ck)))
        assert g0 > pchk, (k, g0, pchk)
        if k > k0:
            gq = max(pchk + 1, g0 - CFG.get('fl_lead', 28))
            for z, x in enumerate(fl_load(k)): G.fixed(gq + z // 2, [x])
            if k == kp: G.fixed(gq, pl[:1]); G.fixed(gq + 1, pl[1:])
        pchk, left = G.place(ck, g0, budget=2); assert not left and pchk < gl, (k, pchk, gl)
        if k == k0: g_k0 = pchk
        if k == kp:
            ch, last_ = chain(list(range(FB + 8, FB + 16)) + [sHA, sHA + 1])
            w0, left = G.place(gate(f'{name}_py', pl, ch + [last_]), pchk + 1, budget=2); assert not left
    gl = first_of(4)
    g_yfl = gl - 8 - CFG.get('yfl_lead', 34)
    if name == 'sy' or CFG.get('yf_vec'):
        g, left = G.place([f'buffer_load_dword v9, v9, {q(WS)}, 0 offen offset:{7 << afm()[1]} sc1'], g_yfl); assert not left
        G.need(gl - 7, Need('v9')); g, left = G.place([f'v_cmp_ne_u32 vcc, s{sTAG}, v9'], gl - 7); assert not left
        assert g + 1 < gl
        G.fixed(gl - 1, [f's_cbranch_vccnz L_spin_{name}_yf', f'L_ret_{name}_yf:'], 'post')
    else:
        G.fixed(gl - 1, [f's_branch L_spin_{name}_yf', f'L_ret_{name}_yf:'], 'post')
    ch, last_ = chain(list(range(FB, FB + 5)) + list(range(FB + 8, FB + 13)))
    SPINS.append([f'L_spin_{name}_yf:', f's_mov_b32 s{t5}, 0', f'L_spinl_{name}_yf:', *fl_load(4), *fl_load(5), 's_waitcnt lgkmcnt(0)', f's_add_u32 s{t5}, s{t5}, 1', f's_cmp_gt_u32 s{t5}, {SPIN_MAX*2}',
                  f's_cbranch_scc1 L_ret_{name}_yf'] + flat(ch) + [last_, f's_cbranch_scc0 L_spinl_{name}_yf', f's_branch L_ret_{name}_yf'])
    gi = w0 + 1
    for m, w in enumerate(WL):
        k = int(w[-1].tag[1:])
        gi, left = G.place([w], gi, budget=2); assert not left
        assert gi + CFG.get('w_marg', 36) < (280 if k >= 35 else fu[0, k // 5, 0 if k < 20 else 1]), ('weight load too late', k, gi)
        gi += max(2, min(CFG.get('p2_wstep', 14), (CFG.get('w_end', 236) - gi) // max(1, len(WL) - m - 1)))
    S = [f's_add_u32 s{r1}, s{sW}, 1', f's_and_b32 s{r1}, s{r1}, 3', f's_mul_i32 s{r0}, s{r1}, 3072', f's_add_u32 s{r0}, s{r0}, {XL}', f'v_add3_u32 v5, v5, v11, s{r0}',
         f's_sub_u32 s{r1}, s{sW}, 1', f's_and_b32 s{r1}, s{r1}, 3',
         *(['v_mul_u32_u24 v10, 160, v12', f'v_add3_u32 v10, v10, v11, s{sOO}', 'v_lshlrev_b32 v10, 1, v10'] if not CFG.get('otr', True) else []),
         f's_mul_i32 s{r0}, s{r1}, 5120', f'v_add_u32 v7, s{r0}, v14', f'v_lshl_add_u32 v6, v0, 2, s{r0}', f's_mul_i32 m0, s{sW}, 5120', 'v_add_u32 v11, m0, v14',
         'v_and_b32 v9, 7, v0', 'v_min_u32 v9, 4, v9', f'v_lshl_add_u32 v9, v9, {afm()[1]}, s{sFL}', 'v_and_b32 v8, 8, v0', f'v_lshlrev_b32 v8, {afm()[0]}, v8', 'v_xor_b32 v9, v9, v8',
         f's_mul_i32 s{r0}, s{sW}, 15360', f'v_add_u32 v8, s{r0}, v14',
         f's_mov_b32 s{r2_}, 0x07060100', f's_add_u32 s{r1}, s{sXI}, 3072', f's_add_u32 s{r4}, s{sXO}, 3072', f's_mov_b32 s{t2}, {fbits(-LOG2E)}', f's_mov_b32 s{t3}, {fbits(-LOG2E)}']
    nxt, left = G.place(S, 0); assert not left and nxt < g_yfl
    nxt = max(nxt, g_k0 + 1)
    g_b0, left = G.place(['s_barrier'], CFG.get('bar0', 86)); assert not left
    g = g_b0 + 1.0; gcb = {}
    for t in range(1, 4):
        for j in range(5):
            g = max(g, last_of[0, False, t, j] + 5)
            nx2, left = G.place([I(f'ds_write_b128 v8, {q4(AA + 20*t + 4*j)} offset:{CLS + (t-1)*5120 + 1024*j}', tag=f'cw{t}')], int(g)); assert not left
            g = max(g, nx2) + CFG.get('red_step', 2.0)
        if t > 1:
            gb = nx2 + 5
            while G.g[gb]['used'] > 0: gb += 1
            G.need(gb, Wait(f'cw{t}')); G.fixed(gb, ['s_barrier'], 'pre'); G.g[gb]['used'] = 2; gcb[t] = gb
    gcb[1] = gcb[2]; g_b1 = gcb[3]
    S = check(f'{name}_st', sl, [], [f'v_cmp_ne_u32 vcc, s{sTAG}, v255'])
    S += ['v_and_b32 v255, 0xffff0000, v254', 'v_rcp_f32 v255, v255', 'v_lshlrev_b32 v254, 16, v254', 'v_mul_f32 v254, v254, v255']
    for j in range(5): S += x_unp(SK, j) + [f'v_fma_f32 v{SK+4*j+r}, v{SK+4*j+r}, v255, v254' for r in range(4)]
    for k in range(20): S += [f'v_and_b32 v12, 0xffff0000, v{RAW+k//2}' if k & 1 else f'v_lshlrev_b32 v12, 16, v{RAW+k//2}', f'v_mul_f32 v{SK+k}, v{SK+k}, v12']
    nxt, left = G.place(sum((x_unp(AB, j) for j in range(5)), []), nxt); assert not left and nxt < 134
    g_sk, left = G.place(S, nxt); assert not left and g_sk < 170, g_sk
    g2 = g_sk; gr = {}
    for t in range(1, 4):
        g2, left = G.place([f's_sub_u32 s{r0}, s{sW}, {t}', f's_and_b32 s{r0}, s{r0}, 3', f's_mul_i32 s{r0}, s{r0}, 15360', f'v_add_u32 v{252+t}, s{r0}, v14'], g2); assert not left
    for t in range(1, 4):
        g2, left = G.place([f'ds_read_b128 {q4(AA + 20*t + 4*j)}, v{252+t} offset:{CLS + (t-1)*5120 + 1024*j}' for j in range(5)], max(g2, gcb[t] + 1)); assert not left
        gr[t] = g2
    def pack(a):
        L = []
        for g in range(3):
            gl = [f'v_cvt_pk_bf16_f32 v{AA+4*g+k}, v{a+7*g+2*k}, v{a+7*g+2*k+1}' for k in range(3)]
            if g < 2: gl += [f'v_cvt_pk_bf16_f32 v{AA+4*g+3}, v{a+7*g+6}, v{a+7*g+6}', f'v_perm_b32 v{AA+4*g+3}, v{AA+4*g+3}, v13, s{r2_}']
            else: gl += [f'v_mov_b32 v{AA+11}, v13']
            L.append(gl)
        return L
    st = lambda g, so: f'buffer_store_dwordx4 {q4(AA+4*g)}, v14, {q(WS)}, s{so} offen offset:{1024*g} sc1'
    g, left = G.place([Need(q4(AA + 56))] + [f'v_add_f32 v{AA+20+k}, v{AA+20+k}, v{AA+40+k}' for k in range(20)], gr[2] + 4); assert not left
    g, left = G.place([f'v_add_f32 v{AA+k}, v{AA+k}, v{AA+20+k}' for k in range(20)], max(g, 144)); assert not left
    g, left = G.place([Need(q4(AA + 76))] + [f'v_add_f32 v{AA+k}, v{AA+k}, v{AA+60+k}' for k in range(20)], max(g, gr[3] + 4)); assert not left
    g, left = G.place(sum(pack(AA), []), g); assert not left
    g_f, left = G.place([st(k, sXO) for k in range(3)], g + 1, step=CFG.get('x_step', 12)); assert not left
    pk = pack(SETS[4][1]); g_y = g_f
    for k, j in enumerate((1, 3, 4)):
        g_y, left = G.place(pk[k] + [st(k, r4)], max(g_y, last_of[0, True, 0, j] + 4)); assert not left
    FT, XU, T, YU = SETS[3][1], AA + 20, AA + 40, AA + 60
    def xch(b, so): return [f'buffer_load_dwordx4 {q4(b+4*g)}, v14, {q(WS)}, s{so} offen offset:{1024*g} sc1' for g in range(3)]
    def recv_check(nm, b, ld): return check(f'{name}_{nm}', ld, tagacc(8, [b + 3, b + 7, b + 11]) + ['v_and_b32 v8, 0xffff, v8'], ['v_cmp_ne_u32 vcc, 0, v8'])
    def run(d, k, b=RAW):
        g, e = divmod(k, 7); r = b + 4 * g + e // 2
        return f'v_and_b32 v{d}, 0xffff0000, v{r}' if (e & 1 or e == 6) else f'v_lshlrev_b32 v{d}, 16, v{r}'
    for k, nm, off, msk in ((3, 'gf', 12, True), (4, 'gy', 6144, False)):
        if nm[1] not in CFG.get('xg', 'fy'): continue
        l_ = I(f's_buffer_load_dword s24, {q(WS)}, s{sXI} offset:{off} glc', tag='async')
        tst = ([f's_xor_b32 s24, s24, s{sTAG}', 's_and_b32 s24, s24, 0xffff', 's_cmp_eq_u32 s24, 0'] if msk else [f's_cmp_eq_u32 s24, s{sTAG}'])
        G.fixed(win[k][0], [l_], 'post'); G.need(win[k][1], 's_waitcnt lgkmcnt(0)'); G.fixed(win[k][1], flat(gate(f'{name}_{nm}', [l_], tst)), 'post')
    g_hb, left = G.place([f's_add_u32 s{r3}, s{sXO}, 6144', flag_store(r3)], CFG.get('hb_gap', 326), budget=3); assert not left
    ly = xch(RAW, r1)
    g_ly, left = G.place(ly, win[4][0] + g_y - g_hb + CFG.get('y_ld', 12), step=2); assert not left
    lf = xch(YU, sXI)
    g_lf, left = G.place(lf, max(win[3][1] + 1, win[3][0] + 2 * CFG.get('x_step', 12) + CFG.get('f_ld', 10)), step=3); assert not left
    g, left = G.place(x_read(XU, 5) + [Need(pr(XU + 18))], max(g, g_sk)); assert not left and g < win[3][0], g
    g, left = G.place(sum((x_unp(XU, j) for j in range(5)), []), g); assert not left
    g_fr, left = G.place(recv_check('xf', YU, lf) + [run(T + k, k, YU) for k in range(20)], max(g, g_lf + CFG.get('f_wait', 28))); assert not left
    g_fu = g_fr
    for j in range(5):
        g_fr, left = G.place([f'v_add_f32 v{FT+k}, v{FT+k}, v{T+k}' for k in range(4*j, 4*j + 4)], max(g_fr, last_of[1, False, 0, j] + 5)); assert not left
    if CFG.get('otr', True):
        S = [f's_mul_i32 s{r0}, s{sW}, 6400', f's_add_u32 s{r0}, s{r0}, {CLS}', 'v_and_b32 v9, 15, v0', 'v_mul_u32_u24 v9, 80, v9', 'v_and_b32 v12, 48, v0', f'v_add3_u32 v9, v9, v12, s{r0}',
             'v_lshrrev_b32 v10, 2, v0', 'v_mul_u32_u24 v15, 80, v10', 'v_and_b32 v12, 48, v14', f'v_add3_u32 v15, v15, v12, s{r0}',
             f's_lshl_b32 s{r0}, s{sOO}, 1', 'v_mul_u32_u24 v10, 2560, v10', f'v_add3_u32 v10, v10, v12, s{r0}']
        g, left = G.place(S, 262); assert not left
    g = g_fr; done = 0; vleft = []
    while done < 5 and g < NG - CFG.get('silu_stop', 10):
        a = T + 4*done; f = FT + 4*done
        S = [f'v_mul_f32 v{a+r}, s{t2}, v{f+r}' for r in range(4)] + [f'v_exp_f32 v{a+r}, v{a+r}' for r in range(4)] + [f'v_add_f32 v{a+r}, 1.0, v{a+r}' for r in range(4)] + \
            [f'v_rcp_f32 v{a+r}, v{a+r}' for r in range(4)] + [f'v_mul_f32 v{a+r}, v{a+r}, v{f+r}' for r in range(4)]
        g, vleft = G.place(S, g); done += 1
    def silu(j):
        f = FT + 4*j; t = T + 4*j
        return [f'v_pk_mul_f32 {pr(t+2*h)}, {pr(f+2*h)}, s[{t2}:{t3}]' for h in range(2)] + [f'v_exp_f32 v{t+r}, v{t+r}' for r in range(4)] + \
               [f'v_pk_add_f32 {pr(t+2*h)}, {pr(t+2*h)}, 1.0 op_sel_hi:[1,0]' for h in range(2)] + [f'v_rcp_f32 v{t+r}, v{t+r}' for r in range(4)] + \
               [f'v_pk_mul_f32 {pr(t+2*h)}, {pr(t+2*h)}, {pr(f+2*h)}' for h in range(2)]
    print(name, 'w left', len(WL), 'w0', w0, 'bars', g_b0, g_b1, 'win', win, 'hb', g_hb, 'skip', g_sk, 'last a load', max(agap.values()), 'f sent', g_f, 'f recv', g_lf, g_fu, g_fr, 'y sent', g_y, 'y ld', g_ly, 'silu', done, g, 'left', len(vleft), file=sys.stderr)
    body = []
    for x in G.emit():
        if not isinstance(x, PSEUDO):
            y = mk(x); d = CFG.get('drop', '')
            if 'A' in d and y.op == 'buffer_load_dwordx4' and f's{t1} offen' in y.text: continue
            if 'W' in d and y.op == 'buffer_load_dwordx4' and (f's{t0} offen' in y.text or f's{sWB} offen' in y.text): continue
            if 'L' in d and (y.kind == 'ds' or y.op == 's_barrier'): continue
            if 'B' in d and y.op == 's_barrier': continue
            if 'V' in d and y.kind == 'valu' and not y.op.startswith('v_cmp') and min(r[1] for r in y.defs) >= 16: continue
            if 'X' in d and ((y.kind == 'vmem' and y.wide_store) or 'spin_' + name + '_xf' in y.text): continue
            if 'F' in d and y.op.startswith('s_cbranch') and ('_a' in y.text or '_yf' in y.text): continue
            if 'S' in d and y.kind == 'smem' and 'glc' in y.text: continue
        body.append(x)
    if CFG.get('silu_first', True):
        body += ST('p2end') + vleft + sum((silu(j) for j in range(done, 5)), []); vleft = []; done = 5
    P += body + (ST('p2end') if not CFG.get('silu_first', True) else []) + ST('xw') + (recv_check('xy', RAW, ly) if not CFG.get('drop') else []) + ST('xok')
    Y = SETS[5][1]
    for j in range(5):
        if j == done - 1: P += vleft
        if j >= done: P += silu(j)
        P += [run(YU + 4*j + r, 4*j + r) for r in range(4)]
        P += [f'v_pk_add_f32 {pr(Y+4*j+2*h)}, {pr(Y+4*j+2*h)}, {pr(YU+4*j+2*h)}' for h in range(2)]
        P += [f'v_pk_fma_f32 {pr(T+4*j+2*h)}, {pr(T+4*j+2*h)}, {pr(Y+4*j+2*h)}, {pr(XU+4*j+2*h)}' for h in range(2)]
        if CFG.get('otr', True):
            P += [f'ds_write_b128 v9, {q4(T+4*j)} offset:{1280*j}', f'ds_read_b128 {q4(T+4*j)}, v15 offset:{1280*j}']
            for jj in ([j - 1] if 0 < j < 4 else [3, 4] if j == 4 else []): A(f'global_store_dwordx4 v10, {q4(T+4*jj)}, {sp(pOUT)} offset:{64*jj} sc1')
        else:
            A(f'global_store_dwordx4 v10, {q4(T+4*j)}, {sp(pOUT)} offset:{64*j} sc1')
    if name == 'sy':
        P += [f's_lshl_b32 s{t4}, s{sW}, 8', f's_or_b32 s{t4}, s{t4}, s2', f's_cmp_eq_u32 s{t4}, 191', f's_mov_b32 s{t4}, {EPO}', f's_cselect_b32 s{t4}, s{t4}, {OOB}', flag_store(t4)]
    P += ST('fin') + ST_dump() + ['s_endpgm']
    return P

def with_state(segs):
    vm, lg = [], []
    out = []
    for s in segs:
        out.append(add_waits(flat(s), vm, lg))
    return out, vm, lg

def diag(seq):
    out = []
    for x in seq:
        if CFG.get('no_r1') and not isinstance(x, PSEUDO) and (mk(x).tag == 'cs' or 'global_load_dwordx2 v[24' in mk(x).text or q(TSRD) + ', 0 offen' in mk(x).text): continue
        if isinstance(x, I) and ((x.tag == 'rl' and CFG.get('no_rl_ld')) or (x.tag == 'rls' and CFG.get('no_rl_st')) or (x.tag == 'ext' and CFG.get('no_ext'))): continue
        if isinstance(x, str) and CFG.get('no_ext') and ('L_spin_ext' in x and 'branch' in x): continue
        out.append(x)
    return out

def build():
    del SPINS[:]; del NOPSTATS[:]
    ent, late = entry()
    fp = ffn_prologue(late); fm, fWL = ffn_main(None)
    sp_ = s5_prologue(late); sm, sWL_, sfl = s5_main(p2_first('sy', CFG.get('npre_s', 8)))
    vm0, lg0 = [], []
    ent = add_waits(diag(flat(ent)), vm0, lg0)
    vm, lg = list(vm0), list(lg0)
    a_fp = add_waits(diag(flat(fp)), vm, lg)
    tl, wl, fl = ffn_tail(fWL, [fl_load(0)])
    a_fm = add_waits(diag(flat(fm)) + flat(tl + sum(p2_first('ff', 8), []) + phase2('ff', 8, wl, fl)), vm, lg)
    vm, lg = list(vm0), list(lg0)
    a_sp = add_waits(diag(flat(sp_)), vm, lg)
    a_sm = add_waits(diag(flat(sm)) + flat(phase2('sy', CFG.get('npre_s', 8), sWL_, sfl)), vm, lg)
    code = add_nops([mk(x) for x in ent], NOPSTATS) + add_nops(a_fp, NOPSTATS) + add_nops(a_sp, NOPSTATS) + add_nops(a_fm, NOPSTATS) + add_nops(a_sm, NOPSTATS)
    code.append(mk('L_spins:'))
    for blk in SPINS: code += add_nops([mk('s_nop 4')] * 0 + [mk(x) for x in blk])
    code.append(mk('L_end:'))
    pend = None
    for x in code:
        if ('vcc', 0) in x.uses or x.op.startswith('s_cbranch_vcc'): pend = None
        if ('vcc', 0) in x.defs:
            assert pend is None or CFG.get('drop'), (pend.text, x.text)
            pend = x
    if CFG.get('align', True):
        code, a, b = align_runs(code, CFG.get('minrun', 6)); print('aligned', a, b, file=sys.stderr)
    return kg.single(render(code), 256, 256, 163840, 512, accum=256)

if __name__ == '__main__':
    out = sys.argv[1] if len(sys.argv) > 1 else 'v2.s'
    for kv in sys.argv[2:]:
        k, v = kv.split('='); CFG[k] = eval(v)
    open(out, 'w').write(build())
    from collections import Counter
    print('nops inserted:', len(NOPSTATS), 'states', sum(p for p, _ in NOPSTATS), Counter(t.split()[0] for p, t in NOPSTATS).most_common(8), file=sys.stderr)
```

```python
import sys, struct, math
from asmlib import *
import kg

def fbits(x): return '0x%08x' % struct.unpack('<I', struct.pack('<f', x))[0]

K_X, K_LRE, K_LIM, K_BRE, K_BIM, K_CRE, K_CIM, K_LDT, K_DSK, K_W1, K_B1, K_W2, K_B2, K_OUT, K_DBG, K_WS = \
    0, 8, 16, 24, 32, 40, 48, 56, 64, 80, 88, 96, 104, 112, 120, 128
ACT = 0
W2F = 0xC00000
STAT = 0x1000000
CS = 0x1010000
EST = 0x1040000; EST_STRIDE = 768 * 8
EPO = 0x1078000
PF = 0x10C0000
AF = 0x1084000
CS5 = 0x1030000
STAMP_OFF = 0x10A0000
XCH = 0x1100000
WS_USED = 0x1B00000
OOB = 0x40000000
LOG2E = 1.4426950408889634
SPIN_MAX = 20000

CFG = dict(stamps=False, w_every=45, eg=False, npre_s=8, s5_w1=6, s5_w2=10, yf_vec=1, la2=60, la_y=56, swap=False, wrot=0, stg5='poll', est='direct')

X, WS = 4, 8
pOUT, pDSK, pB2 = 12, 14, 16
sHA, sHF = 18, 21
W1, W2, B1 = 24, 28, 72
BRE, BIM, CRE, CIM, LRE, LIM, LDT = 24, 28, 32, 36, 40, 44, 48
TSRD = 72
def q(s): return f's[{s}:{s+3}]'
def sp(s): return f's[{s}:{s+1}]'
sA, sAown, sFL, sFL2, sXO, sXI, sOO, sC160, sSTO, sPFf, sPFy, sPUB = range(40, 52)
sW, sRB, sCG, sTAG, sC1, sC2, sC3, sWL, sWK, sWT, sWF, sWB, r0, r1 = range(52, 66)
t0, t1, t2, t3, t4, t5 = range(66, 72)
r2_, r3, r4, r5, sU0, sU1 = range(72, 78)
NSTAMP = 12
STSETS = {
 'A': ['entry','bar','loop','t1','t3','t4','s1','s7','s12','s19','p2end','end'],
 'S': ['entry','loop','t4','p2end','fin','end','te','s4','bar'],
 'H': ['entry','loop','t4','s4','s9','s12','s14','s16','s18','s21','p2end','fin'],
 'B': ['entry','pro','d0','tag','stats','bar','b0','b1','b2','b3','b4','end'],
 'F': ['entry','bar','b0','b1','b2','b3','b4','b5','b6','b7','b8','loop'],
 'G': ['entry','loop','t1','pub','pl0','t2','t3','z','a0','hb0','hb1','t4'],
 'C': ['entry','loop','e0','e1','t1','t4','a0','a1','s0','s1','s2','s3'],
 'D': ['entry','s3','s4','s5','s6','s7','s8','s9','s10','s11','s12','s13'],
 'E': ['entry','s13','s15','s17','s19','s21','s23','p2end','xw','xok','fin','end'],
}
def ST(name):
    if not CFG['stamps']: return []
    L = STSETS[CFG['stamps']]
    if name not in L: return []
    k = L.index(name)
    return [f's_memrealtime s[{78+2*k}:{79+2*k}]']
def ST_dump():
    if not CFG['stamps']: return []
    L = ['s_waitcnt vmcnt(0)'] + ST('end') + ['s_waitcnt lgkmcnt(0)', f's_lshl_b32 s{t0}, s2, 2', f's_add_u32 s{t0}, s{t0}, s{sW}', f's_lshl_b32 s{t0}, s{t0}, 7',
         f's_add_u32 s{t0}, s{t0}, {STAMP_OFF}', 'v_mov_b32 v1, 0', 's_mov_b64 exec, 1']
    for k in range(NSTAMP):
        L += [f'v_mov_b32 v2, s{78+2*k}', f'buffer_store_dword v2, v1, {q(WS)}, s{t0} offen offset:{4*k}']
    return L

def srd(s, koff, size):
    return [f's_load_dwordx2 s[{s}:{s+1}], s[0:1], {koff}'], [f's_mov_b32 s{s+2}, {size}', f's_mov_b32 s{s+3}, 0x20000']
def srds(lst):
    a, b = [], []
    for s, k, z in lst:
        x, y = srd(s, k, z); a += x; b += y
    return a + b
def pr(r): return f'v[{r}:{r+1}]'
def q4(r, f='v'): return f'{f}[{r}:{r+3}]'

NOPSTATS = []
def fin(P): return finalize(flat(P), NOPSTATS)

SPINS = []
def check(name, loads, accum, cond):
    br_bad, br_ok = ('s_cbranch_vccnz', 's_cbranch_vccz') if cond[-1].startswith('v_cmp') else ('s_cbranch_scc0', 's_cbranch_scc1')
    blk = [f'L_spin_{name}:', f's_mov_b32 s{t5}, 0', f'L_spinl_{name}:', 's_sleep 1'] + [mk(x).text for x in flat(loads)] + ['s_waitcnt vmcnt(0)'] + flat(accum) + \
          [f's_add_u32 s{t5}, s{t5}, 1', f's_cmp_gt_u32 s{t5}, {SPIN_MAX}', f's_cbranch_scc1 L_ret_{name}'] + cond + [f'{br_bad} L_spinl_{name}', f's_branch L_ret_{name}']
    SPINS.append(blk)
    return list(accum) + [tuple(cond + [f'{br_bad} L_spin_{name}', f'L_ret_{name}:'])]

def chain(regs):
    L = []; cur = regs[0]
    for r in regs[1:]:
        L.append((f's_cmp_eq_u32 s{cur}, s{sTAG}', f's_cselect_b32 s{regs[0]}, s{r}, s{cur}')); cur = regs[0]
    return L, f's_cmp_eq_u32 s{cur}, s{sTAG}'
def check_s(name, load, regs, pre=[], sleep=0):
    ch, last = chain(regs)
    blk = [f'L_spin_{name}:', f's_mov_b32 s{t5}, 0', f'L_spinl_{name}:'] + ([f's_sleep {sleep}'] if sleep else []) + [mk(load).text, 's_waitcnt lgkmcnt(0)',
           f's_add_u32 s{t5}, s{t5}, 1', f's_cmp_gt_u32 s{t5}, {SPIN_MAX*2}', f's_cbranch_scc1 L_ret_{name}'] + flat(pre) + flat(ch) + [last, f's_cbranch_scc0 L_spinl_{name}', f's_branch L_ret_{name}']
    SPINS.append(blk)
    return list(pre) + ch + [(last, f's_cbranch_scc0 L_spin_{name}', f'L_ret_{name}:')]

def gate(name, loads, test):
    SPINS.append([f'L_spin_{name}:', f's_mov_b32 s{t5}, 0', f'L_spinl_{name}:'] + [mk(x).text for x in loads] + ['s_waitcnt lgkmcnt(0)', f's_add_u32 s{t5}, s{t5}, 1',
                  f's_cmp_gt_u32 s{t5}, {SPIN_MAX*2}', f's_cbranch_scc1 L_ret_{name}'] + flat(test) + [f's_cbranch_scc0 L_spinl_{name}', f's_branch L_ret_{name}'])
    return list(test[:-1]) + [(test[-1], f's_cbranch_scc0 L_spin_{name}', f'L_ret_{name}:')]

def tagacc(acc, regs, exp=None):
    L = []
    for i, r in enumerate(regs):
        e = f's{sTAG}' if exp is None else f'v{exp[i]}'
        if i == 0: L.append(f'v_xor_b32 v{acc}, {e}, v{r}')
        else: L.append(f'v_bitop3_b32 v{acc}, v{acc}, v{r}, {e} bitop3:0xf6')
    return L

def dpp_row_sum(v):
    return [f'v_add_f32_dpp v{v}, v{v}, v{v} row_ror:{n} row_mask:0xf bank_mask:0xf' for n in (8, 4, 2, 1)]

def entry():
    a, b = [], []
    for s_, k, z in [(WS, K_WS, WS_USED), (X, K_X, 2621440)]:
        x, y = srd(s_, k, z); a += x; b += y
    P = ['L_base:'] + ST('entry') + [f's_getpc_b64 s[{t0}:{t1}]', 'L_pc:'] + a + [
        's_cmp_ge_u32 s2, 256', 's_cbranch_scc1 L_end',
        f's_lshr_b32 s{t3}, s2, 3', 'v_lshrrev_b32 v1, 6, v0', 'v_and_b32 v0, 63, v0', f's_lshl_b32 s{t4}, s{t3}, 2',
        f'v_add_u32 v11, s{t4}, v1', 'v_and_b32 v12, 3, v0', 'v_lshl_add_u32 v11, v11, 2, v12', 'v_lshlrev_b32 v11, 7, v11', 'v_min_u32 v11, (L_end-L_pc), v11',
        f'global_load_dword v253, v11, s[{t0}:{t1}]',
        f'v_readfirstlane_b32 s{sW}, v1',
        f's_and_b32 s{t4}, s2, 6', f's_lshr_b32 s{t5}, s2, 6', f's_add_u32 s{t4}, s{t4}, s{t5}', f's_cmp_ge_u32 s{t5}, 2', f's_cselect_b32 s{t5}, 7, 0', f's_add_u32 s{sCG}, s{t4}, s{t5}',
        f's_cmp_eq_u32 s{sCG}, 16', f's_cselect_b32 s{sCG}, 8, s{sCG}',
        f's_cmp_ge_u32 s{sCG}, 9', 's_cbranch_scc1 L_pro_s5']
    return P, [f's_load_dwordx2 {sp(p)}, s[0:1], {k}' for p, k in ((pOUT, K_OUT), (pDSK, K_DSK), (pB2, K_B2))], b

def ids2():
    return [f's_and_b32 s{t4}, s2, 1', f's_lshl_b32 s{t4}, s{t4}, 3', f's_and_b32 s{t5}, s{t3}, 7', f's_add_u32 s{sRB}, s{t4}, s{t5}',
            f's_lshr_b32 s3, s{sRB}, 2', f's_sub_u32 s3, s{sRB}, s3', 's_sub_u32 s3, s3, 1', f's_and_b32 s{t4}, s{sRB}, 3', 's_cselect_b32 s3, s3, 12', f's_lshl_b32 s{sWL}, s{sW}, 10', f's_and_b32 s{sWT}, s{sW}, 1', f's_lshr_b32 s{sWF}, s{sW}, 1']

VE, VTK, VST = 255, 254, 240
def round1_addr():
    return [
            f's_lshl_b32 s{t4}, s{sRB}, 4', f's_add_u32 s{t4}, s{t4}, s{sCG}', f's_lshl_b32 s{t4}, s{t4}, 2', f's_add_u32 s{t4}, s{t4}, s{sW}', f's_lshl_b32 s{t4}, s{t4}, 1',
            f'v_lshrrev_b32 v{VTK}, 5, v0', f'v_add_u32 v{VTK}, s{t4}, v{VTK}',
            f'v_mul_u32_u24 v12, 1280, v{VTK}', 'v_and_b32 v13, 31, v0', 'v_lshl_add_u32 v12, v13, 3, v12', f'v_mov_b32 v{VE}, {EPO}']
def round1_loads():
    return [f'buffer_load_dword v{VE}, v{VE}, {q(WS)}, 0 offen sc1'] + \
           [f'buffer_load_dwordx2 {pr(VST+2*i)}, v12, {q(X)}, 0 offen offset:{256*i}' for i in range(5)]
def get_tag():
    return [f'v_readfirstlane_b32 s{sTAG}, v{VE}', f's_mul_i32 s{sTAG}, s{sTAG}, 0x9e3779b1', f's_add_u32 s{sTAG}, s{sTAG}, 0x7f4a7c15']
def token_stats():
    a, b, c, d = 250, 251, 252, 253
    L = [f'v_mov_b32 v{a}, 0', f'v_mov_b32 v{b}, 0']
    for i in range(10):
        L += [f'v_dot2c_f32_bf16 v{a}, 0x3f803f80, v{VST+i}', f'v_dot2c_f32_bf16 v{b}, v{VST+i}, v{VST+i}']
    for x, y in zip(dpp_row_sum(a), dpp_row_sum(b)): L += [x, y]
    L += [f'v_mov_b32 v{c}, v{a}', f'v_mov_b32 v{d}, v{b}', f'v_permlane16_swap_b32 v{a}, v{c}', f'v_permlane16_swap_b32 v{b}, v{d}',
          f'v_add_f32 v{a}, v{a}, v{c}', f'v_add_f32 v{b}, v{b}, v{d}',
          f'v_mul_f32 v{a}, {fbits(1/640)}, v{a}', f'v_mul_f32 v{b}, {fbits(1/640)}, v{b}',
          f'v_fma_f32 v{b}, -v{a}, v{a}, v{b}', f'v_max_f32 v{b}, 0, v{b}',
          f'v_cvt_pk_bf16_f32 v{b}, v{b}, v{b}', f'v_and_b32 v{b}, 0xffff0000, v{b}',
          f'v_add_f32 v{b}, {fbits(1e-5)}, v{b}', f'v_cvt_pk_bf16_f32 v{b}, v{b}, v{b}', f'v_and_b32 v{b}, 0xffff0000, v{b}',
          f'v_sqrt_f32 v{b}, v{b}', f'v_mov_b32 v{d}, s{sTAG}', f'v_lshlrev_b32 v{VTK}, 3, v{VTK}',
          f'v_cvt_pk_bf16_f32 v{c}, -v{a}, v{b}', f's_mov_b32 s{t4}, {STAT}',
          ('s_mov_b32 exec_lo, 1', 's_mov_b32 exec_hi, 1', f'buffer_store_dwordx2 {pr(c)}, v{VTK}, {q(WS)}, s{t4} offen sc1', 's_mov_b64 exec, -1')]
    return L

def xswz(dst, tmp):
    return [f's_lshl_b32 s{t4}, s{sWT}, 2', f'v_lshrrev_b32 v{tmp}, 4, v0', f'v_add_u32 v{tmp}, s{t4}, v{tmp}',
            f'v_and_b32 v{dst}, 7, v0', f'v_xor_b32 v{dst}, v{dst}, v{tmp}', f'v_lshlrev_b32 v{dst}, 4, v{dst}']

def act_offsets(n, role, a, b_):
    L = [f's_lshl_b32 s{a}, s{sRB}, 1', f's_add_u32 s{a}, s{a}, s{sWT}', f's_lshl_b32 s{a}, s{a}, 3']
    for b in range(3):
        d, fl = sHA + b, sHF + b
        L += [f's_add_u32 s{d}, s{n}, {(0,18,36)[b] if role == "f" else 56 + (0,14,27)[b]}', f's_and_b32 s{b_}, s{d}, 7', f's_add_u32 s{b_}, s{b_}, s{a}', f's_lshr_b32 s{d}, s{d}, 3',
              f's_lshl_b32 s{fl}, s{b_}, 4', f's_add_u32 s{fl}, s{fl}, s{d}', f's_lshl_b32 s{fl}, s{fl}, 2', f's_add_u32 s{fl}, s{fl}, {AF}',
              f's_mul_i32 s{b_}, s{b_}, 12', f's_add_u32 s{d}, s{d}, s{b_}', f's_lshl_b32 s{d}, s{d}, 12']
    return L

SLOT0 = 40960; SLOT = 40960; WOFF = 16384
ACC = 16; FR = 112

VX2, VW2 = 252, 253
def dma_chunk(role, c):
    slot = SLOT0 + SLOT * (c % 3)
    soff = ['0', f's{sC1}', f's{sC2}', f's{sC3}']
    vx, vw = (1, 2) if c % 2 == 0 else ((VX2, VW2) if c > 1 else (238 if role == 's5' else 239, 239 if role == 's5' else 215))
    if role == 'ffn' and c % 2: vx, vw = 214, 215
    ce = c & ~1
    xs = [[f's_add_u32 m0, s{sWL}, {slot + 4096*n - 128*ce}',
           I(f'buffer_load_dwordx4 v{vx}, {q(X)}, {soff[n]} offen offset:{128*ce} lds', tag=f'c{c}')] for n in range(4)]
    ws = []
    if role == 's5':
        so = ['0', f's{sU0}', f's{sC2}']
        for n in range(6):
            ws.append([f's_add_u32 m0, s{sWL}, {slot + WOFF + 12288*(n%2) + 4096*(n//2) - 128*ce}',
                       I(f'buffer_load_dwordx4 v{vw}, {q(BIM if n % 2 else BRE)}, {so[n//2]} offen offset:{128*ce} lds', tag=f'c{c}')])
    else:
        for hi in range(2):
            for cb in range(3):
                g = [f's_add_u32 m0, s{sWL}, {slot + WOFF + 8192*cb + 4096*hi - 128*cb}',
                     I(f'buffer_load_dwordx4 v{vw}, {q(W1)}, s{sWK} offen offset:{128*cb} lds', tag=f'c{c}')]
                if cb == 2:
                    if hi == 0: g.append(f's_add_u32 s{sWK}, s{sWK}, {32*3456}')
                    elif c % 2 == 0: g.append(f's_sub_u32 s{sWK}, s{sWK}, {32*3456}')
                    else: g.append(f's_add_u32 s{sWK}, s{sWK}, {96*3456}')
                ws.append(g)
    return [xs[0], ws[0], ws[1], xs[1], ws[2], xs[2], ws[3], ws[4], xs[3], ws[5]]
def pair_swap(role):
    ox, ow = (214, 215) if role == 'ffn' else (238, 239)
    ks = 64 * 3456 if role == 'ffn' else 128
    par = [f's_lshr_b32 s{t4}, s2, 3', f's_lshr_b32 s{t5}, s2, 6', f's_xor_b32 s{t4}, s{t4}, s{t5}', f's_and_b32 s{t4}, s{t4}, 1'] if CFG.get('swap', True) else [f's_mov_b32 s{t4}, 0']
    return par + [f's_lshl_b32 s{t5}, s{t4}, 7', f'v_add_u32 v1, s{t5}, v1', f's_xor_b32 s{t5}, s{t5}, 128', f's_lshl_b32 s{t1}, s{t4}, 7', f's_sub_u32 s{t5}, s{t5}, s{t1}', f'v_add_u32 v{ox}, s{t5}, v1',
                  f's_mul_i32 s{t5}, s{t4}, {ks}', f'v_add_u32 v2, s{t5}, v2', f's_lshl_b32 s{t5}, s{t5}, 1', f's_sub_u32 s{t5}, {ks}, s{t5}', f'v_add_u32 v{ow}, s{t5}, v2']

def bmp(v, c):
    return f'v_add_u32 v{v}, 40960, v{v}' if c % 3 != 2 else f'v_subrev_u32 v{v}, 81920, v{v}'

def ffn_reads(sig):
    c, s = divmod(sig, 4)
    f = FR + 20 * (sig & 1)
    x = lambda tb: f'ds_read_b128 {q4(f+4*tb)}, v{3+s} offset:{4096*tb}'
    w = lambda b, u: f'ds_read_b64_tr_b16 {pr(f+8+4*b+2*u)}, v{7+b} offset:{(16*s+4*u)*128}'
    R = [x(0), w(0, 0), w(0, 1), x(1), w(1, 0), w(1, 1), w(2, 0), w(2, 1)]
    if c < 9:
        R.append(bmp(3 + s, c))
        if s == 3: R += [bmp(7, c), bmp(8, c), bmp(9, c)]
    return R
def ffn_mfmas(f, first):
    M = []
    for t in range(6):
        d = ACC + 16 * t
        M.append(f'v_mfma_f32_32x32x16_bf16 v[{d}:{d+15}], {q4(f+8+4*(t//2))}, {q4(f+4*(t%2))}, ' + ('0' if first else f'v[{d}:{d+15}]'))
    return M
def ffn_loop(extra_wait):
    G = Gaps3(6, 5); bars = []
    for sig in range(40):
        c, s = divmod(sig, 4)
        M = ffn_mfmas(FR + 20 * (sig & 1), sig == 0)
        R = ffn_reads(sig + 1) if sig < 39 else []
        bar = (s == 3 and c < 9)
        for t in range(6):
            i = G.add(M[t])
            if t == 1:
                if bar:
                    G.need(i, Wait(f'c{c+1}', *extra_wait.get(c, []))); G.need(i, 's_waitcnt lgkmcnt(0)')
                    G.fixed(i, ['s_barrier'] + ST(f'b{c}'), 'pre'); bars.append(i)
                else: G.need(i, Need(f'v[{FR + 20*(sig&1)}:{FR + 20*(sig&1) + 19}]'))
            if t == 5 and sig < 39: G.need(i, Need(q4(FR + 20*((sig+1)&1) + 4)))
            if t >= (1 if bar else 0):
                n = 2 if t < 5 else len(R)
                if s == 2 and t >= 3 and t < 5: n = 3
                G.fixed(i, R[:n]); R = R[n:]
    return G, bars

def s5_x(sig, tt): return f'ds_read_b128 {q4(FR + 16*(sig&1) + 4*tt)}, v{3+(sig&1)} offset:{2048*tt}'
def s5_b(sig, n): return f'ds_read_b128 {q4(FR + 32 + 4*n)}, v{5+(sig&1)} offset:{12288*(n&1) + 2048*(n>>1)}'
def s5_acc(n, tt): return ACC + 16 * n + 4 * tt
def s5_loop(extra_wait):
    G = Gaps3(2, 2); bars = []
    for sig in range(20):
        c, s = divmod(sig, 2)
        nx = sig + 1
        for n in range(6):
            for tt in range(4):
                d = s5_acc(n, tt)
                i = G.add(f'v_mfma_f32_16x16x32_bf16 {q4(d)}, {q4(FR+16*(sig&1)+4*tt)}, {q4(FR+32+4*n)}, ' + ('0' if sig == 0 else q4(d)))
                bar = s == 1 and c < 9
                if n == 1 and tt == 3 and not bar: G.need(i, Need(q4(FR + 32 + 20)))
                if nx > 19: continue
                if bar and n == 0 and tt == 3:
                    G.need(i, Wait(f'c{c+1}', *extra_wait.get(c, []))); G.need(i, 's_waitcnt lgkmcnt(0)')
                    G.fixed(i, ['s_barrier'] + ST(f'b{c}'), 'pre'); bars.append(i)
                if n == 5 and tt == 3: G.need(i, Need(q4(FR + 16*(nx&1) + 12)))
                if tt == 3: G.fixed(i, [s5_b(nx, n)])
                if n in (1, 2) and tt in (0, 1): G.fixed(i, [s5_x(nx, 2*(n-1) + tt)])
                if nx // 2 < 9:
                    if n == 3 and tt == 1: G.fixed(i, [bmp(3 + (nx & 1), nx // 2)])
                    if n == 5 and tt == 3: G.fixed(i, [bmp(5 + (nx & 1), nx // 2)])
    return G, bars

def sched_dma(G, bars, role, seq, u, rate):
    pos = 0.0
    last = {}
    prev = -1
    for it in seq:
        if it[0] == 'pause':
            pos += it[1] * u; continue
        grp, mg = it
        i = max(int(pos), mg)
        i = max(i, prev + 1)
        while not G.can_dma(i): i += 1
        G.dma(i, grp, prev); prev = i
        last[grp[1].tag] = i
        pos = max(pos, mg) + u / rate
    print(role, 'dma margins (chunks):', [round((bars[c-1] - last[f'c{c}']) / u, 2) for c in range(2, 10)], file=sys.stderr)
    return last

def w2f_loads(rot=0):
    L = []
    for i in [(rot + x) % 7 for x in range(7)] + list(range(7, 12)):
        for j in range(5):
            k = 5 * i + j
            g = []
            if j == 0: g.append(f's_add_u32 s{t0}, s{sWB}, {5120*i}')
            if k == 30: g.append(f's_or_b32 s{t0}, s{t0}, s3')
            g.append(I(f'buffer_load_dwordx4 {q4(4*k, "a")}, v{14 if j < 4 else 15}, {q(WS)}, s{t0} offen' + (f' offset:{1024*j}' if j < 4 else '') + ' sc1', tag=f'w{k}'))
            L.append(tuple(g))
    return L
def p2_setup(a, b, c, d):
    mix = CFG.get('mix', True)
    rsub = [f's_lshr_b32 s{b}, s2, 2', f's_and_b32 s{b}, s{b}, 2', f's_lshr_b32 s{c}, s2, 6', f's_xor_b32 s{b}, s{b}, s{c}'] if mix else [f's_bfe_u32 s{b}, s2, 0x20003']
    return [f's_and_b32 s{a}, s2, 6', f's_lshl_b32 s{a}, s{a}, 1'] + rsub + [f's_add_u32 s{a}, s{a}, s{b}', f's_lshl_b32 s{a}, s{a}, 1',
            f's_and_b32 s{c}, s2, 1', f's_add_u32 s{a}, s{a}, s{c}', f's_xor_b32 s{b}, s{a}, 1',
            f's_lshr_b32 s{sPFy}, s{a}, 1', f's_lshl_b32 s{sPFy}, s{sPFy}, 12', f's_add_u32 s{sPFy}, s{sPFy}, {PF}',
            f's_lshl_b32 s{c}, s{c}, 2', f's_add_u32 s{c}, s{c}, s{sW}', (f's_cmp_ge_u32 s{c}, 6', f's_cselect_b32 s3, {OOB}, 0'),
            f's_lshl_b32 s{sPFf}, s{c}, 5', f's_add_u32 s{sPFf}, s{sPFf}, s{sPFy}',
            f's_lshl_b32 s{d}, s{b}, 3', f's_add_u32 s{d}, s{d}, s{c}', f's_mul_i32 s{sA}, s{d}, {12*4096}', f's_lshl_b32 s{sFL}, s{d}, 6', f's_add_u32 s{sFL}, s{sFL}, {AF}',
            f's_lshl_b32 s{d}, s{a}, 3', f's_add_u32 s{d}, s{d}, s{c}', f's_mul_i32 s{sAown}, s{d}, {12*4096}', f's_lshl_b32 s{sFL2}, s{d}, 6', f's_add_u32 s{sFL2}, s{sFL2}, {AF}',
            f's_bfe_u32 s{d}, s2, 0x30003' if mix else f's_lshr_b32 s{d}, s2, 5', f's_mul_i32 s{sC160}, s{d}, 160',
            f's_lshl_b32 s{sWB}, s{d}, 3', f's_add_u32 s{sWB}, s{sWB}, s{c}', f's_mul_i32 s{sWB}, s{sWB}, {12*5120}', f's_add_u32 s{sWB}, s{sWB}, {W2F}',
            f's_mul_i32 s{c}, s{d}, 5', f's_lshr_b32 s{c}, s{c}, 2',
            f's_lshl_b32 s{c}, s{c}, 6', f's_add_u32 s{sPFy}, s{sPFy}, s{c}', f's_lshl_b32 s{c}, s{c}, 2', f's_add_u32 s{sPFf}, s{sPFf}, s{c}',
            f's_lshl_b32 s{c}, s{sW}, 5', f's_add_u32 s{sPFy}, s{sPFy}, s{c}', f's_add_u32 s{sPFy}, s{sPFy}, 3072',
            f's_lshl_b32 s{d}, s{d}, 2', f's_add_u32 s{d}, s{d}, s{sW}',
            f's_lshl_b32 s{c}, s{b}, 5', f's_add_u32 s{c}, s{c}, s{d}', f's_mul_i32 s{sXO}, s{c}, 6272', f's_add_u32 s{sXO}, s{sXO}, {XCH}',
            f's_lshl_b32 s{c}, s{a}, 5', f's_add_u32 s{c}, s{c}, s{d}', f's_mul_i32 s{sXI}, s{c}, 6272', f's_add_u32 s{sXI}, s{sXI}, {XCH}',
            f's_lshl_b32 s{c}, s{a}, 2', f's_add_u32 s{c}, s{c}, s{sW}', f's_mul_i32 s{sOO}, s{c}, {16*1280}', f's_add_u32 s{sOO}, s{sOO}, s{sC160}',
            f's_sub_u32 s{d}, s{sW}, 1', f's_and_b32 s{d}, s{d}, 3', f's_lshl_b32 s{c}, s{a}, 2', f's_add_u32 s{c}, s{c}, s{d}',
            f's_lshl_b32 s{sSTO}, s{c}, 7', f's_add_u32 s{sSTO}, s{sSTO}, {STAT}']
def warm_flags():
    return [I(f's_buffer_load_dword s{t0}, {q(WS)}, s{sFL} glc', tag='async')] if CFG.get('warm', True) else []
def pf_publish(off, wg):
    return ([(f's_cmp_eq_u32 s{sW}, 0', f's_cselect_b32 s{off}, s{off}, {OOB}')] if wg else []) + \
           [('s_mov_b64 exec, 0xffff', f'buffer_store_dword v13, v231, {q(WS)}, s{off} offen sc1', 's_mov_b64 exec, -1')]
def pf_check(name, which, fb, v):
    n, so = (7, sPFf) if which == 'f' else (5, sPFy)
    if which == 'f': ld = [f'v_and_b32 v{v}, 7, v0', f'v_min_u32 v{v}, 6, v{v}', f'v_and_b32 v{v+1}, 8, v0', f'v_lshl_or_b32 v{v}, v{v+1}, 3, v{v}']
    else: ld = [f'v_min_u32 v{v}, {n-1}, v0']
    ld += [f'v_lshlrev_b32 v{v}, 2, v{v}', f'buffer_load_dword v{v}, v{v}, {q(WS)}, s{so} offen sc1']
    ch, last = chain(list(range(fb, fb + n)))
    blk = [f'L_spin_{name}:', f's_mov_b32 s{t5}, 0']
    for k in range(2 if which == 'f' else 1):
        blk += [f'L_spinl_{name}{k}:', 's_sleep 2', f's_buffer_load_dwordx8 s[{fb}:{fb+7}], {q(WS)}, s{so} offset:{256*k} glc', 's_waitcnt lgkmcnt(0)',
                f's_add_u32 s{t5}, s{t5}, 1', f's_cmp_gt_u32 s{t5}, {SPIN_MAX*2}', f's_cbranch_scc1 L_ret_{name}'] + flat(ch) + [last, f's_cbranch_scc0 L_spinl_{name}{k}']
    SPINS.append(blk + [f's_branch L_ret_{name}'])
    return ld, [Need(f'v{v}'), f'v_cmp_ne_u32 vcc, s{sTAG}, v{v}'], [(f's_cbranch_vccnz L_spin_{name}', f'L_ret_{name}:')]
def pf_place(G, bar, u, name, which, fb, v):
    ld, c1, c2 = pf_check(name, which, fb, v)
    g, left = G.place(ld, bar - int(u * CFG.get('pf_lead', 0.95))); assert not left
    g = bar - u // 8
    G.need(g, c1[0]); G.fixed(g, c1[1:]); G.fixed(bar - 1, flat(c2), 'post')
XL = 122880
def stage_small(v):
    L = [f's_mul_i32 s{t4}, s{sW}, 3072', f's_add_u32 s{t4}, s{t4}, {XL}', f's_sub_u32 s{t2}, s{sSTO}, {STAT}', f's_mul_i32 s{t2}, s{t2}, 160', f's_add_u32 s{t2}, s{t2}, s{sC160}']
    for i in range(3):
        L += [f'v_add_u32 v{v+1}, {64*i}, v0', f'v_mul_u32_u24 v{v}, 6554, v{v+1}', f'v_lshrrev_b32 v{v}, 16, v{v}', f'v_mul_u32_u24 v{v}, 1120, v{v}', f's_add_u32 m0, s{t4}, {1024*i}',
              f'v_lshl_add_u32 v{v}, v{v+1}, 4, v{v}']
        ld = I(f'buffer_load_dwordx4 v{v}, {q(X)}, s{t2} offen lds', tag='xd')
        L.append(('s_mov_b32 exec_hi, 0', ld, 's_mov_b32 exec_hi, -1') if i == 2 else ld)
    L += [f'v_add_u32 v{v}, s{sC160}, v14']
    for off, p in ((2560, pDSK), (2720, pB2)):
        L += [f's_add_u32 m0, s{t4}, {off}', ('s_mov_b64 exec, 0x3ff', I(f'global_load_lds_dwordx4 v{v}, {sp(p)}', tag='xd'), 's_mov_b64 exec, -1')]
    L += [f's_add_u32 m0, s{t4}, 2880', ('s_mov_b64 exec, 0xff', I(f'buffer_load_dwordx4 v14, {q(WS)}, s{sSTO} offen sc1 lds', tag='xd'), 's_mov_b64 exec, -1')]
    return L
def flag_store(off):
    return ('s_mov_b64 exec, 1', f'buffer_store_dword v13, v14, {q(WS)}, s{off} offen sc1', 's_mov_b64 exec, -1')

def p2_setup_v():
    L = [f'v_add_u32 v1, s{sWL}, v14']
    for t in range(1, 4): L += [f'v_add_u32 v{1+t}, {1024*t}, v1', f'v_and_b32 v{1+t}, 0xfff, v{1+t}']
    return L

def ffn_prologue(la, lb):
    P = la + srds([(W1, K_W1, 640*3456), (B1, K_B1, 3456), (W2, K_W2, 1728*1280)]) + lb
    A = P.append
    P += ids2() + round1_addr()
    A('v_lshrrev_b32 v11, 3, v0'); A('v_lshrrev_b32 v8, 4, v0'); A('v_lshlrev_b32 v8, 1, v8'); A('v_and_b32 v9, 7, v0')
    A('v_xor_b32 v8, v8, v9'); A('v_lshlrev_b32 v8, 4, v8')
    A('v_mul_u32_u24 v9, 3456, v11'); A('v_add_u32 v9, v9, v8')
    A(f's_mul_i32 s18, s3, 86'); A('s_lshr_b32 s18, s18, 8')
    A('s_mul_i32 s19, s18, 3'); A(f's_sub_u32 s19, s3, s19'); A(f's_mul_i32 s20, s{sCG}, 3'); A('s_add_u32 s19, s19, s20')
    A(f's_mul_i32 s20, s18, {160*3456}'); A('s_lshl_b32 s21, s19, 7'); A('s_add_u32 s20, s20, s21')
    A(f's_mul_i32 s21, s{sW}, {8*3456}'); A('s_add_u32 s20, s20, s21')
    A('s_cmp_lt_u32 s3, 12'); A(f's_cselect_b32 s20, s20, {OOB}')
    P += round1_loads()
    for i in range(5):
        A(f's_add_u32 m0, s{sWL}, {i*4096}')
        if i: A(f's_add_u32 s20, s20, {32*3456}')
        P.append(I(f'buffer_load_dwordx4 v9, {q(W1)}, s20 offen lds', tag='cs'))
    P += [f's_lshl_b32 s21, s{sCG}, 1', f's_add_u32 s21, s21, s{sWF}', 's_mul_i32 s21, s21, 192', 'v_lshlrev_b32 v13, 1, v13']
    P += [f'buffer_load_ushort v{236+b}, v13, {q(B1)}, s21 offen offset:{64*b}' for b in range(3)]
    P += ST('pro')
    A('s_branch L_ffn')
    return P

def ffn_main(vm):
    P = ['L_ffn:']; A = P.append
    A('v_mul_u32_u24 v10, 1280, v11'); A('v_add_u32 v10, v10, v8')
    P += [f's_mov_b32 s{sC1}, 40960', f's_mov_b32 s{sC2}, 81920', f's_mov_b32 s{sC3}, 122880']
    P += xswz(1, 12)
    A(f's_lshl_b32 s{t4}, s{sRB}, 4'); A(f's_add_u32 s{t4}, s{t4}, s{sW}'); A(f's_lshl_b32 s{t4}, s{t4}, 3')
    A(f'v_add_u32 v12, s{t4}, v11'); A('v_mul_u32_u24 v12, 1280, v12'); A('v_add_u32 v1, v1, v12')
    A(f's_lshl_b32 s{t4}, s{sW}, 3'); A(f'v_add_u32 v12, s{t4}, v11'); A('v_mul_u32_u24 v12, 3456, v12')
    A('v_bfe_u32 v13, v0, 4, 1'); A('v_lshlrev_b32 v13, 2, v13'); A('v_and_b32 v2, 7, v0'); A('v_xor_b32 v2, v2, v13'); A('v_lshl_add_u32 v2, v2, 4, v12')
    A(f's_mul_i32 s{sWK}, s{sCG}, 384')
    P += pair_swap('ffn')
    S = []
    S += ['v_bfe_u32 v12, v0, 1, 3', 'v_lshrrev_b32 v3, 5, v0', 'v_xor_b32 v12, v12, v3', 'v_and_b32 v3, 31, v0', 'v_lshlrev_b32 v3, 7, v3', 'v_lshl_add_u32 v3, v12, 4, v3',
          f's_lshl_b32 s{t4}, s{sWT}, 13', f's_add_u32 s{t4}, s{t4}, {SLOT0}', f'v_add_u32 v3, s{t4}, v3']
    S += [f'v_xor_b32 v{3+s}, {s*32}, v3' for s in range(1, 4)]
    S += ['v_lshrrev_b32 v11, 5, v0', 'v_bfe_u32 v12, v0, 2, 2', 'v_lshl_add_u32 v11, v11, 3, v12', 'v_lshlrev_b32 v11, 7, v11',
          'v_bfe_u32 v12, v0, 3, 1', 'v_lshl_add_u32 v11, v12, 6, v11', 'v_bfe_u32 v12, v0, 4, 1', 'v_lshl_add_u32 v11, v12, 5, v11',
          'v_and_b32 v12, 3, v0', 'v_lshl_add_u32 v11, v12, 3, v11']
    for b in range(3):
        S += [f's_mul_i32 s{t4}, s{sWF}, 3', f's_add_u32 s{t4}, s{t4}, {b}', f's_and_b32 s{t5}, s{t4}, 1', f's_lshl_b32 s{t5}, s{t5}, 6',
              f's_lshr_b32 s{t4}, s{t4}, 1', f's_lshl_b32 s{t4}, s{t4}, 13', f's_add_u32 s{t4}, s{t4}, {SLOT0 + WOFF}',
              f'v_xor_b32 v{7+b}, s{t5}, v11', f'v_add_u32 v{7+b}, s{t4}, v{7+b}']
    S += ['v_lshrrev_b32 v216, 5, v0', 'v_lshlrev_b32 v216, 4, v216', 'v_bfe_u32 v12, v0, 2, 3', 'v_add_u32 v216, v216, v12',
          'v_lshrrev_b32 v12, 1, v12', 'v_lshlrev_b32 v12, 5, v12', 'v_lshl_add_u32 v216, v216, 7, v12', 'v_and_b32 v12, 3, v0', 'v_lshl_add_u32 v216, v12, 3, v216',
          f's_lshl_b32 s{t4}, s{sW}, 5', f'v_xor_b32 v217, s{t4}, v216', f's_lshl_b32 s{t4}, s{sW}, 12', f'v_add_u32 v216, s{t4}, v216']
    S += [f'v_mov_b32 v{160+i}, 0x3f803f80' for i in range(4)]
    S += ['v_lshlrev_b32 v14, 4, v0', 'v_add_u32 v15, 4096, v14']
    S += [f's_lshl_b32 s{sU1}, s19, 6', f's_lshl_b32 s21, s{sW}, 4', f's_add_u32 s{sU1}, s{sU1}, s21', f's_lshl_b32 s{sU1}, s{sU1}, 5', 's_lshl_b32 s21, s18, 3', f's_add_u32 s{sU1}, s{sU1}, s21',
          f's_add_u32 s{sU1}, s{sU1}, {CS}', ('s_cmp_lt_u32 s3, 12', f's_cselect_b32 s{sU1}, s{sU1}, {OOB}'), 'v_lshlrev_b32 v218, 5, v0']
    S += [f's_lshl_b32 s18, s{sCG}, 4', f's_add_u32 s18, s18, s{sRB}', f's_mul_i32 s{r2_}, s18, 4682', f's_lshr_b32 s{r2_}, s{r2_}, 16', f's_mul_i32 s19, s{r2_}, 14', 's_sub_u32 s19, s18, s19',
          's_lshl_b32 s20, s19, 2', f's_add_u32 s20, s20, s{sW}', 's_mul_i32 s21, s20, 3641', 's_lshr_b32 s21, s21, 16', f's_mul_i32 s{t4}, s21, 18', f's_sub_u32 s{t4}, s20, s{t4}',
          f's_mul_i32 s{t4}, s{t4}, 3', f's_add_u32 s{t4}, s{t4}, s21',
          f's_mul_i32 s{r0}, s{t4}, {32*1280}', f's_lshl_b32 s{t4}, s{r2_}, 7', f's_add_u32 s{r0}, s{r0}, s{t4}',
          f's_and_b32 s{r1}, s20, 7', f's_mul_i32 s{r1}, s{r1}, 12', f's_lshr_b32 s{t4}, s20, 3', f's_add_u32 s{r1}, s{r1}, s{t4}', f's_mul_i32 s{r1}, s{r1}, 5120',
          f's_lshl_b32 s21, s{r2_}, 12', f's_add_u32 s{r1}, s{r1}, s21', f's_add_u32 s{r1}, s{r1}, {W2F}',
          ('s_cmp_lt_u32 s20, 54', 's_cselect_b32 s21, s18, 200'), ('s_cmp_lt_u32 s21, 140', f's_cselect_b32 s{r1}, s{r1}, {OOB}', f's_cselect_b32 s{r0}, s{r0}, {OOB}'), f's_lshl_b32 s{r3}, s{sW}, 12',
          's_and_b32 s21, s20, 7', 's_lshl_b32 s21, s21, 3', f's_add_u32 s21, s21, s{t4}', f's_lshl_b32 s{t4}, s{r2_}, 6', f's_add_u32 s21, s21, s{t4}', 's_lshl_b32 s21, s21, 2', f's_add_u32 s21, s21, {PF}',
          'v_lshlrev_b32 v231, 12, v0',
          ('s_cmp_lt_u32 s18, 140', f's_cselect_b32 s{sPUB}, s21, {OOB}')]
    for jj in range(4):
        S += [f's_lshl_b32 s{t4}, s{r2_}, 2', f's_add_u32 s{t4}, s{t4}, {jj}', f's_mul_i32 s{t4}, s{t4}, 52', f's_lshr_b32 s{t4}, s{t4}, 8', f's_mul_i32 s{t4}, s{t4}, {95*5120}', f'v_add_u32 v{232+jj}, s{t4}, v14']
    S += p2_setup(18, 19, 20, 21) + warm_flags()
    S += [f's_lshl_b32 s{t1}, s{sCG}, 1', f's_add_u32 s{t1}, s{t1}, s{sWF}'] + act_offsets(t1, 'f', t2, t3)
    S += [f's_lshl_b32 s{r4}, s{t2}, 6', f's_add_u32 s{r4}, s{r4}, {STAT}', f's_mul_i32 s{r5}, s{t1}, 3072', f's_add_u32 s{r5}, s{r5}, {CS}',
          'v_and_b32 v12, 31, v0', 'v_lshlrev_b32 v219, 3, v12', 'v_lshrrev_b32 v220, 5, v0', 'v_lshlrev_b32 v220, 4, v220', 'v_lshl_add_u32 v220, v12, 5, v220',
          'v_bfe_u32 v11, v0, 4, 1', 'v_lshlrev_b32 v11, 10, v11', 'v_lshrrev_b32 v12, 5, v0', 'v_lshl_add_u32 v11, v12, 8, v11', 'v_and_b32 v12, 15, v0', 'v_lshl_add_u32 v11, v12, 4, v11']
    S += [f'v_mov_b32 v{188+4*k+2+h}, 0' for k in range(5) for h in range(2)]
    S += ['s_mov_b32 s36, -1', 's_mov_b32 s37, 0', 's_mov_b32 s38, 0x07060302', 's_mov_b32 s39, 0x05040302', f's_mov_b32 s{sU0}, 0x01000100']
    d0 = [tuple(g) for g in dma_chunk('ffn', 0)]
    X_, left = sprinkle(S, d0, CFG.get('d0_every', 24)); P += X_ + left
    P += ST('d0') + get_tag() + [f'v_mov_b32 v13, s{sTAG}'] + ST('tag')
    d1 = [tuple(g) for g in dma_chunk('ffn', 1)]
    rl = [(f's_add_u32 m0, s{r3}, {20480 + i*1024}', I(f'buffer_load_dwordx4 v10, {q(W2)}, s{r0} offen lds', tag='rl'), f's_add_u32 s{r0}, s{r0}, {8*1280}') for i in range(4)]
    NPRE = CFG.get('npre', 10)
    T_ = token_stats() + [Wait('cs'), 's_waitcnt lgkmcnt(0)', 's_barrier']
    for ks in range(5):
        for u in range(2): T_.append(f'ds_read_b64_tr_b16 {pr(168+4*ks+2*u)}, v217 offset:{ks*4096+u*1024}')
    for ks in range(5): T_.append(f'v_mfma_f32_16x16x32_bf16 v[164:167], v[160:163], {q4(168+4*ks)}, ' + ('0' if ks == 0 else 'v[164:167]'))
    T_ += ['v_mov_b32 v165, v13', ('s_mov_b64 exec, 0xffff', f'buffer_store_dwordx2 v[164:165], v218, {q(WS)}, s{sU1} offen sc1', 's_mov_b64 exec, -1')]
    if CFG.get('rl_pos', 1) == 0: d1 = rl + d1
    X_, left = sprinkle(T_, d1[:NPRE], CFG.get('d1_every', 12)); P += X_ + ST('stats') + left
    P += [Wait('c0'), 's_barrier'] + ST('bar') + ffn_reads(0)
    rp = CFG.get('rl_pos', 1)
    G, bars = ffn_loop({})
    seq = [(list(g), 0) for g in d1[NPRE:]]
    for c in range(2, 10):
        if rp == c - 1: seq += [(list(g), 0) for g in rl]
        seq += [(g, bars[c-3] if c > 2 else 0) for g in dma_chunk('ffn', c)]
    last = sched_dma(G, bars, 'ffn', seq, 24, CFG.get('rate', 11.0))
    BU = CFG.get('bud', 4)
    g_w = max(last['c9'], int(24 * CFG.get('p_w', 7.5))) + 1
    pf_place(G, g_w, 24, 'pf_ff', 'f', 28, 217)
    S = []
    for jj in range(4):
        S += [f'v_xor_b32 v12, {jj*32}, v216'] + [I(f'ds_read_b64_tr_b16 {pr(152+4*jj+2*u)}, v12 offset:{20480+u*1024}', need=['rl']) for u in range(2)]
    nxt, left = G.place(S, bars[rp] + 1 - CFG.get('rl_early', 0), budget=6); assert not left
    S = [I(f'buffer_store_dwordx4 {q4(152+4*jj)}, v{232+jj}, {q(WS)}, s{r1} offen offset:{1024*jj} sc1', tag='rls') for jj in range(4)]
    g_rl, left = G.place(S, nxt + 1, step=CFG.get('rls_step', 3), budget=8); assert not left
    g_rl, left = G.place([Wait('rls')] + pf_publish(sPUB, False), g_rl + CFG.get('rls_wait', 20)); assert not left
    ld = [f'buffer_load_dwordx2 {pr(168+2*tb)}, v219, {q(WS)}, s{r4} offen offset:{256*tb} sc1' for tb in range(2)] + \
         [f'buffer_load_dwordx4 {q4(172+4*b)}, v220, {q(WS)}, s{r5} offen offset:{1024*b} sc1' for b in range(3)]
    ld = [I(x, tag='ext') for x in ld]
    nxt, left = G.place(ld, max(nxt, int(24 * CFG.get('p_ext', 4.0))), step=CFG.get('ext_step', 4)); assert not left
    S = check('ext', ld, tagacc(12, [169, 171] + [173+2*k for k in range(6)]), ['v_cmp_ne_u32 vcc, 0, v12'])
    EX = 188
    for tb in range(2):
        f = EX + 4 * tb
        S += [f'v_cndmask_b32 v{f+1}, 0, v{168+2*tb}, s[36:37]', f'v_perm_b32 v{f}, v{f+1}, v{f+1}, s{sU0}']
    S += [f'v_add_f32 v{172+4*b}, v{172+4*b}, v{174+4*b}' for b in range(3)] + [f'v_mov_b32 v{173+4*b}, v{172+4*b}' for b in range(3)]
    for b in range(3):
        r = 172 + 4 * b; f = EX + 8 + 4 * b; t = r + 1
        S += [f'v_permlane32_swap_b32 v{r}, v{t}', f'v_add_f32 v{r}, v{r}, v{t}',
              f'v_and_b32 v{t}, 0xffff0000, v{r}', f'v_sub_f32 v{t}, v{r}, v{t}', f'v_perm_b32 v{f}, v{t}, v{r}, s38',
              f'v_and_b32 v{r}, 0xffff0000, v{t}', f'v_sub_f32 v{t}, v{t}, v{r}', f'v_perm_b32 v{f+1}, v{236+b}, v{t}, s39']
    c1 = -2 * math.sqrt(2 / math.pi) * LOG2E; c3 = c1 * 0.044715
    S += [f'v_and_b32 v{212+tb}, 0xffff0000, v{168+2*tb}' for tb in range(2)] + [f'v_rcp_f32 v{169+2*tb}, v{212+tb}' for tb in range(2)]
    for tb in range(2):
        r = 169 + 2 * tb
        S += [f'v_mul_f32 v{208+tb}, {fbits(c1)}, v{r}', f'v_mul_f32 v12, v{r}, v{r}', f'v_mul_f32 v12, v12, v{r}', f'v_mul_f32 v{210+tb}, {fbits(c3)}, v12']
    nxt, left_ext = G.place(S, nxt + 22, budget=BU)
    WL = w2f_loads()
    g3, WL = G.place(WL, g_w, step=CFG.get('w_step', 2), budget=6)
    if CFG.get('stg', 'tail') == 'loop': g3, left = G.place(stage_small(222), bars[8] + 1, budget=6); left_ext += left
    g3, left = G.place(p2_setup_v(), 234, budget=6); left_ext += left
    print('ffn: last dma gap', last['c9'], 'rl', g_rl, 'ext done', nxt, 'left', len(left_ext), 'w2f left', len(WL), file=sys.stderr)
    assert len(WL) >= 25
    P += G.emit() + left_ext + ST('loop')
    P += ffn_mfmas(EX, False)
    return P, WL

def ffn_tail(WL, late):
    P = []
    T = 112; n = 0
    E = []; held = []
    for t in range(6):
        b, tb = divmod(t, 2)
        sel = f'op_sel:[0,{tb},{tb}] op_sel_hi:[1,{tb},{tb}]'
        for piece in range(2):
            o = 128 + 4 * (n % 4); n += 1
            a = lambda p: pr(ACC + 16*t + 8*piece + 2*p)
            tt = lambda p: pr(T + 2*p)
            if n - 1 == CFG.get('late_at', 10): E += late
            if n - 1 == CFG.get('f0_at', 7): E += [Wait('h0'), flag_store(sHF)]
            if n - 1 == CFG.get('f1_at', 11): E += [Wait('h1'), flag_store(sHF + 1)]
            E += [f'v_pk_mul_f32 {tt(p)}, {a(p)}, {a(p)}' for p in range(4)]
            E += [f'v_pk_fma_f32 {tt(p)}, {tt(p)}, v[210:211], v[208:209] {sel}' for p in range(4)]
            E += [f'v_pk_mul_f32 {tt(p)}, {tt(p)}, {a(p)}' for p in range(4)]
            E += [f'v_exp_f32 v{T+p}, v{T+p}' for p in range(8)]
            E += [f'v_pk_fma_f32 {tt(p)}, {tt(p)}, v[212:213], v[212:213] {sel}' for p in range(4)]
            E += [f'v_rcp_f32 v{T+p}, v{T+p}' for p in range(8)]
            E += [f'v_pk_mul_f32 {tt(p)}, {tt(p)}, {a(p)}' for p in range(4)]
            E += [f'v_cvt_pk_bf16_f32 v{o+p}, v{T+2*p}, v{T+2*p+1}' for p in range(4)]
            E.append(I(f'buffer_store_dwordx4 {q4(o)}, v11, {q(WS)}, s{sHA+b} offen offset:{tb*2048+piece*512} sc1', tag=f'h{b}'))
        if tb == 1: E += ST(f'e{b}')
    if CFG.get('f1_at', 11) >= 12: E += [Wait('h1'), flag_store(sHF + 1)]
    ld, c1, c2 = pf_check('pf_fy', 'y', 28, 221)
    k = len(E) // 3; nf = len(WL) - 25
    E1, left = sprinkle(E[:k], WL[:nf], CFG.get('w_every', 90))
    E2, WL = sprinkle(E[k:], left + WL[nf:], CFG.get('w_every', 90))
    E = (stage_small(222) if CFG.get('stg', 'tail') == 'tail' else []) + ld + E1 + c1 + E2[:4] + c2 + ['s_barrier'] + E2[4:]
    P += E + ST('t1') + ST('te')
    return P, WL, [[Wait('h2'), flag_store(sHF + 2)]]

def cpow(dst, rho, th, n, t):
    nn = n if isinstance(n, str) else fbits(n)
    return [f'v_mul_f32 v{t}, {nn}, v{rho}', f'v_mul_f32 v{t+1}, {nn}, v{th}', f'v_exp_f32 v{t}, v{t}', f'v_fract_f32 v{t+1}, v{t+1}',
            f'v_cos_f32 v{dst}, v{t+1}', f'v_sin_f32 v{dst+1}, v{t+1}', f'v_mul_f32 v{dst}, v{t}, v{dst}', f'v_mul_f32 v{dst+1}, v{t}, v{dst+1}']
def rho_theta(lr, li, ld, rho):
    return [f'v_lshlrev_b32 v{ld}, 16, v{ld}', f'v_mul_f32 v{ld}, {fbits(LOG2E)}, v{ld}', f'v_exp_f32 v{ld}, v{ld}', f'v_lshlrev_b32 v{lr}, 16, v{lr}', f'v_lshlrev_b32 v{li}, 16, v{li}',
            f'v_cvt_pk_bf16_f32 v{ld}, v{ld}, v{ld}', f'v_and_b32 v{ld}, 0xffff0000, v{ld}',
            f'v_mul_f32 v{rho}, v{ld}, v{lr}', f'v_mul_f32 v{rho+1}, v{ld}, v{li}',
            f'v_mul_f32 v{rho}, {fbits(LOG2E)}, v{rho}', f'v_mul_f32 v{rho+1}, {fbits(1/(2*math.pi))}, v{rho+1}']
BC_LO = 'op_sel:[0,0,0] op_sel_hi:[0,1,1]'
BC_HI = 'op_sel:[1,0,0] op_sel_hi:[1,1,1]'
NEG0 = 'neg_lo:[1,0,0] neg_hi:[1,0,0]'
SWP = 'op_sel:[1,1,0] op_sel_hi:[1,0,1] neg_lo:[1,0,0]'
def cma(dst, a, x, add):
    return [f'v_pk_fma_f32 {pr(add)}, {pr(a)}, {pr(x)}, {pr(add)} {BC_LO}', f'v_pk_fma_f32 {pr(dst)}, {pr(a)}, {pr(x)}, {pr(add)} {SWP}']

PB_ = 168
def par(b, k): return PB_ + 12 * b + k
A1, A8, A16, A128, RT, ASG = [(lambda k: (lambda b: par(b, k)))(k) for k in (0, 2, 4, 6, 8, 10)]
A512 = RT
A16S = 204
PRM = 16
def s5_prologue(la, lb):
    P = ['L_pro_s5:'] + la + srds([(BRE, K_BRE, 819200), (BIM, K_BIM, 819200), (LRE, K_LRE, 1280), (LIM, K_LIM, 1280), (LDT, K_LDT, 1280),
              (CRE, K_CRE, 819200), (CIM, K_CIM, 819200)]) + lb
    A = P.append
    P += ids2() + round1_addr()
    A(f's_sub_u32 s{sU1}, s{sCG}, 9')
    A(f's_mul_i32 s{t2}, s{sU1}, 96')
    A(f's_mul_i32 s{sWK}, s{sWF}, 48'); A(f's_add_u32 s{sWK}, s{sWK}, s{t2}')
    A(f's_lshl_b32 s{t4}, s{sU1}, 4'); A(f's_add_u32 s{t4}, s{t4}, s{sRB}'); A(f's_mul_i32 s{r0}, s{t4}, 6554'); A(f's_lshr_b32 s{r0}, s{r0}, 16')
    A(f's_mul_i32 s{r1}, s{r0}, 10'); A(f's_sub_u32 s{r1}, s{t4}, s{r1}')
    A('v_and_b32 v7, 15, v0'); A('v_lshrrev_b32 v8, 4, v0'); A('v_lshlrev_b32 v9, 1, v7')
    A(f's_cmp_ge_u32 s3, 6'); A(f's_cselect_b32 s{t3}, 1, 0')
    A(f's_mul_i32 s{t4}, s{t3}, 6'); A(f's_sub_u32 s{t4}, s3, s{t4}'); A(f's_lshl_b32 s{t4}, s{t4}, 4'); A(f's_add_u32 s{t4}, s{t4}, s{t2}')
    A(f's_lshl_b32 s{t5}, s{sW}, 2'); A(f's_add_u32 s{t4}, s{t4}, s{t5}')
    A('s_cmp_lt_u32 s3, 12'); A(f's_cselect_b32 s{t4}, s{t4}, 1000')
    A(f'v_add_u32 v10, s{t4}, v8'); A('v_mul_u32_u24 v11, 1280, v10'); A('v_lshl_add_u32 v11, v7, 4, v11')
    A(f's_mov_b32 s{TSRD+2}, 819200'); A(f's_mov_b32 s{TSRD+3}, 0x20000')
    A(f's_lshl_b32 s{t5}, s{r0}, 2'); A(f's_add_u32 s{t5}, s{t5}, s{sW}'); A(f's_lshl_b32 s{t5}, s{t5}, 4'); A(f'v_add_u32 v9, s{sWK}, v0'); A(f'v_add_u32 v13, s{t5}, v7')
    A('v_cmp_eq_u32 vcc, 3, v8'); A('v_cndmask_b32 v9, v9, v13, vcc'); A('v_lshlrev_b32 v9, 1, v9')
    for k, s in enumerate((LRE, LIM, LDT)): A(f'buffer_load_ushort v{PRM+k}, v9, {q(s)}, 0 offen')
    P += round1_loads()
    A(f's_cmp_ge_u32 s3, 6'); A(f's_cselect_b32 s{TSRD}, s{BIM}, s{BRE}'); A(f's_cselect_b32 s{TSRD+1}, s{BIM+1}, s{BRE+1}')
    for i in range(5): A(f'buffer_load_dwordx4 {q4(32+4*i)}, v11, {q(TSRD)}, 0 offen offset:{256*i}')
    A('v_min_u32 v13, 9, v7'); A('v_lshlrev_b32 v13, 7, v13'); A(f'global_load_dword v28, v13, {sp(pDSK)}'); A(f'global_load_dword v29, v13, {sp(pB2)}')
    P += ST('pro')
    A('s_branch L_s5')
    return P

def s5_main(early):
    P = ['L_s5:']; A = P.append
    P += [f's_mov_b32 s{sC1}, 5120', f's_mov_b32 s{sC2}, 81920', f's_mov_b32 s{sC3}, 87040', f's_mov_b32 s{sU0}, 40960']
    P += xswz(2, 12)
    A('v_lshrrev_b32 v12, 5, v0'); A('v_lshlrev_b32 v12, 4, v12'); A('v_bfe_u32 v13, v0, 3, 1'); A('v_lshl_add_u32 v12, v13, 3, v12')
    A('v_bfe_u32 v13, v0, 4, 1'); A('v_add_u32 v12, v12, v13')
    A(f's_lshl_b32 s{t4}, s{sRB}, 2'); A(f's_add_u32 s{t4}, s{t4}, s{sWT}'); A(f's_lshl_b32 s{t4}, s{t4}, 4'); A(f's_add_u32 s{t4}, s{t4}, s{sWF}'); A(f's_lshl_b32 s{t4}, s{t4}, 1')
    A(f'v_add_u32 v12, s{t4}, v12'); A('v_mul_u32_u24 v12, 1280, v12'); A('v_add_u32 v1, v2, v12')
    A(f's_lshl_b32 s{t4}, s{sW}, 3'); A('v_lshrrev_b32 v12, 3, v0'); A(f'v_add_u32 v12, s{t4}, v12'); A('v_mul_u32_u24 v12, 1280, v12'); A('v_add_u32 v206, v2, v12')
    A(f's_mul_i32 s{t4}, s{t2}, 1280'); A(f'v_add_u32 v2, s{t4}, v206')
    P += pair_swap('s5')
    S = []
    S += ['v_lshrrev_b32 v12, 1, v7', 'v_xor_b32 v12, v12, v8', 'v_lshlrev_b32 v12, 4, v12', 'v_lshl_add_u32 v12, v7, 7, v12',
          f's_lshl_b32 s{t4}, s{sWT}, 13', f's_add_u32 s{t4}, s{t4}, {SLOT0}', f'v_add_u32 v3, s{t4}, v12', 'v_xor_b32 v4, 64, v3',
          f's_mul_i32 s{t4}, s{sWF}, 6144', f's_add_u32 s{t4}, s{t4}, {SLOT0 + WOFF}', f'v_add_u32 v5, s{t4}, v12', 'v_xor_b32 v6, 64, v5']
    S += ['v_lshlrev_b32 v14, 4, v0', 'v_add_u32 v15, 4096, v14']
    S += [f's_lshl_b32 s{t4}, s{sWT}, 2', f'v_add_u32 v9, s{t4}, v8']
    S += p2_setup(r2_, r3, r4, r5) + warm_flags()
    S += [f's_lshl_b32 s{r2_}, s{sU1}, 1', f's_add_u32 s{r2_}, s{r2_}, s{sWF}'] + act_offsets(r2_, 'y', r3, r4)
    S += [(f's_cmp_lt_u32 s{sWK}, 624', f's_cselect_b32 s{r5}, 0, {OOB}')] + [f's_add_u32 s{k+b}, s{k+b}, s{r5}' for k in (sHA, sHF) for b in (1, 2)]
    S += [f's_lshl_b32 s{r3}, s{r3}, 6', f's_add_u32 s{r3}, s{r3}, {STAT}', f's_lshl_b32 s{r4}, s{sWK}, 4', f's_add_u32 s{r4}, s{r4}, {CS5}']
    T = 56; Q_ = 64
    lr, li, ld = PRM, PRM + 1, PRM + 2
    S += rho_theta(lr, li, ld, Q_ + 8) + cpow(Q_, Q_ + 8, Q_ + 9, 1.0, T)
    def sq(dst, src): return [f'v_pk_mul_f32 {pr(T)}, {pr(src)}, {pr(src)} op_sel:[0,0] op_sel_hi:[0,1]', f'v_pk_fma_f32 {pr(dst)}, {pr(src)}, {pr(src)}, {pr(T)} {SWP}']
    S += sq(Q_+2, Q_) + sq(Q_+2, Q_+2) + sq(Q_+2, Q_+2) + sq(Q_+4, Q_+2) + sq(Q_+6, Q_+4) + sq(Q_+6, Q_+6) * 4
    k = Q_ + 10
    S += [f'v_add_f32 v{T}, -1.0, v{Q_}', f'v_mul_f32 v{T+1}, v{lr}, v{lr}', f'v_fmac_f32 v{T+1}, v{li}, v{li}', f'v_rcp_f32 v{T+1}, v{T+1}',
          f'v_mul_f32 v{k}, v{T}, v{lr}', f'v_fmac_f32 v{k}, v{Q_+1}, v{li}', f'v_mul_f32 v{k+1}, v{Q_+1}, v{lr}', f'v_fma_f32 v{k+1}, -v{T}, v{li}, v{k+1}',
          f'v_add_f32 v{T+1}, v{T+1}, v{T+1}', f'v_mul_f32 v{k}, v{k}, v{T+1}', f'v_mul_f32 v{k+1}, v{k+1}, v{T+1}',
          f'v_mov_b64 {pr(A16S)}, {pr(Q_+4)}', f's_lshl_b32 s{t4}, s{sW}, 12', 'v_mul_u32_u24 v12, 48, v0', f'v_add_u32 v12, s{t4}, v12']
    S += [f'ds_write_b128 v12, {q4(Q_+4*i)} offset:{16*i}' for i in range(3)]
    S += [f'v_lshl_add_u32 v12, v0, 3, s{t4}', f'ds_write_b64 v12, {pr(k)} offset:3072', 'v_mul_u32_u24 v12, 48, v7', f'v_add_u32 v12, s{t4}, v12']
    S += [f'ds_read_b128 {q4(par(b, 4*i))}, v12 offset:{768*b + 16*i}' for b in range(3) for i in range(3)]
    S += ['v_and_b32 v13, 1, v8', f'v_lshl_add_u32 v12, v13, 6, s{t4}'] + [f'ds_read_b128 {q4(208+4*i)}, v12 offset:{3072 + 384 + 16*i}' for i in range(4)]
    S += ['v_lshrrev_b32 v12, 1, v8', 'v_lshl_add_u32 v207, v12, 4, v7', 'v_lshlrev_b32 v207, 7, v207',
          f's_lshl_b32 s{t4}, s{sW}, 1', f'v_add_u32 v62, s{t4}, v13', 'v_lshrrev_b32 v63, 1, v7', 'v_xor_b32 v62, v62, v63', 'v_lshl_add_u32 v207, v62, 4, v207',
          'v_lshlrev_b32 v13, 8, v13', 'v_lshl_add_u32 v13, v7, 4, v13', f's_lshl_b32 s{t4}, s{r1}, 2', f'v_add_u32 v12, s{t4}, v12', f's_mov_b32 s{t5}, {95*5120}']
    for u in range(2):
        S += [f'v_mul_u32_u24 v62, 52, v12', 'v_lshrrev_b32 v62, 8, v62', f'v_mul_u32_u24 v62, s{t5}, v62', f'v_lshl_add_u32 v62, v12, 10, v62', f'v_add_u32 v{224+u}, v62, v13', 'v_add_u32 v12, 2, v12']
    S += [(f's_cmp_ge_u32 s{r0}, 5', f's_cselect_b32 s{t4}, 3, 0'), f's_add_u32 s{t4}, s{t4}, s{r0}', f's_lshl_b32 s{t5}, s{r1}, 4', f's_add_u32 s{t4}, s{t4}, s{t5}', f's_lshl_b32 s{t4}, s{t4}, 2',
          f's_add_u32 s{sPUB}, s{t4}, {PF + 3072}',
          f's_lshl_b32 s{t4}, s{r0}, 2', f's_add_u32 s{t4}, s{t4}, s{sW}', f's_mul_i32 s{t5}, s{t4}, 86', f's_lshr_b32 s{t5}, s{t5}, 8', f's_mul_i32 s{t1}, s{t5}, 3', f's_sub_u32 s{t4}, s{t4}, s{t1}',
          f's_mul_i32 s{t4}, s{t4}, 27', f's_add_u32 s{t4}, s{t4}, 1', f's_lshr_b32 s{t4}, s{t4}, 1', f's_add_u32 s{t4}, s{t4}, s{t5}',
          f's_and_b32 s{t5}, s{t4}, 7', f's_mul_i32 s{t5}, s{t5}, 12', f's_lshr_b32 s{t4}, s{t4}, 3', f's_add_u32 s{t4}, s{t4}, s{t5}', f's_mul_i32 s{t4}, s{t4}, 5120', f's_add_u32 s{r2_}, s{t4}, {W2F + 7*5120}',
          f's_mul_i32 s{r1}, s{r1}, {64*1280}', f's_lshl_b32 s{t4}, s{r0}, 7', f's_add_u32 s{t4}, s{t4}, s{r1}',
          (f's_cmp_lt_u32 s{r0}, 10', f's_cselect_b32 s{r0}, s{t4}, {OOB}', f's_cselect_b32 s{r2_}, s{r2_}, {OOB}', f's_cselect_b32 s{sPUB}, s{sPUB}, {OOB}'), f's_add_u32 s{r1}, s{r0}, {32*1280}']
    d0 = [tuple(g) for g in dma_chunk('s5', 0)]
    X_, left = sprinkle(S, d0, CFG.get('s5_d0', 26)); P += X_ + left
    P += ST('d0') + get_tag() + [f'v_mov_b32 v13, s{sTAG}'] + ST('tag')
    d1 = [tuple(g) for g in dma_chunk('s5', 1)]
    NPRE = CFG.get('npre', 10)
    rl = []
    for part in range(2):
        for hi in range(2):
            rl.append((f's_add_u32 m0, s{sWL}, {20480 + 8192*part + 4096*hi}', I(f'buffer_load_dwordx4 v206, {q(CIM if part else CRE)}, s{r1 if hi else r0} offen lds', tag='rl')))
    T_ = token_stats() + ['v_mov_b32 v56, 0'] + [f'v_dot2c_f32_bf16 v56, 0x3f803f80, v{32+i}' for i in range(20)] + dpp_row_sum(56)
    T_ += ['v_mov_b32 v57, v13', f's_lshl_b32 s{t4}, s{t3}, 3', f's_add_u32 s{t4}, s{t4}, {CS5}',
          'v_lshlrev_b32 v11, 4, v10', 'v_cmp_gt_u32 vcc, 640, v10', f'v_mov_b32 v12, {OOB}', 'v_cndmask_b32 v11, v12, v11, vcc',
          ('s_mov_b32 exec_lo, 0x10001', 's_mov_b32 exec_hi, 0x10001', f'buffer_store_dwordx2 v[56:57], v11, {q(WS)}, s{t4} offen sc1', 's_mov_b64 exec, -1')]
    pre = d1
    X_, left = sprinkle(T_, pre[:NPRE], CFG.get('d1_every', 12)); P += X_ + ST('stats') + left
    P += [f'v_mov_b32 v{VX2}, v238', f'v_mov_b32 v{VW2}, v239', Wait('c0'), 's_waitcnt lgkmcnt(0)', 's_barrier'] + ST('bar') + [s5_x(0, 0), s5_b(0, 0)] + [s5_x(0, t) for t in range(1, 4)] + [s5_b(0, n) for n in range(1, 6)] + [bmp(3, 0), bmp(5, 0)]
    rp = CFG.get('rc_pos', 1); c_rl_ack = CFG.get('c_ack5', rp + 4)
    G, bars = s5_loop({rp: ['rl'], c_rl_ack: ['rls']})
    seq = [(list(g), 0) for g in pre[NPRE:]]
    for c in range(2, 10):
        if rp == c - 1: seq += [(list(g), 0) for g in rl]
        seq += [(g, bars[c-3] if c > 2 else 0) for g in dma_chunk('s5', c)]
    last = sched_dma(G, bars, 's5', seq, 48, CFG.get('rate5', 11.0))
    g_w = max(last['c9'], int(48 * CFG.get('p_w5', 7.6))) + 1
    pf_place(G, g_w, 48, 'pf_sf', 'f', 32, 226)
    pf_place(G, bars[8], 48, 'pf_sy', 'y', 32, 250)
    S = []
    D, O, Tm = 228, 236, 244
    for u in range(2):
        S += [f'ds_read_b128 {q4(D+4*part)}, v207 offset:{20480 + 8192*part + 4096*u}' for part in range(2)]
        for k in range(4):
            for h in range(2):
                e = 2 * k + h
                un = (lambda d, s: f'v_lshlrev_b32 v{d}, 16, v{s}') if h == 0 else (lambda d, s: f'v_and_b32 v{d}, 0xffff0000, v{s}')
                kr, ki = 208 + 2 * e, 209 + 2 * e
                S += [un(Tm, D + k), un(Tm + 1, D + 4 + k), f'v_mul_f32 v{Tm+2+h}, v{Tm}, v{kr}', f'v_mul_f32 v{Tm+4+h}, v{Tm}, v{ki}',
                      f'v_fma_f32 v{Tm+2+h}, -v{Tm+1}, v{ki}, v{Tm+2+h}', f'v_fmac_f32 v{Tm+4+h}, v{Tm+1}, v{kr}']
            S += [f'v_cvt_pk_bf16_f32 v{O+k}, v{Tm+2}, v{Tm+3}', f'v_cvt_pk_bf16_f32 v{O+4+k}, -v{Tm+4}, -v{Tm+5}']
        S += [I(f'buffer_store_dwordx4 {q4(O+4*part)}, v{224+u}, {q(WS)}, s{r2_} offen offset:{512*part} sc1', tag='rls') for part in range(2)]
    g_pub, left = G.place(['v_lshlrev_b32 v231, 12, v0'] + pf_publish(sPUB, True), bars[c_rl_ack], budget=3); assert not left
    nxt, left = G.place(S, bars[rp] + 1, budget=CFG.get('bud5', 2)); assert not left and nxt < bars[c_rl_ack], (nxt, bars)
    g_rl = nxt
    CSR = 208
    S = ['v_lshlrev_b32 v223, 3, v0', 'v_lshlrev_b32 v224, 4, v7', f'v_add_u32 v225, s{r5}, v224', (f's_cmp_eq_u32 s{r5}, 0', f's_cselect_b32 s{t4}, s{sTAG}, 0', f'v_mov_b32 v222, s{t4}')]
    nxt, left = G.place(S, nxt, budget=1); assert not left
    ld = [f'buffer_load_dwordx2 v[220:221], v223, {q(WS)}, s{r3} offen sc1'] + \
         [f'buffer_load_dwordx4 {q4(CSR+4*b)}, v{224 if b == 0 else 225}, {q(WS)}, s{r4} offen offset:{256*b} sc1' for b in range(3)]
    ld = [I(x, tag='ext') for x in ld]
    nxt, left = G.place(ld, max(nxt, int(48 * CFG.get('p_ext', 4.0))), step=2*CFG.get('ext_step', 4), budget=1); assert not left
    S = check('ext5', ld, tagacc(12, [221] + [CSR+1+2*k for k in range(6)], [13, 13, 13, 222, 222, 222, 222]), ['v_cmp_ne_u32 vcc, 0, v12'])
    E16 = 8192; GX = 65536
    S += ['v_and_b32 v221, 0xffff0000, v220', 'v_rcp_f32 v221, v221', 'v_lshlrev_b32 v220, 16, v220', 'v_and_b32 v12, 7, v0', 'v_bfe_u32 v11, v0, 3, 1', 'v_lshl_add_u32 v11, v12, 1, v11',
          'v_lshl_add_u32 v11, v8, 4, v11', f's_lshl_b32 s{r0}, s{sW}, 9', f's_add_u32 s{r0}, s{r0}, 37376', f'v_lshl_add_u32 v11, v11, 2, s{r0}',
          'ds_write_b32 v11, v220', 'ds_write_b32 v11, v221 offset:256', f'v_lshl_add_u32 v206, v8, 6, s{r0}',
          f's_mul_i32 s{r0}, s{sWF}, 384', f's_add_u32 s{r0}, s{r0}, {E16}', f'v_lshl_add_u32 v11, v7, 3, s{r0}',
          'v_mul_u32_u24 v12, 768, v9', 'v_add_u32 v12, v12, v11', 'v_lshl_add_u32 v10, v8, 7, v11',
          f's_mul_i32 s{r0}, s{sRB}, {EST_STRIDE}', f's_mul_i32 s{r1}, s{sU1}, 768', f's_add_u32 s{r1}, s{r1}, {EST}', f's_add_u32 s{r1}, s{r1}, s{r0}',
          f's_mul_i32 s{r0}, s{sWF}, 384', f's_add_u32 s{r0}, s{r0}, s{r1}', (f's_cmp_eq_u32 s{sWT}, 0', f's_cselect_b32 s{r0}, s{r0}, {OOB}'),
          f's_add_u32 s{r2_}, s{sW}, 1', f's_mul_i32 s{r3}, s{r2_}, {EST_STRIDE}', f's_sub_u32 s{r1}, s{r1}, s{r3}', f's_sub_u32 s{r2_}, s{sRB}, s{r2_}',
          f's_mul_i32 s{r3}, s{sW}, 768', f's_add_u32 s{r3}, s{r3}, {GX}', f'v_add_u32 v207, s{r3}, v14', 'v_lshlrev_b32 v223, 3, v0',
          'v_lshrrev_b32 v224, 8, v13', 'v_mul_u32_u24 v225, 768, v8', f'v_add_u32 v225, {GX - E16}, v225', 'v_add_u32 v225, v225, v11']
    direct = CFG.get('est') == 'direct'
    if direct:
        S = S[:-3] + [f's_lshl_b32 s{r1}, s{sWK}, 3', f's_add_u32 s{r1}, s{r1}, {EST}', f's_sub_u32 s{r3}, s{sRB}, 1', f'v_sub_u32 v225, s{r3}, v8', f's_mov_b32 s{r3}, {EST_STRIDE}', 'v_lshlrev_b32 v207, 3, v7',
                      f'v_mov_b32 v240, {OOB}', 'v_mov_b32 v241, 0xff']
        for k in range(4):
            S += [f'v_subrev_u32 v{232+k}, {4*k}, v225', f'v_mad_u32_u24 v{232+k}, v{232+k}, s{r3}, v207', f'v_cmp_le_i32 s[{t2}:{t3}], {4*k}, v225',
                  f'v_cndmask_b32 v{236+k}, 0, v241, s[{t2}:{t3}]', f'v_cndmask_b32 v{232+k}, v240, v{232+k}, s[{t2}:{t3}]']
    nxt, left_ext = G.place(S, nxt + 44, budget=1)
    WL = w2f_loads(CFG.get('wrot', 3))
    g3, WL = G.place(WL, g_w, step=CFG.get('w_step5', 4), budget=2)
    if CFG.get('stg5', 'pre') == 'loop': g3, left = G.place(stage_small(228), bars[8] + 1); left_ext += left
    g3, left = G.place(p2_setup_v() + [f'ds_read_b128 {q4(112+4*i)}, v206 offset:{16*i}' for i in range(4)], 457); left_ext += left
    print('s5: last dma gap', last['c9'], 'rl done', g_rl, 'ext done', nxt, 'left', len(left_ext), 'w2f left', len(WL), file=sys.stderr)
    assert len(WL) >= 25
    P += G.emit() + left_ext + ST('loop')
    E = []; B = E.append
    NM, R = 112, 128
    E += [f'ds_read_b128 {q4(R+4*i)}, v206 offset:{256+16*i}' for i in range(4)]
    U = lambda b, part, j: s5_acc(2 * b + part, j >> 1) + 2 * (j & 1)
    st = lambda k, b, part: 144 + 12 * k + 4 * b + 2 * part
    def step(b, sre, sim, ure, uim, dre, dim, a=None):
        a = pr(A1(b) if a is None else a)
        return [f'v_pk_fma_f32 {pr(dre)}, {a}, {pr(sre)}, {pr(ure)} {BC_LO}', f'v_pk_fma_f32 {pr(dim)}, {a}, {pr(sim)}, {pr(uim)} {BC_LO}',
                f'v_pk_fma_f32 {pr(dre)}, {a}, {pr(sim)}, {pr(dre)} {BC_HI} {NEG0}', f'v_pk_fma_f32 {pr(dim)}, {a}, {pr(sre)}, {pr(dim)} {BC_HI}']
    for b in range(3):
        for part in range(2):
            E += [f'v_pk_fma_f32 {pr(U(b,part,j))}, {pr(CSR+4*b+2*part)}, {pr(NM+2*j)}, {pr(U(b,part,j))} {BC_LO}' for j in range(8)]
            E += [f'v_pk_mul_f32 {pr(U(b,part,j))}, {pr(U(b,part,j))}, {pr(R+2*j)}' for j in range(8)]
        for j in range(1, 8):
            s = (U(b, 0, 0), U(b, 1, 0)) if j == 1 else (st(j & 1 ^ 1, b, 0), st(j & 1 ^ 1, b, 1))
            E += step(b, s[0], s[1], U(b, 0, j), U(b, 1, j), st(j & 1, b, 0), st(j & 1, b, 1))
        re, im, e, a8 = st(1, b, 0), st(1, b, 1), st(0, b, 0), A8(b)
        E += [f'v_fma_f32 v{e}, v{a8}, v{re}, v{re+1}', f'v_fma_f32 v{e+1}, v{a8}, v{im}, v{im+1}',
              f'v_fma_f32 v{e}, -v{a8+1}, v{im}, v{e}', f'v_fma_f32 v{e+1}, v{a8+1}, v{re}, v{e+1}', f'ds_write_b64 v12, {pr(e)} offset:{128*b}']
    nw = min(CFG.get('s5_w1', 0), len(WL) - 25)
    E, _ = sprinkle(E, WL[:nw], 20); WL = _ + WL[nw:]
    P += E
    P += ['s_waitcnt lgkmcnt(0)', 's_barrier'] + ST('t1')
    PB = 112
    P += [f'ds_read_b64 {pr(PB+2*k)}, v10 offset:{768*k}' for k in range(8)]
    for k in range(0 if direct else 4):
        P += [f's_sub_u32 s{32+k}, s{r1}, {4*k*EST_STRIDE}', f's_cmp_ge_i32 s{r2_}, {4*k}', f's_cselect_b32 s{32+k}, s{32+k}, {OOB}', f's_cselect_b32 s{36+k}, 0xff, 0']
    P += [f's_mov_b32 s{t3}, 0xff']
    for k in range(1, 8): P += cma(PB + 2*k if k < 7 else 128, A16S, PB + 2*k - 2, PB + 2*k)
    P += [f'v_bfi_b32 v128, s{t3}, v13, v128', f'v_bfi_b32 v129, s{t3}, v224, v129',
          's_mov_b32 exec_hi, 0xffff', f'buffer_store_dwordx2 v[128:129], v223, {q(WS)}, s{r0} offen sc1', 's_mov_b32 exec_hi, -1']
    P += ST('pub')
    PD = 228
    ld = [('s_mov_b32 exec_hi, 0xffff',) + tuple(f'buffer_load_dwordx4 {q4(PD+4*k)}, v14, {q(WS)}, s{32+k} offen sc1' for k in range(4)) + ('s_mov_b32 exec_hi, -1',)]
    acc = []
    for k in range(4):
        a = PD + 4 * k
        acc += [f'v_xor_b32 v130, v13, v{a}', f'v_bitop3_b32 v130, v130, v{a+1}, v224 bitop3:0xf6', f'v_bitop3_b32 v130, v130, v{a+2}, v13 bitop3:0xf6', f'v_bitop3_b32 v130, v130, v{a+3}, v224 bitop3:0xf6',
                f'v_and_b32 v131, s{36+k}, v130' if k == 0 else f'v_and_or_b32 v131, v130, s{36+k}, v131']
    pd = lambda k, b: 208 + 6 * k + 2 * b if k < 2 else 132 + 6 * (k - 2) + 2 * b
    if direct:
        pd = lambda k, b: 208 + 6 * k + 2 * b if k < 2 else 240 + 6 * (k - 2) + 2 * b
        ld = [f'buffer_load_dwordx2 {pr(pd(k, b))}, v{232+k}, {q(WS)}, s{r1} offen offset:{128*b} sc1' for k in (3, 2, 1, 0) for b in range(3)]
        acc = []
        for k in (3, 2, 1, 0):
            acc += [f'v_xor_b32 v130, v13, v{pd(k,0)}'] + [f'v_bitop3_b32 v130, v130, v{pd(k,0)+i}, v{224 if i & 1 else 13} bitop3:0xf6' for i in range(1, 6)]
            acc += [f'v_and_b32 v131, v{236+k}, v130' if k == 3 else f'v_and_or_b32 v131, v130, v{236+k}, v131']
    E = []
    PFX = lambda b: st(0, b, 1)
    eb = lambda k, b: PB + 6 * (k % 3) + 2 * b
    E += [f'ds_read_b64 {pr(eb(k,b))}, v11 offset:{768*k + 128*b}' for k in range(3) for b in range(3)]
    for b in range(3): E += [f'v_mov_b32 v{PFX(b)}, 0', f'v_mov_b32 v{PFX(b)+1}, 0']
    MK = [('0xffff0000', '-1'), ('0', '-1'), ('0', '0xffff0000'), ('0', '0')]
    for k in range(7):
        lo, hi = MK[k & 3]
        sel = (lambda m: f'-1, {m}') if k < 4 else (lambda m: f'{m}, 0')
        grp = [f's_cmp_eq_u32 s{sWT}, 1', f's_cselect_b32 exec_lo, {sel(lo)}', f's_cselect_b32 exec_hi, {sel(hi)}']
        x = [cma(PFX(b), A16(b), PFX(b), eb(k, b)) for b in range(3)]
        grp += [y[0] for y in x] + [y[1] for y in x] + ['s_mov_b64 exec, -1']
        E.append(tuple(grp))
        if k + 3 < 7: E += [f'ds_read_b64 {pr(eb(k+3,b))}, v11 offset:{768*(k+3) + 128*b}' for b in range(3)]
    NPFX = len(E)
    E += ['v_lshlrev_b32 v142, 4, v9', 'v_cvt_f32_u32 v142, v142', 'v_lshlrev_b32 v143, 7, v8', 'v_cvt_f32_u32 v143, v143']
    for b in range(3):
        E += cpow(ASG(b), RT(b), RT(b) + 1, 'v142', 140) + cpow(A512(b), RT(b), RT(b) + 1, 'v143', 140)
    E += [f's_mul_i32 s{t4}, s{sW}, 15360', 'v_mul_u32_u24 v10, 144, v7', 'v_lshl_add_u32 v10, v8, 5, v10', f'v_add_u32 v10, s{t4}, v10',
          'v_bfe_u32 v12, v0, 2, 2', 'v_lshl_add_u32 v11, v8, 3, v12', 'v_mul_u32_u24 v11, 144, v11', 'v_and_b32 v12, 3, v0', 'v_lshl_add_u32 v11, v12, 3, v11', f'v_add_u32 v11, s{t4}, v11']
    gl = [f's_buffer_load_dword s{24+2*k+h}, {q(WS)}, s{32+k} offset:{384*h + 128*((k+h)%3)} glc' for k in range(4) for h in range(2)]
    tst = []
    for k in range(4):
        tst += [f's_xor_b32 s{24+2*k}, s{24+2*k}, s{sTAG}', f's_xor_b32 s{25+2*k}, s{25+2*k}, s{sTAG}', f's_or_b32 s{24+2*k}, s{24+2*k}, s{25+2*k}', f's_and_b32 s{24+2*k}, s{24+2*k}, s{36+k}']
    tst += ['s_or_b32 s24, s24, s26', 's_or_b32 s28, s28, s30', 's_or_b32 s24, s24, s28', 's_cmp_eq_u32 s24, 0']
    nw = CFG.get('s5_w2', 6)
    sg_ = CFG.get('stg5', 'pre')
    eg = CFG.get('eg', True)
    E1, _ = sprinkle(E[:NPFX], WL[:nw], CFG.get('s5_w2e', 14))
    E2, _ = sprinkle(E[NPFX:], _, CFG.get('s5_w2e', 14)); WL = _ + WL[nw:]
    P += (stage_small(140) if sg_ == 'pre' else []) + E1 + (gl if eg else []) + (stage_small(140) if sg_ == 'mid' else []) + E2 + ST('pl0') + (gate('eg', gl, tst) if eg else []) + ld + (stage_small(130 if direct else 140) if sg_ == 'poll' else []) + [fl_load(0)] + ST('t2')
    if direct:
        P += check('est', ld, acc, ['v_cmp_ne_u32 vcc, 0, v131']) + ST('t3')
    else:
        P += check('est', ld, acc + ['v_cmp_ne_u32 vcc, 0, v131'], [f's_and_b32 vcc_hi, vcc_hi, 0xffff', 's_cmp_eq_u64 vcc, 0'])
        P += ['s_mov_b32 exec_hi, 0xffff'] + [f'ds_write_b128 v207, {q4(PD+4*k)} offset:{3072*k}' for k in range(4)] + ['s_mov_b32 exec_hi, -1', 's_waitcnt lgkmcnt(0)', 's_barrier']
        P += ST('t3') + [f'ds_read_b64 {pr(pd(k, b))}, v225 offset:{3072*k + 128*b}' for k in (3, 2, 1, 0) for b in range(3)]
    E = []
    for k in (2, 1, 0):
        x = [cma(pd(k, b), A128(b), pd(k+1, b), pd(k, b)) for b in range(3)]
        E += [y[0] for y in x] + [y[1] for y in x]
    Z = 112
    for b in range(3):
        E += [f'v_pk_mul_f32 {pr(Z+2*b)}, {pr(A512(b))}, {pr(pd(0,b))} op_sel:[0,0] op_sel_hi:[0,1]']
    for b in range(3):
        E += [f'v_pk_fma_f32 {pr(Z+2*b)}, {pr(A512(b))}, {pr(pd(0,b))}, {pr(Z+2*b)} {SWP}']
    for sw in ('v_permlane16_swap_b32', 'v_permlane32_swap_b32'):
        E += [f'v_mov_b64 {pr(Z+6+2*b)}, {pr(Z+2*b)}' for b in range(3)]
        E += [f'{sw} v{Z+i}, v{Z+6+i}' for i in range(6)]
        E += [f'v_pk_add_f32 {pr(Z+2*b)}, {pr(Z+2*b)}, {pr(Z+6+2*b)}' for b in range(3)]
    PK, FG = 124, 208
    for b in range(3):
        E += cma(PFX(b), ASG(b), Z + 2*b, PFX(b))
        re, im, a8, ca = st(1, b, 0), st(1, b, 1), A8(b), PFX(b)
        E += [f'v_fma_f32 v{re+1}, v{a8}, v{ca}, v{re}', f'v_fma_f32 v{im+1}, v{a8}, v{ca+1}, v{im}',
              f'v_fma_f32 v{re+1}, -v{a8+1}, v{ca+1}, v{re+1}', f'v_fma_f32 v{im+1}, v{a8+1}, v{ca}, v{im+1}',
              f'v_mov_b32 v{re}, v{ca}', f'v_mov_b32 v{im}, v{ca+1}']
    E += [f'v_mov_b64 {pr(140+2*b-2)}, {pr(A1(b))}' for b in (1, 2)] + ST('z')
    P += E; E = []
    A1x = lambda b: A1(0) if b == 0 else 138 + 2*b
    def stores(b):
        fg = FG + 16 * (b & 1)
        return [I(f'buffer_store_dwordx4 {q4(fg+4*tb)}, v14, {q(WS)}, s{sHA+b} offen offset:{1024*tb} sc1', tag=f'h{b}') for tb in range(4)]
    for b in range(3):
        for j in range(8):
            s = (st(1, b, 0), st(1, b, 1)) if j == 0 else (U(b, 0, j - 1), U(b, 1, j - 1))
            E += step(b, s[0], s[1], U(b, 0, j), U(b, 1, j), U(b, 0, j), U(b, 1, j), A1x(b))
            if j & 1:
                E += [f'v_cvt_pk_bf16_f32 v{PK+8*part+4*sub+j//2}, v{U(b,part,j-1)+sub}, v{U(b,part,j)+sub}' for part in range(2) for sub in range(2)]
            if j == 3 and b > 0: E += stores(b - 1) + ST(f'hb{b-1}')
        E += [f'ds_write_b128 v10, {q4(PK+8*part+4*sub)} offset:{2304*part + 16*sub}' for part in range(2) for sub in range(2)]
        fg = FG + 16 * (b & 1)
        E += [f'ds_read_b64_tr_b16 {pr(fg+4*tb+2*u)}, v11 offset:{576*u + 32*tb}' for tb in range(4) for u in range(2)]
    k = next(i for i, x in enumerate(E) if isinstance(x, I) and x.tag == 'h0')
    E1, left = sprinkle(E[:k], early[1], CFG.get('early_e', 8))
    P += early[0] + E1 + left + E[k:] + stores(2) + ST('t4')
    return P, WL, [[Wait(f'h{b}'), flag_store(sHF + b)] for b in range(3)]

SYS = 0
CLS = 40960
NS = 12
STAGES = [(0, 0, 2), (0, 2, 4), (0, 4, 7), (1, 0, 7), (0, 7, 12), (1, 7, 12)]
FB = 24
AA, AB, RING = 16, 96, 176
def fl_load(k):
    h, a, b = STAGES[k]; base = FB + 8 * (k & 1)
    return f's_buffer_load_dwordx8 s[{base}:{base+7}], {q(WS)}, s{sFL2 if h else sFL} offset:{4*a} glc'
def fl_check(name, k):
    h, a, b = STAGES[k]; base = FB + 8 * (k & 1)
    pre = [('s_cmp_lg_u32 s3, 0', f's_cselect_b32 s{base+6-a}, s{sTAG}, s{base+6-a}')] if a <= 6 < b else []
    return check_s(f'{name}_a{k}', fl_load(k), list(range(base, base + b - a)), pre)
SETS = {3: (AB, AB + 20), 4: (AB + 40, AB + 60), 5: (AB, AB + 40)}
def mfma_order():
    L = []
    for i in range(4): L += [(0, i, t, j, AA + 20*t + 4*j, i == 0) for t in range(4) for j in range(5)]
    for t in (1, 2, 3, 0): L += [(0, i, t, j, AA + 20*t + 4*j, False) for i in range(4, 7) for j in range(5)]
    for k in (3, 4, 5):
        h, a, b = STAGES[k]
        for p in range(4): L += [(h, i, 3 - p, j, SETS[k][p & 1] + 4*j, p == 0 and i == a) for j in range(5) for i in range(a, b)]
    return L
PRE = [q4(RING + 4*k) for k in range(8)] + [q4(240 + 4*k, 'a') for k in range(4)]
def a_plan(npre, name):
    M = mfma_order()
    fu = {}; lu = {}; wl = {}
    for g, (h, i, t, j, d, f) in enumerate(M):
        fu.setdefault((h, i, t), g); lu[h, i, t] = g; wl[i, j] = g
    GR = sorted(fu, key=lambda x: fu[x])
    areg = {}; agap = {}
    free = [(q4(RING + 32 + 4*k), -1, CFG.get('v_end', 330)) for k in range(4)] + [(q4(AB + 40 + 4*k), -1, 270) for k in range(10)]
    free += [(q4(20*i + 4*j, 'a'), wl[i, j], 999) for i in range(7) for j in range(5)]
    prev = CFG.get('a_first_' + name, 4 if name == 'ff' else 14) - CFG.get('a_pace', 4)
    for n, gr in enumerate(GR):
        if n < 12: reg, av, lim = PRE[n], -1, (999 if n >= 8 else CFG.get('v_end', 330))
        else:
            cand = sorted((x for x in free if x[2] > lu[gr]), key=lambda x: x[1])
            reg, av, lim = cand[0]; free.remove(cand[0])
        if n >= npre:
            la = CFG.get('la1', 56) if n <= 16 else CFG.get('la2', 75)
            if n == 56: la = CFG.get('la_y', 66)
            g = max(prev + CFG.get('a_pace', 4), fu[gr] - la, av)
            agap[gr] = g; prev = g
            assert g + 16 < fu[gr], (gr, g, fu[gr])
        areg[gr] = reg
        free.append((reg, lu[gr], lim))
    return M, GR, fu, areg, agap
def a_load(areg, gr, n):
    h, i, t = gr
    g = [f's_add_u32 s{t1}, s{sAown if h else sA}, {4096*i}'] if (n >= 16 or t == 0) else []
    if i == 6: g.append(f's_or_b32 s{t1}, s{t1}, s3')
    return g + [f'buffer_load_dwordx4 {areg[gr]}, v{1+t}, {q(WS)}, s{t1} offen sc1']
def p2_first(name, npre):
    M, GR, fu, areg, agap = a_plan(npre, name)
    return (fl_check(name, 0) if name == 'ff' else check_s('sy_a01', fl_load(0), list(range(FB, FB + (4 if npre > 8 else 2))))) + ST('a0'), [tuple(a_load(areg, GR[n], n)) for n in range(npre)]

def phase2(name, npre, WL, flags):
    P = []; A = P.append
    M, GR, fu, areg, agap = a_plan(npre, name)
    NG = 40 * NS
    SK = 224; RAW = 244
    def unpack(dst, src, n): return [x for k in range(n) for x in (f'v_lshlrev_b32 v{dst+2*k}, 16, v{src+k}', f'v_and_b32 v{dst+2*k+1}, 0xffff0000, v{src+k}')]
    nw0 = CFG.get('p2_wpre_' + name, 2 if name == 'ff' else 0)
    if name == 'ff' and CFG.get('stg', 'tail') == 'p2': P += stage_small(224)
    P += WL[:nw0]; WL = WL[nw0:]
    k0 = 1 if npre <= 8 else 2
    def x_read(dst, va): return [f'ds_read_b64 {pr(dst+4*j+2)}, v{va} offset:{32*j}' for j in range(5)]
    def x_unp(dst, j): a = dst + 4*j; return [f'v_lshlrev_b32 v{a}, 16, v{a+2}', f'v_and_b32 v{a+1}, 0xffff0000, v{a+2}', f'v_lshlrev_b32 v{a+2}, 16, v{a+3}', f'v_and_b32 v{a+3}, 0xffff0000, v{a+3}']
    sl = [f'buffer_load_dwordx2 v[254:255], v12, {q(WS)}, s{sSTO} offen sc1']
    EN = ['v_and_b32 v12, 15, v0', 'v_lshrrev_b32 v11, 4, v0', 'v_lshlrev_b32 v11, 3, v11', f's_mul_i32 s{r0}, s{sW}, 3072', f's_add_u32 s{r0}, s{r0}, {XL}', f'v_add_u32 v8, s{r0}, v11',
          'v_mul_u32_u24 v5, 160, v12', 'v_add_u32 v6, v5, v8', 'v_lshlrev_b32 v12, 3, v12', f'v_add_u32 v254, s{r0}, v12', Wait('xd'), 'ds_read_b64 v[254:255], v254 offset:2880'] + x_read(SK, 6)
    EN += [f'ds_read_b64 {pr(AB+4*j+2)}, v8 offset:{2720 + 32*j}' for j in range(5)] + [f'ds_read_b64 {pr(RAW+2*j)}, v8 offset:{2560 + 32*j}' for j in range(5)]
    P += ([fl_load(k0)] + flat(flags[0]) + EN if (name == 'sy' or CFG.get('stg', 'tail') == 'p2') else EN + [fl_load(k0)] + flat(flags[0])) + ST('a1')
    flags = flags[1:]
    G = Gaps3(2, 2)
    last_of = {}
    for g, (h, i, t, j, d, first) in enumerate(M):
        c = q4(d) if (not first or (h, i) == (1, 0)) else (q4(SK + 4*j) if (h, i) == (1, 7) else '0')
        G.add(f'v_mfma_f32_16x16x32_bf16 {q4(d)}, {q4(20*i+4*j, "a")}, {areg[h, i, t]}, {c}')
        if g % 20 == 0: G.fixed(g, ST(f's{g//20}'))
        last_of[h, i >= 7, t, j] = g
    for n, gr in enumerate(GR):
        h, i, t = gr
        if n < 28:
            if fu[gr] > 0: G.need(fu[gr] - 1, Need(areg[gr] + ' ' + q4(20*i+16, 'a')))
        elif i in (0, 7): G.need(fu[gr] - 1, Need(areg[h, 6 if i == 0 else 11, t] + ' ' + q4(236 if i == 7 else 0, 'a')))
    pg = -1
    for n, gr in enumerate(GR):
        if gr not in agap: continue
        g = agap[gr]; L = a_load(areg, gr, n)
        if len(L) == 3: G.fixed(g - 1, L[:2], 'post')
        elif len(L) == 2: G.scalar_before(g, L[0], pg)
        G.fixed(g, L[-1:]); pg = g
    ph = 0; win = {}
    for k in (3, 4, 5):
        h, a, b = STAGES[k]; n = b - a
        tid = str(k) in CFG.get('tid', '')
        for p in range(3):
            for j in range(5):
                e = last_of[h, a >= 7, 3 - p, j]; off = 20480 * (ph & 1) + 1024 * j
                src = SETS[k][p & 1] + 4*j; dst = SETS[k][(p + 1) & 1] + 4*j
                if tid:
                    W = [I(f'ds_write_addtid_b32 v{src+r} offset:{off + 256*r}', tag=f'sw{ph}{j}') for r in range(4)]
                    R = [f'ds_read2st64_b32 {pr(dst+2*r)}, v6 offset0:{off//256 + 2*r} offset1:{off//256 + 2*r + 1}' for r in range(2)]
                else:
                    W = [I(f'ds_write_b128 v11, {q4(src)} offset:{off}', tag=f'sw{ph}{j}')]
                    R = [f'ds_read_b128 {q4(dst)}, v7 offset:{off}']
                gw, left = G.place(W, e + CFG.get('sy_w', 4)); assert not left
                gb = gw + CFG.get('sy_b', 3 if tid else 4)
                if CFG.get('bar_split', True):
                    gb += 1
                    while G.g[gb]['mem'] or G.g[gb]['used'] > 0 or G.g[gb]['fs'] or G.g[gb-1]['first']: gb += 1
                    G.need(gb - 1, Wait(f'sw{ph}{j}')); G.g[gb]['first'].append('s_barrier'); G.g[gb]['fs'] = True; G.g[gb]['used'] += 1; G.g[gb]['nomem'] = True
                else:
                    while G.g[gb]['used'] > 0: gb += 1
                    G.need(gb, Wait(f'sw{ph}{j}')); G.fixed(gb, ['s_barrier'], 'pre'); G.g[gb]['used'] = 2
                gr_, left = G.place(R, gb + 1); assert not left
                use = e + 1 + 4 * n
                assert gr_ + 4 < use, (k, p, j, gr_, use)
                G.need(min(use - 1, gr_ + 7) if (p, j) == (2, 4) else use - 1, Need(q4(dst)))
                if (p, j) == (2, 4): win[k] = [gr_ + 8]
                if (p, j) == (0, 0) and k > 3: win[k-1].append(gb - 2)
            ph += 1
    first_of = lambda k: min(g for (h, i, t), g in agap.items() if h == STAGES[k][0] and STAGES[k][1] <= i < STAGES[k][2])
    for fl, gf in zip(flags, CFG.get('f2_gaps', (30, 58))):
        gf, left = G.place(fl, gf, budget=3); assert not left and gf < first_of(4) - 20
    pchk = -1
    for k in range(k0, 4):
        gl = first_of(k)
        ck = fl_check(name, k)
        g0 = max(0, gl - 3 - int(1.6 * len(ck)))
        assert g0 > pchk, (k, g0, pchk)
        if k > k0: G.fixed(max(pchk + 1, g0 - CFG.get('fl_lead', 28)), [fl_load(k)])
        pchk, left = G.place(ck, g0, budget=2); assert not left and pchk < gl, (k, pchk, gl)
        if k == k0: g_k0 = pchk
    gl = first_of(4)
    g_yfl = gl - 8 - CFG.get('yfl_lead', 34)
    if name == 'sy' or CFG.get('yf_vec'):
        g, left = G.place([f'buffer_load_dword v9, v9, {q(WS)}, 0 offen offset:28 sc1'], g_yfl); assert not left
        G.need(gl - 7, Need('v9')); g, left = G.place([f'v_cmp_ne_u32 vcc, s{sTAG}, v9'], gl - 7); assert not left
        assert g + 1 < gl
        G.fixed(gl - 1, [f's_cbranch_vccnz L_spin_{name}_yf', f'L_ret_{name}_yf:'], 'post')
    else:
        G.fixed(gl - 1, [f's_branch L_spin_{name}_yf', f'L_ret_{name}_yf:'], 'post')
    ch, last_ = chain(list(range(FB, FB + 5)) + list(range(FB + 8, FB + 13)))
    SPINS.append([f'L_spin_{name}_yf:', f's_mov_b32 s{t5}, 0', f'L_spinl_{name}_yf:', fl_load(4), fl_load(5), 's_waitcnt lgkmcnt(0)', f's_add_u32 s{t5}, s{t5}, 1', f's_cmp_gt_u32 s{t5}, {SPIN_MAX*2}',
                  f's_cbranch_scc1 L_ret_{name}_yf'] + flat(ch) + [last_, f's_cbranch_scc0 L_spinl_{name}_yf', f's_branch L_ret_{name}_yf'])
    gi = CFG.get('p2_wfirst', 22)
    for m, w in enumerate(WL):
        k = int(w[-1].tag[1:])
        gi, left = G.place([w], gi, budget=2); assert not left
        assert gi + 40 < (280 if k >= 35 else fu[0, k // 5, 0 if k < 20 else 1]), ('weight load too late', k, gi)
        gi += max(2, min(CFG.get('p2_wstep', 14), 200 // len(WL)))
    S = [f's_add_u32 s{r1}, s{sW}, 1', f's_and_b32 s{r1}, s{r1}, 3', f's_mul_i32 s{r0}, s{r1}, 3072', f's_add_u32 s{r0}, s{r0}, {XL}', f'v_add3_u32 v5, v5, v11, s{r0}',
         f's_sub_u32 s{r1}, s{sW}, 1', f's_and_b32 s{r1}, s{r1}, 3',
         'v_mul_u32_u24 v10, 160, v12', f'v_add3_u32 v10, v10, v11, s{sOO}', 'v_lshlrev_b32 v10, 1, v10',
         f's_mul_i32 s{r0}, s{r1}, 5120', f'v_add_u32 v7, s{r0}, v14', f'v_lshl_add_u32 v6, v0, 2, s{r0}', f's_mul_i32 m0, s{sW}, 5120', 'v_add_u32 v11, m0, v14',
         'v_and_b32 v9, 7, v0', 'v_min_u32 v9, 4, v9', f'v_lshl_add_u32 v9, v9, 2, s{sFL}', 'v_and_b32 v8, 8, v0', 'v_lshlrev_b32 v8, 6, v8', 'v_xor_b32 v9, v9, v8',
         f's_mul_i32 s{r0}, s{sW}, 15360', f'v_add_u32 v8, s{r0}, v14',
         f's_mov_b32 s{r2_}, 0x07060100', f's_add_u32 s{r1}, s{sXI}, 3072', f's_add_u32 s{r4}, s{sXO}, 3072', f's_mov_b32 s{t2}, {fbits(-LOG2E)}', f's_mov_b32 s{t3}, {fbits(-LOG2E)}']
    nxt, left = G.place(S, 0); assert not left and nxt < g_yfl
    nxt = max(nxt, g_k0 + 1)
    g_b0, left = G.place(['s_barrier'], CFG.get('bar0', 86)); assert not left
    g = g_b0 + 1.0; gcb = {}
    for t in range(1, 4):
        for j in range(5):
            g = max(g, last_of[0, False, t, j] + 5)
            nx2, left = G.place([I(f'ds_write_b128 v8, {q4(AA + 20*t + 4*j)} offset:{CLS + (t-1)*5120 + 1024*j}', tag=f'cw{t}')], int(g)); assert not left
            g = max(g, nx2) + CFG.get('red_step', 2.0)
        if t > 1:
            gb = nx2 + 5
            while G.g[gb]['used'] > 0: gb += 1
            G.need(gb, Wait(f'cw{t}')); G.fixed(gb, ['s_barrier'], 'pre'); G.g[gb]['used'] = 2; gcb[t] = gb
    gcb[1] = gcb[2]; g_b1 = gcb[3]
    S = check(f'{name}_st', sl, [], [f'v_cmp_ne_u32 vcc, s{sTAG}, v255'])
    S += ['v_and_b32 v255, 0xffff0000, v254', 'v_rcp_f32 v255, v255', 'v_lshlrev_b32 v254, 16, v254', 'v_mul_f32 v254, v254, v255']
    for j in range(5): S += x_unp(SK, j) + [f'v_fma_f32 v{SK+4*j+r}, v{SK+4*j+r}, v255, v254' for r in range(4)]
    for k in range(20): S += [f'v_and_b32 v12, 0xffff0000, v{RAW+k//2}' if k & 1 else f'v_lshlrev_b32 v12, 16, v{RAW+k//2}', f'v_mul_f32 v{SK+k}, v{SK+k}, v12']
    g_sk, left = G.place(sum((x_unp(AB, j) for j in range(5)), []) + S, nxt); assert not left and g_sk < 134, g_sk
    g2 = g_sk; gr = {}
    for t in range(1, 4):
        g2, left = G.place([f's_sub_u32 s{r0}, s{sW}, {t}', f's_and_b32 s{r0}, s{r0}, 3', f's_mul_i32 s{r0}, s{r0}, 15360', f'v_add_u32 v{252+t}, s{r0}, v14'], g2); assert not left
    for t in range(1, 4):
        g2, left = G.place([f'ds_read_b128 {q4(AA + 20*t + 4*j)}, v{252+t} offset:{CLS + (t-1)*5120 + 1024*j}' for j in range(5)], max(g2, gcb[t] + 1)); assert not left
        gr[t] = g2
    def pack(a):
        L = []
        for g in range(3):
            gl = [f'v_cvt_pk_bf16_f32 v{AA+4*g+k}, v{a+7*g+2*k}, v{a+7*g+2*k+1}' for k in range(3)]
            if g < 2: gl += [f'v_cvt_pk_bf16_f32 v{AA+4*g+3}, v{a+7*g+6}, v{a+7*g+6}', f'v_perm_b32 v{AA+4*g+3}, v{AA+4*g+3}, v13, s{r2_}']
            else: gl += [f'v_mov_b32 v{AA+11}, v13']
            L.append(gl)
        return L
    st = lambda g, so: f'buffer_store_dwordx4 {q4(AA+4*g)}, v14, {q(WS)}, s{so} offen offset:{1024*g} sc1'
    g, left = G.place([Need(q4(AA + 56))] + [f'v_add_f32 v{AA+20+k}, v{AA+20+k}, v{AA+40+k}' for k in range(20)], gr[2] + 4); assert not left
    g, left = G.place([f'v_add_f32 v{AA+k}, v{AA+k}, v{AA+20+k}' for k in range(20)], max(g, 144)); assert not left
    g, left = G.place([Need(q4(AA + 76))] + [f'v_add_f32 v{AA+k}, v{AA+k}, v{AA+60+k}' for k in range(20)], max(g, gr[3] + 4)); assert not left
    g, left = G.place(sum(pack(AA), []), g); assert not left
    g_f, left = G.place([st(k, sXO) for k in range(3)], g + 1, step=CFG.get('x_step', 12)); assert not left
    pk = pack(SETS[4][1]); g_y = g_f
    for k, j in enumerate((1, 3, 4)):
        g_y, left = G.place(pk[k] + [st(k, r4)], max(g_y, last_of[0, True, 0, j] + 4)); assert not left
    FT, XU, T, YU = SETS[3][1], AA + 20, AA + 40, AA + 60
    def xch(b, so): return [f'buffer_load_dwordx4 {q4(b+4*g)}, v14, {q(WS)}, s{so} offen offset:{1024*g} sc1' for g in range(3)]
    def recv_check(nm, b, ld): return check(f'{name}_{nm}', ld, tagacc(8, [b + 3, b + 7, b + 11]) + ['v_and_b32 v8, 0xffff, v8'], ['v_cmp_ne_u32 vcc, 0, v8'])
    def run(d, k, b=RAW):
        g, e = divmod(k, 7); r = b + 4 * g + e // 2
        return f'v_and_b32 v{d}, 0xffff0000, v{r}' if (e & 1 or e == 6) else f'v_lshlrev_b32 v{d}, 16, v{r}'
    for k, nm, off, msk in ((3, 'gf', 12, True), (4, 'gy', 6144, False)):
        if nm[1] not in CFG.get('xg', 'fy'): continue
        l_ = I(f's_buffer_load_dword s24, {q(WS)}, s{sXI} offset:{off} glc', tag='async')
        tst = ([f's_xor_b32 s24, s24, s{sTAG}', 's_and_b32 s24, s24, 0xffff', 's_cmp_eq_u32 s24, 0'] if msk else [f's_cmp_eq_u32 s24, s{sTAG}'])
        G.fixed(win[k][0], [l_], 'post'); G.need(win[k][1], 's_waitcnt lgkmcnt(0)'); G.fixed(win[k][1], flat(gate(f'{name}_{nm}', [l_], tst)), 'post')
    g_hb, left = G.place([f's_add_u32 s{r3}, s{sXO}, 6144', flag_store(r3)], CFG.get('hb_gap', 326), budget=3); assert not left
    ly = xch(RAW, r1)
    g_ly, left = G.place(ly, win[4][0] + g_y - g_hb + CFG.get('y_ld', 12), step=2); assert not left
    lf = xch(YU, sXI)
    g_lf, left = G.place(lf, max(win[3][1] + 1, win[3][0] + 2 * CFG.get('x_step', 12) + CFG.get('f_ld', 10)), step=3); assert not left
    g, left = G.place(x_read(XU, 5) + [Need(pr(XU + 18))], max(g, g_sk)); assert not left and g < win[3][0], g
    g, left = G.place(sum((x_unp(XU, j) for j in range(5)), []), g); assert not left
    g_fr, left = G.place(recv_check('xf', YU, lf) + [run(T + k, k, YU) for k in range(20)], max(g, g_lf + 28)); assert not left
    g_fu = g_fr
    for j in range(5):
        g_fr, left = G.place([f'v_add_f32 v{FT+k}, v{FT+k}, v{T+k}' for k in range(4*j, 4*j + 4)], max(g_fr, last_of[1, False, 0, j] + 5)); assert not left
    g = g_fr; done = 0; vleft = []
    while done < 5 and g < NG - CFG.get('silu_stop', 10):
        a = T + 4*done; f = FT + 4*done
        S = [f'v_mul_f32 v{a+r}, s{t2}, v{f+r}' for r in range(4)] + [f'v_exp_f32 v{a+r}, v{a+r}' for r in range(4)] + [f'v_add_f32 v{a+r}, 1.0, v{a+r}' for r in range(4)] + \
            [f'v_rcp_f32 v{a+r}, v{a+r}' for r in range(4)] + [f'v_mul_f32 v{a+r}, v{a+r}, v{f+r}' for r in range(4)]
        g, vleft = G.place(S, g); done += 1
    def silu(j):
        f = FT + 4*j; t = T + 4*j
        return [f'v_pk_mul_f32 {pr(t+2*h)}, {pr(f+2*h)}, s[{t2}:{t3}]' for h in range(2)] + [f'v_exp_f32 v{t+r}, v{t+r}' for r in range(4)] + \
               [f'v_pk_add_f32 {pr(t+2*h)}, {pr(t+2*h)}, 1.0 op_sel_hi:[1,0]' for h in range(2)] + [f'v_rcp_f32 v{t+r}, v{t+r}' for r in range(4)] + \
               [f'v_pk_mul_f32 {pr(t+2*h)}, {pr(t+2*h)}, {pr(f+2*h)}' for h in range(2)]
    print(name, 'w left', len(WL), 'bars', g_b0, g_b1, 'win', win, 'hb', g_hb, 'skip', g_sk, 'last a load', max(agap.values()), 'f sent', g_f, 'f recv', g_lf, g_fu, g_fr, 'y sent', g_y, 'y ld', g_ly, 'silu', done, g, 'left', len(vleft), file=sys.stderr)
    body = []
    for x in G.emit():
        if not isinstance(x, PSEUDO):
            y = mk(x); d = CFG.get('drop', '')
            if 'A' in d and y.op == 'buffer_load_dwordx4' and f's{t1} offen' in y.text: continue
            if 'W' in d and y.op == 'buffer_load_dwordx4' and (f's{t0} offen' in y.text or f's{sWB} offen' in y.text): continue
            if 'L' in d and (y.kind == 'ds' or y.op == 's_barrier'): continue
            if 'B' in d and y.op == 's_barrier': continue
            if 'V' in d and y.kind == 'valu' and not y.op.startswith('v_cmp') and min(r[1] for r in y.defs) >= 16: continue
            if 'X' in d and ((y.kind == 'vmem' and y.wide_store) or 'spin_' + name + '_xf' in y.text): continue
            if 'F' in d and y.op.startswith('s_cbranch') and ('_a' in y.text or '_yf' in y.text): continue
            if 'S' in d and y.kind == 'smem' and 'glc' in y.text: continue
        body.append(x)
    P += body + ST('p2end') + ST('xw') + (recv_check('xy', RAW, ly) if not CFG.get('drop') else []) + ST('xok')
    Y = SETS[5][1]
    for j in range(5):
        if j == done - 1: P += vleft
        if j >= done: P += silu(j)
        P += [run(YU + 4*j + r, 4*j + r) for r in range(4)]
        P += [f'v_pk_add_f32 {pr(Y+4*j+2*h)}, {pr(Y+4*j+2*h)}, {pr(YU+4*j+2*h)}' for h in range(2)]
        P += [f'v_pk_fma_f32 {pr(T+4*j+2*h)}, {pr(T+4*j+2*h)}, {pr(Y+4*j+2*h)}, {pr(XU+4*j+2*h)}' for h in range(2)]
        A(f'global_store_dwordx4 v10, {q4(T+4*j)}, {sp(pOUT)} offset:{64*j} sc1')
    if name == 'sy':
        P += [f's_lshl_b32 s{t4}, s{sW}, 8', f's_or_b32 s{t4}, s{t4}, s2', f's_cmp_eq_u32 s{t4}, 191', f's_mov_b32 s{t4}, {EPO}', f's_cselect_b32 s{t4}, s{t4}, {OOB}', flag_store(t4)]
    P += ST('fin') + ST_dump() + ['s_endpgm']
    return P

def with_state(segs):
    vm, lg = [], []
    out = []
    for s in segs:
        out.append(add_waits(flat(s), vm, lg))
    return out, vm, lg

def diag(seq):
    out = []
    for x in seq:
        if isinstance(x, I) and ((x.tag == 'rl' and CFG.get('no_rl_ld')) or (x.tag == 'rls' and CFG.get('no_rl_st')) or (x.tag == 'ext' and CFG.get('no_ext'))): continue
        if isinstance(x, str) and CFG.get('no_ext') and ('L_spin_ext' in x and 'branch' in x): continue
        out.append(x)
    return out

def build():
    del SPINS[:]; del NOPSTATS[:]
    ent, la, lb = entry()
    fp = ffn_prologue(la, lb); fm, fWL = ffn_main(None)
    sp_ = s5_prologue(la, lb); sm, sWL_, sfl = s5_main(p2_first('sy', CFG.get('npre_s', 8)))
    vm0, lg0 = [], []
    ent = add_waits(flat(ent), vm0, lg0)
    vm, lg = list(vm0), list(lg0)
    a_fp = add_waits(flat(fp), vm, lg)
    tl, wl, fl = ffn_tail(fWL, [fl_load(0)])
    a_fm = add_waits(diag(flat(fm)) + flat(tl + sum(p2_first('ff', 8), []) + phase2('ff', 8, wl, fl)), vm, lg)
    vm, lg = list(vm0), list(lg0)
    a_sp = add_waits(flat(sp_), vm, lg)
    a_sm = add_waits(diag(flat(sm)) + flat(phase2('sy', CFG.get('npre_s', 8), sWL_, sfl)), vm, lg)
    code = add_nops([mk(x) for x in ent], NOPSTATS) + add_nops(a_fp, NOPSTATS) + add_nops(a_sp, NOPSTATS) + add_nops(a_fm, NOPSTATS) + add_nops(a_sm, NOPSTATS)
    code.append(mk('L_spins:'))
    for blk in SPINS: code += add_nops([mk('s_nop 4')] * 0 + [mk(x) for x in blk])
    code.append(mk('L_end:'))
    pend = None
    for x in code:
        if ('vcc', 0) in x.uses or x.op.startswith('s_cbranch_vcc'): pend = None
        if ('vcc', 0) in x.defs:
            assert pend is None or CFG.get('drop'), (pend.text, x.text)
            pend = x
    if CFG.get('align', True):
        code, a, b = align_runs(code, CFG.get('minrun', 6)); print('aligned', a, b, file=sys.stderr)
    return kg.single(render(code), 256, 256, 163840, 512, accum=256)

if __name__ == '__main__':
    out = sys.argv[1] if len(sys.argv) > 1 else 'v2.s'
    for kv in sys.argv[2:]:
        k, v = kv.split('='); CFG[k] = eval(v)
    open(out, 'w').write(build())
    from collections import Counter
    print('nops inserted:', len(NOPSTATS), 'states', sum(p for p, _ in NOPSTATS), Counter(t.split()[0] for p, t in NOPSTATS).most_common(8), file=sys.stderr)
```

```python
import sys, struct, math
from asmlib import *
import kg

def fbits(x): return '0x%08x' % struct.unpack('<I', struct.pack('<f', x))[0]

K_X, K_LRE, K_LIM, K_BRE, K_BIM, K_CRE, K_CIM, K_LDT, K_DSK, K_W1, K_B1, K_W2, K_B2, K_OUT, K_DBG, K_WS = \
    0, 8, 16, 24, 32, 40, 48, 56, 64, 80, 88, 96, 104, 112, 120, 128
ACT = 0
W2F = 0xC00000
STAT = 0x1000000
CS = 0x1010000
EST = 0x1040000; EST_STRIDE = 768 * 8
EPO = 78 * 4096
PF = 0x10C0000
AF = 0x1780000
def afm(): return {'pack': (6, 2), 'line': (7, 2), 'full': (11, 7)}[CFG.get('af', 'pack')]
CS5 = 0x1030000
STAMP_OFF = 0x10A0000
XCH = 0x1100000
WS_USED = 0x1B00000
OOB = 0x40000000
PFS = 3840
LOG2E = 1.4426950408889634
SPIN_MAX = 20000

CFG = dict(stamps=False, w_every=45, eg=False, npre_s=8, s5_w1=6, s5_w2=10, yf_vec=1, la2=60, la_y=56, swap=False, wrot=0, stg5='poll', est='direct', thin5=False, warm=False, rate5=12, x_step=6, f_ld=6, f_wait=22)

X, WS = 4, 8
pOUT, pDSK, pB2 = 12, 14, 16
sHA, sHF = 18, 21
W1, W2, B1 = 24, 28, 72
BRE, BIM, CRE, CIM, LRE, LIM, LDT = 24, 28, 32, 36, 40, 44, 48
TSRD = 72
def q(s): return f's[{s}:{s+3}]'
def sp(s): return f's[{s}:{s+1}]'
sA, sAown, sFL, sFL2, sXO, sXI, sOO, sC160, sSTO, sPFf, sPFy, sPUB = range(40, 52)
sW, sRB, sCG, sTAG, sC1, sC2, sC3, sWL, sWK, sWT, sWF, sWB, r0, r1 = range(52, 66)
t0, t1, t2, t3, t4, t5 = range(66, 72)
r2_, r3, r4, r5, sU0, sU1 = range(72, 78)
NSTAMP = 12
STSETS = {
 'A': ['entry','bar','loop','t1','t3','t4','s1','s7','s12','s19','p2end','end'],
 'S': ['entry','loop','t4','p2end','fin','end','te','s4','bar','loop#','s4#','fin#'],
 'H': ['entry','loop','t4','s4','s9','s12','s14','s16','s18','s21','p2end','fin'],
 'K': ['entry','bar','b4','loop','s4','fin','entry#','bar#','b4#','loop#','s4#','fin#'],
 'B': ['entry','pro','d0','tag','stats','bar','b0','b1','b2','b3','b4','end'],
 'F': ['entry','bar','b0','b1','b2','b3','b4','b5','b6','b7','b8','loop'],
 'G': ['entry','loop','t1','pub','pl0','t2','t3','z','a0','hb0','hb1','t4'],
 'C': ['entry','loop','e0','e1','t1','t4','a0','a1','s0','s1','s2','s3'],
 'D': ['entry','s3','s4','s5','s6','s7','s8','s9','s10','s11','s12','s13'],
 'E': ['entry','s13','s15','s17','s19','s21','s23','p2end','xw','xok','fin','end'],
}
def ST(name):
    if not CFG['stamps']: return []
    L = STSETS[CFG['stamps']]
    out = []
    for nm, op in ((name, 's_memrealtime'), (name + '#', 's_memtime')):
        if nm in L: k = L.index(nm); out.append(f'{op} s[{78+2*k}:{79+2*k}]')
    return out
def ST_dump():
    if not CFG['stamps']: return []
    L = ['s_waitcnt vmcnt(0)'] + ST('end') + ['s_waitcnt lgkmcnt(0)', f's_lshl_b32 s{t0}, s2, 2', f's_add_u32 s{t0}, s{t0}, s{sW}', f's_lshl_b32 s{t0}, s{t0}, 7',
         f's_add_u32 s{t0}, s{t0}, {STAMP_OFF}', 'v_mov_b32 v1, 0', 's_mov_b64 exec, 1']
    for k in range(NSTAMP):
        L += [f'v_mov_b32 v2, s{78+2*k}', f'buffer_store_dword v2, v1, {q(WS)}, s{t0} offen offset:{4*k}']
    return L

def srd(s, koff, size):
    return [f's_load_dwordx2 s[{s}:{s+1}], s[0:1], {koff}'], [f's_mov_b32 s{s+2}, {size}', f's_mov_b32 s{s+3}, 0x20000']
def srds(lst):
    a, b = [], []
    for s, k, z in lst:
        x, y = srd(s, k, z); a += x; b += y
    return a + b
def pr(r): return f'v[{r}:{r+1}]'
def q4(r, f='v'): return f'{f}[{r}:{r+3}]'

NOPSTATS = []
def fin(P): return finalize(flat(P), NOPSTATS)

SPINS = []
def check(name, loads, accum, cond):
    br_bad, br_ok = ('s_cbranch_vccnz', 's_cbranch_vccz') if cond[-1].startswith('v_cmp') else ('s_cbranch_scc0', 's_cbranch_scc1')
    blk = [f'L_spin_{name}:', f's_mov_b32 s{t5}, 0', f'L_spinl_{name}:', 's_sleep 1'] + [mk(x).text for x in flat(loads)] + ['s_waitcnt vmcnt(0)'] + flat(accum) + \
          [f's_add_u32 s{t5}, s{t5}, 1', f's_cmp_gt_u32 s{t5}, {SPIN_MAX}', f's_cbranch_scc1 L_ret_{name}'] + cond + [f'{br_bad} L_spinl_{name}', f's_branch L_ret_{name}']
    SPINS.append(blk)
    return list(accum) + [tuple(cond + [f'{br_bad} L_spin_{name}', f'L_ret_{name}:'])]

def chain(regs):
    L = []; cur = regs[0]
    for r in regs[1:]:
        L.append((f's_cmp_eq_u32 s{cur}, s{sTAG}', f's_cselect_b32 s{regs[0]}, s{r}, s{cur}')); cur = regs[0]
    return L, f's_cmp_eq_u32 s{cur}, s{sTAG}'
def check_s(name, load, regs, pre=[], sleep=0):
    ch, last = chain(regs)
    blk = [f'L_spin_{name}:', f's_mov_b32 s{t5}, 0', f'L_spinl_{name}:'] + ([f's_sleep {sleep}'] if sleep else []) + [mk(x).text for x in flat([load])] + ['s_waitcnt lgkmcnt(0)',
           f's_add_u32 s{t5}, s{t5}, 1', f's_cmp_gt_u32 s{t5}, {SPIN_MAX*2}', f's_cbranch_scc1 L_ret_{name}'] + flat(pre) + flat(ch) + [last, f's_cbranch_scc0 L_spinl_{name}', f's_branch L_ret_{name}']
    SPINS.append(blk)
    return list(pre) + ch + [(last, f's_cbranch_scc0 L_spin_{name}', f'L_ret_{name}:')]

def gate(name, loads, test):
    SPINS.append([f'L_spin_{name}:', f's_mov_b32 s{t5}, 0', f'L_spinl_{name}:'] + [mk(x).text for x in loads] + ['s_waitcnt lgkmcnt(0)', f's_add_u32 s{t5}, s{t5}, 1',
                  f's_cmp_gt_u32 s{t5}, {SPIN_MAX*2}', f's_cbranch_scc1 L_ret_{name}'] + flat(test) + [f's_cbranch_scc0 L_spinl_{name}', f's_branch L_ret_{name}'])
    return list(test[:-1]) + [(test[-1], f's_cbranch_scc0 L_spin_{name}', f'L_ret_{name}:')]

def tagacc(acc, regs, exp=None):
    L = []
    for i, r in enumerate(regs):
        e = f's{sTAG}' if exp is None else f'v{exp[i]}'
        if i == 0: L.append(f'v_xor_b32 v{acc}, {e}, v{r}')
        else: L.append(f'v_bitop3_b32 v{acc}, v{acc}, v{r}, {e} bitop3:0xf6')
    return L

def dpp_row_sum(v):
    return [f'v_add_f32_dpp v{v}, v{v}, v{v} row_ror:{n} row_mask:0xf bank_mask:0xf' for n in (8, 4, 2, 1)]

VTK, VST = 254, 240
def entry():
    P = ['L_base:'] + ST('entry') + [f's_getpc_b64 s[{t0}:{t1}]', 'L_pc:'] + [f's_load_dwordx2 {sp(p)}, s[0:1], {k}' for p, k in ((X, K_X), (WS, K_WS), (pDSK, K_DSK))] + [
        's_cmp_ge_u32 s2, 256', 's_cbranch_scc1 L_end',
        f's_lshr_b32 s{t3}, s2, 3', 'v_lshrrev_b32 v11, 4, v0', f'v_lshl_add_u32 v11, s{t3}, 4, v11', 'v_lshlrev_b32 v11, 7, v11', 'v_min_u32 v11, (L_end-L_pc), v11',
        f'global_load_dword v253, v11, s[{t0}:{t1}]',
        f's_and_b32 s{t4}, s2, 1', f's_lshl_b32 s{t4}, s{t4}, 3', f's_and_b32 s{t5}, s{t3}, 7', f's_add_u32 s{sRB}, s{t4}, s{t5}',
        f's_and_b32 s{t4}, s2, 6', f's_lshr_b32 s{t5}, s2, 6', f's_add_u32 s{t4}, s{t4}, s{t5}', f's_cmp_ge_u32 s{t5}, 2', f's_cselect_b32 s{t5}, 7, 0', f's_add_u32 s{sCG}, s{t4}, s{t5}',
        f's_cmp_eq_u32 s{sCG}, 16', f's_cselect_b32 s{sCG}, 8, s{sCG}', f's_lshl4_add_u32 s{t4}, s{sRB}, s{sCG}',
        f'v_lshrrev_b32 v{VTK}, 5, v0', f'v_lshl_add_u32 v{VTK}, s{t4}, 3, v{VTK}', f'v_mul_u32_u24 v12, 1280, v{VTK}', 'v_and_b32 v13, 31, v0', 'v_lshl_add_u32 v12, v13, 3, v12',
        'v_lshrrev_b32 v1, 6, v0', 'v_and_b32 v0, 63, v0', f's_cmp_ge_u32 s{sCG}, 9', f'v_readfirstlane_b32 s{sW}, v1']
    P += [f'global_load_dwordx2 {pr(VST+2*i)}, v12, {sp(X)} offset:{256*i}' for i in range(5)]
    P += ['s_cbranch_scc1 L_pro_s5']
    late = [f's_load_dwordx2 {sp(p)}, s[0:1], {k}' for p, k in ((pOUT, K_OUT), (pB2, K_B2))] + srd(WS, K_WS, WS_USED)[1] + srd(X, K_X, 2621440)[1]
    return P, late

def ids2():
    duty = [f's_lshr_b32 s3, s{sRB}, 2', f's_sub_u32 s3, s{sRB}, s3', 's_sub_u32 s3, s3, 1', f's_and_b32 s{t4}, s{sRB}, 3', 's_cselect_b32 s3, s3, 12'] if CFG.get('duty', 'even') == 'even' else [f's_mov_b32 s3, s{sRB}']
    return duty + [
            f's_lshl_b32 s{sWL}, s{sW}, 10', f's_and_b32 s{sWT}, s{sW}, 1', f's_lshr_b32 s{sWF}, s{sW}, 1']
def get_tag():
    return [f's_mul_i32 s{sTAG}, s{sTAG}, 0x9e3779b1', f's_add_u32 s{sTAG}, s{sTAG}, 0x7f4a7c15']
def preloop(S, d0):
    n0 = CFG.get('d0_first', 3); k = 0; a = 0
    while k < len(S) and a < CFG.get('st_at', 150):
        a += Gaps.cost(flat([S[k]])); k += 1
    while k < len(S) and any((f's', t4) in mk(y).uses for x in S[k:k+1] for y in flat([x]) if not isinstance(y, PSEUDO)): k += 1
    S = S[:k] + get_tag() + token_stats() + S[k:]
    tot = Gaps.cost(flat(S))
    X_, left = sprinkle(S, d0[n0:], max(1, int((tot - CFG.get('d0_skip', 100)) / (len(d0) - n0 + 0.5))), start=CFG.get('d0_skip', 100))
    return d0[:n0] + X_ + left
def token_stats():
    a, b, c, d = 250, 251, 252, 253
    L = [f'v_mov_b32 v{a}, 0', f'v_mov_b32 v{b}, 0']
    for i in range(10):
        L += [f'v_dot2c_f32_bf16 v{a}, 0x3f803f80, v{VST+i}', f'v_dot2c_f32_bf16 v{b}, v{VST+i}, v{VST+i}']
    for x, y in zip(dpp_row_sum(a), dpp_row_sum(b)): L += [x, y]
    L += [f'v_mov_b32 v{c}, v{a}', f'v_mov_b32 v{d}, v{b}', f'v_permlane16_swap_b32 v{a}, v{c}', f'v_permlane16_swap_b32 v{b}, v{d}',
          f'v_add_f32 v{a}, v{a}, v{c}', f'v_add_f32 v{b}, v{b}, v{d}',
          f'v_mul_f32 v{a}, {fbits(1/640)}, v{a}', f'v_mul_f32 v{b}, {fbits(1/640)}, v{b}',
          f'v_fma_f32 v{b}, -v{a}, v{a}, v{b}', f'v_max_f32 v{b}, 0, v{b}',
          f'v_cvt_pk_bf16_f32 v{b}, v{b}, v{b}', f'v_and_b32 v{b}, 0xffff0000, v{b}',
          f'v_add_f32 v{b}, {fbits(1e-5)}, v{b}', f'v_cvt_pk_bf16_f32 v{b}, v{b}, v{b}', f'v_and_b32 v{b}, 0xffff0000, v{b}',
          f'v_sqrt_f32 v{b}, v{b}', f'v_mov_b32 v{d}, s{sTAG}', f'v_lshlrev_b32 v{VTK}, 3, v{VTK}',
          f'v_cvt_pk_bf16_f32 v{c}, -v{a}, v{b}', f'v_add_u32 v{VTK}, {STAT}, v{VTK}',
          ('s_mov_b32 exec_lo, 1', 's_mov_b32 exec_hi, 1', f'buffer_store_dwordx2 {pr(c)}, v{VTK}, {q(WS)}, 0 offen sc1', 's_mov_b64 exec, -1')]
    return L

def xswz(dst, tmp):
    return [f's_lshl_b32 s{t4}, s{sWT}, 2', f'v_lshrrev_b32 v{tmp}, 4, v0', f'v_add_u32 v{tmp}, s{t4}, v{tmp}',
            f'v_and_b32 v{dst}, 7, v0', f'v_xor_b32 v{dst}, v{dst}, v{tmp}', f'v_lshlrev_b32 v{dst}, 4, v{dst}']

def act_offsets(n, role, a, b_):
    L = [f's_lshl_b32 s{a}, s{sRB}, 1', f's_add_u32 s{a}, s{a}, s{sWT}', f's_lshl_b32 s{a}, s{a}, 3']
    for b in range(3):
        d, fl = sHA + b, sHF + b
        L += [f's_add_u32 s{d}, s{n}, {(0,18,36)[b] if role == "f" else 56 + (0,14,27)[b]}', f's_and_b32 s{b_}, s{d}, 7', f's_add_u32 s{b_}, s{b_}, s{a}', f's_lshr_b32 s{d}, s{d}, 3',
              f's_lshl_b32 s{fl}, s{b_}, {afm()[0] - afm()[1]}', f's_add_u32 s{fl}, s{fl}, s{d}', f's_lshl_b32 s{fl}, s{fl}, {afm()[1]}', f's_add_u32 s{fl}, s{fl}, {AF}',
              f's_mul_i32 s{b_}, s{b_}, 12', f's_add_u32 s{d}, s{d}, s{b_}', f's_lshl_b32 s{d}, s{d}, 12']
    return L

SLOT0 = 40960; SLOT = 40960; WOFF = 16384
ACC = 16; FR = 112

VX2, VW2 = 252, 253
def dma_chunk(role, c):
    slot = SLOT0 + SLOT * (c % 3)
    soff = ['0', f's{sC1}', f's{sC2}', f's{sC3}']
    vx, vw = (1, 2) if c % 2 == 0 else ((VX2, VW2) if c > 1 else (238 if role == 's5' else 239, 239 if role == 's5' else 215))
    if role == 'ffn' and c % 2: vx, vw = 214, 215
    ce = c & ~1
    xs = [[f's_add_u32 m0, s{sWL}, {slot + 4096*n - 128*ce}',
           I(f'buffer_load_dwordx4 v{vx}, {q(X)}, {soff[n]} offen offset:{128*ce} lds', tag=f'c{c}')] for n in range(4)]
    ws = []
    if role == 's5':
        so = ['0', f's{sU0}', f's{sC2}']
        for n in range(6):
            ws.append([f's_add_u32 m0, s{sWL}, {slot + WOFF + 12288*(n%2) + 4096*(n//2) - 128*ce}',
                       I(f'buffer_load_dwordx4 v{vw}, {q(BIM if n % 2 else BRE)}, {so[n//2]} offen offset:{128*ce} lds', tag=f'c{c}')])
    else:
        for hi in range(2):
            for cb in range(3):
                g = [f's_add_u32 m0, s{sWL}, {slot + WOFF + 8192*cb + 4096*hi - 128*cb}',
                     I(f'buffer_load_dwordx4 v{vw}, {q(W1)}, s{sWK} offen offset:{128*cb} lds', tag=f'c{c}')]
                if cb == 2:
                    if hi == 0: g.append(f's_add_u32 s{sWK}, s{sWK}, {32*3456}')
                    elif c % 2 == 0: g.append(f's_sub_u32 s{sWK}, s{sWK}, {32*3456}')
                    else: g.append(f's_add_u32 s{sWK}, s{sWK}, {96*3456}')
                ws.append(g)
    return [xs[0], ws[0], ws[1], xs[1], ws[2], xs[2], ws[3], ws[4], xs[3], ws[5]]
def pair_swap(role):
    ox, ow = (214, 215) if role == 'ffn' else (238, 239)
    ks = 64 * 3456 if role == 'ffn' else 128
    par = [f's_lshr_b32 s{t4}, s2, 3', f's_lshr_b32 s{t5}, s2, 6', f's_xor_b32 s{t4}, s{t4}, s{t5}', f's_and_b32 s{t4}, s{t4}, 1'] if CFG.get('swap', True) else [f's_mov_b32 s{t4}, 0']
    return par + [f's_lshl_b32 s{t5}, s{t4}, 7', f'v_add_u32 v1, s{t5}, v1', f's_xor_b32 s{t5}, s{t5}, 128', f's_lshl_b32 s{t1}, s{t4}, 7', f's_sub_u32 s{t5}, s{t5}, s{t1}', f'v_add_u32 v{ox}, s{t5}, v1',
                  f's_mul_i32 s{t5}, s{t4}, {ks}', f'v_add_u32 v2, s{t5}, v2', f's_lshl_b32 s{t5}, s{t5}, 1', f's_sub_u32 s{t5}, {ks}, s{t5}', f'v_add_u32 v{ow}, s{t5}, v2']

def bmp(v, c):
    return f'v_add_u32 v{v}, 40960, v{v}' if c % 3 != 2 else f'v_subrev_u32 v{v}, 81920, v{v}'

def ffn_reads(sig):
    c, s = divmod(sig, 4)
    f = FR + 20 * (sig & 1)
    x = lambda tb: f'ds_read_b128 {q4(f+4*tb)}, v{3+s} offset:{4096*tb}'
    w = lambda b, u: f'ds_read_b64_tr_b16 {pr(f+8+4*b+2*u)}, v{7+b} offset:{(16*s+4*u)*128}'
    R = [x(0), w(0, 0), w(0, 1), x(1), w(1, 0), w(1, 1), w(2, 0), w(2, 1)]
    if c < 9:
        R.append(bmp(3 + s, c))
        if s == 3: R += [bmp(7, c), bmp(8, c), bmp(9, c)]
    return R
def ffn_mfmas(f, first):
    M = []
    for t in range(6):
        d = ACC + 16 * t
        M.append(f'v_mfma_f32_32x32x16_bf16 v[{d}:{d+15}], {q4(f+8+4*(t//2))}, {q4(f+4*(t%2))}, ' + ('0' if first else f'v[{d}:{d+15}]'))
    return M
def ffn_loop(extra_wait):
    G = Gaps3(6, 5); bars = []
    for sig in range(40):
        c, s = divmod(sig, 4)
        M = ffn_mfmas(FR + 20 * (sig & 1), sig == 0)
        R = ffn_reads(sig + 1) if sig < 39 else []
        bar = (s == 3 and c < 9)
        for t in range(6):
            i = G.add(M[t])
            if t == 1:
                if bar:
                    G.need(i, Wait(f'c{c+1}', *extra_wait.get(c, []))); G.need(i, 's_waitcnt lgkmcnt(0)')
                    G.fixed(i, ['s_barrier'] + ST(f'b{c}'), 'pre'); bars.append(i)
                else: G.need(i, Need(f'v[{FR + 20*(sig&1)}:{FR + 20*(sig&1) + 19}]'))
            if t == 5 and sig < 39: G.need(i, Need(q4(FR + 20*((sig+1)&1) + 4)))
            if t >= (1 if bar else 0):
                n = 2 if t < 5 else len(R)
                if s == 2 and t >= 3 and t < 5: n = 3
                G.fixed(i, R[:n]); R = R[n:]
    return G, bars

def s5_x(sig, tt): return f'ds_read_b128 {q4(FR + 16*(sig&1) + 4*tt)}, v{3+(sig&1)} offset:{2048*tt}'
def s5_b(sig, n): return f'ds_read_b128 {q4(FR + 32 + 4*n)}, v{5+(sig&1)} offset:{12288*(n&1) + 2048*(n>>1)}'
def s5_acc(n, tt): return ACC + 16 * n + 4 * tt
def s5_loop(extra_wait):
    G = Gaps3(2, 2); bars = []
    for sig in range(20):
        c, s = divmod(sig, 2)
        nx = sig + 1
        for n in range(6):
            for tt in range(4):
                d = s5_acc(n, tt)
                i = G.add(f'v_mfma_f32_16x16x32_bf16 {q4(d)}, {q4(FR+16*(sig&1)+4*tt)}, {q4(FR+32+4*n)}, ' + ('0' if sig == 0 else q4(d)))
                bar = s == 1 and c < 9
                if n == 1 and tt == 3 and not bar: G.need(i, Need(q4(FR + 32 + 20)))
                if nx > 19: continue
                if bar and n == 0 and tt == 3:
                    G.need(i, Wait(f'c{c+1}', *extra_wait.get(c, []))); G.need(i, 's_waitcnt lgkmcnt(0)')
                    G.fixed(i, ['s_barrier'] + ST(f'b{c}'), 'pre'); bars.append(i)
                if n == 5 and tt == 3: G.need(i, Need(q4(FR + 16*(nx&1) + 12)))
                if tt == 3: G.fixed(i, [s5_b(nx, n)])
                if n in (1, 2) and tt in (0, 1): G.fixed(i, [s5_x(nx, 2*(n-1) + tt)])
                if nx // 2 < 9:
                    if n == 3 and tt == 1: G.fixed(i, [bmp(3 + (nx & 1), nx // 2)])
                    if n == 5 and tt == 3: G.fixed(i, [bmp(5 + (nx & 1), nx // 2)])
    return G, bars

def sched_dma(G, bars, role, seq, u, rate):
    pos = 0.0
    last = {}
    prev = -1
    for it in seq:
        if it[0] == 'pause':
            pos += it[1] * u; continue
        grp, mg = it
        i = max(int(pos), mg)
        i = max(i, prev + 1)
        while not G.can_dma(i): i += 1
        G.dma(i, grp, prev); prev = i
        last[grp[1].tag] = i
        pos = max(pos, mg) + u / rate
    print(role, 'dma margins (chunks):', [round((bars[c-1] - last[f'c{c}']) / u, 2) for c in range(2, 10)], file=sys.stderr)
    return last

def w2f_loads(rot=0):
    L = []
    for i in [(rot + x) % 7 for x in range(7)] + list(range(7, 12)):
        for j in range(5):
            k = 5 * i + j
            g = []
            if j == 0: g.append(f's_add_u32 s{t0}, s{sWB}, {5120*i}')
            if k == 30: g.append(f's_or_b32 s{t0}, s{t0}, s3')
            g.append(I(f'buffer_load_dwordx4 {q4(4*k, "a")}, v{14 if j < 4 else 15}, {q(WS)}, s{t0} offen' + (f' offset:{1024*j}' if j < 4 else '') + ' sc1', tag=f'w{k}'))
            L.append(tuple(g))
    return L
def p2_setup(a, b, c, d):
    mix = CFG.get('mix', True)
    rsub = [f's_lshr_b32 s{b}, s2, 2', f's_and_b32 s{b}, s{b}, 2', f's_lshr_b32 s{c}, s2, 6', f's_xor_b32 s{b}, s{b}, s{c}'] if mix else [f's_bfe_u32 s{b}, s2, 0x20003']
    return [f's_and_b32 s{a}, s2, 6', f's_lshl_b32 s{a}, s{a}, 1'] + rsub + [f's_add_u32 s{a}, s{a}, s{b}', f's_lshl_b32 s{a}, s{a}, 1',
            f's_and_b32 s{c}, s2, 1', f's_add_u32 s{a}, s{a}, s{c}', f's_xor_b32 s{b}, s{a}, 1',
            f's_lshr_b32 s{sPFy}, s{a}, 1', f's_and_b32 s{sPFy}, s{sPFy}, {CFG.get("pf_rep", 16) - 1}', f's_mul_i32 s{sPFy}, s{sPFy}, {PFS}', f's_add_u32 s{sPFy}, s{sPFy}, {PF}',
            f's_lshl_b32 s{c}, s{c}, 2', f's_add_u32 s{c}, s{c}, s{sW}', (f's_cmp_ge_u32 s{c}, 6', f's_cselect_b32 s3, {OOB}, 0'),
            f's_lshl_b32 s{sPFf}, s{c}, 5', f's_add_u32 s{sPFf}, s{sPFf}, s{sPFy}',
            f's_lshl_b32 s{d}, s{b}, 3', f's_add_u32 s{d}, s{d}, s{c}', f's_mul_i32 s{sA}, s{d}, {12*4096}', f's_lshl_b32 s{sFL}, s{d}, {afm()[0]}', f's_add_u32 s{sFL}, s{sFL}, {AF + (4 if afm()[1] == 7 else 0)}',
            f's_lshl_b32 s{d}, s{a}, 3', f's_add_u32 s{d}, s{d}, s{c}', f's_mul_i32 s{sAown}, s{d}, {12*4096}',
            f's_bfe_u32 s{d}, s2, 0x30003' if mix else f's_lshr_b32 s{d}, s2, 5', f's_mul_i32 s{sC160}, s{d}, 160', f's_xor_b32 s{sFL2}, s{sFL}, {8 << afm()[0]}',
            f's_lshl_b32 s{sWB}, s{d}, 3', f's_add_u32 s{sWB}, s{sWB}, s{c}', f's_mul_i32 s{sWB}, s{sWB}, {12*5120}', f's_add_u32 s{sWB}, s{sWB}, {W2F}',
            f's_mul_i32 s{c}, s{d}, 5', f's_lshr_b32 s{c}, s{c}, 2',
            f's_lshl_b32 s{c}, s{c}, 6', f's_add_u32 s{sPFy}, s{sPFy}, s{c}', f's_lshl_b32 s{c}, s{c}, 2', f's_add_u32 s{sPFf}, s{sPFf}, s{c}',
            f's_lshl_b32 s{c}, s{sW}, 5', f's_add_u32 s{sPFy}, s{sPFy}, s{c}', f's_add_u32 s{sPFy}, s{sPFy}, 3072',
            f's_lshl_b32 s{d}, s{d}, 2', f's_add_u32 s{d}, s{d}, s{sW}',
            f's_lshl_b32 s{c}, s{b}, 5', f's_add_u32 s{c}, s{c}, s{d}', f's_mul_i32 s{sXO}, s{c}, 6272', f's_add_u32 s{sXO}, s{sXO}, {XCH}',
            f's_lshl_b32 s{c}, s{a}, 5', f's_add_u32 s{c}, s{c}, s{d}', f's_mul_i32 s{sXI}, s{c}, 6272', f's_add_u32 s{sXI}, s{sXI}, {XCH}',
            f's_lshl_b32 s{c}, s{a}, 2', f's_add_u32 s{c}, s{c}, s{sW}', f's_mul_i32 s{sOO}, s{c}, {16*1280}', f's_add_u32 s{sOO}, s{sOO}, s{sC160}',
            f's_sub_u32 s{d}, s{sW}, 1', f's_and_b32 s{d}, s{d}, 3', f's_lshl_b32 s{c}, s{a}, 2', f's_add_u32 s{c}, s{c}, s{d}',
            f's_lshl_b32 s{sSTO}, s{c}, 7', f's_add_u32 s{sSTO}, s{sSTO}, {STAT}']
def warm_flags():
    L = [I(f's_buffer_load_dword s{t0}, {q(WS)}, s{x} glc', tag='async') for x in (sFL, sFL2)] if CFG.get('warm', True) else []
    if CFG.get('warm_pf'):
        L += [f's_lshl4_add_u32 s{t1}, s{sCG}, s{sRB}', f's_lshl2_add_u32 s{t1}, s{t1}, s{sW}', f's_lshl_b32 s{t1}, s{t1}, 7', f's_add_u32 s{t1}, s{t1}, {PF}',
              I(f's_buffer_load_dword s{t0}, {q(WS)}, s{t1} glc', tag='async')]
    return L
def pf_publish(off, wg):
    return ([(f's_cmp_eq_u32 s{sW}, 0', f's_cselect_b32 s{off}, s{off}, {OOB}')] if wg else []) + \
           [(f's_mov_b64 exec, {(1 << CFG.get("pf_rep", 16)) - 1}', f'buffer_store_dword v13, v231, {q(WS)}, s{off} offen sc1', 's_mov_b64 exec, -1')]
def pf_check(name, which, fb, v):
    n, so = (7, sPFf) if which == 'f' else (5, sPFy)
    if which == 'f': ld = [f'v_and_b32 v{v}, 7, v0', f'v_min_u32 v{v}, 6, v{v}', f'v_and_b32 v{v+1}, 8, v0', f'v_lshl_or_b32 v{v}, v{v+1}, 3, v{v}']
    else: ld = [f'v_min_u32 v{v}, {n-1}, v0']
    ld += [f'v_lshlrev_b32 v{v}, 2, v{v}', f'buffer_load_dword v{v}, v{v}, {q(WS)}, s{so} offen sc1']
    ch, last = chain(list(range(fb, fb + n)))
    blk = [f'L_spin_{name}:', f's_mov_b32 s{t5}, 0']
    for k in range(2 if which == 'f' else 1):
        blk += [f'L_spinl_{name}{k}:', 's_sleep 2', f's_buffer_load_dwordx8 s[{fb}:{fb+7}], {q(WS)}, s{so} offset:{256*k} glc', 's_waitcnt lgkmcnt(0)',
                f's_add_u32 s{t5}, s{t5}, 1', f's_cmp_gt_u32 s{t5}, {SPIN_MAX*2}', f's_cbranch_scc1 L_ret_{name}'] + flat(ch) + [last, f's_cbranch_scc0 L_spinl_{name}{k}']
    SPINS.append(blk + [f's_branch L_ret_{name}'])
    return ld, [Need(f'v{v}'), f'v_cmp_ne_u32 vcc, s{sTAG}, v{v}'], [(f's_cbranch_vccnz L_spin_{name}', f'L_ret_{name}:')]
def pf_place(G, bar, u, name, which, fb, v):
    ld, c1, c2 = pf_check(name, which, fb, v)
    g, left = G.place(ld, bar - int(u * CFG.get('pf_lead', 0.95))); assert not left
    g = bar - u // 8
    G.need(g, c1[0]); G.fixed(g, c1[1:]); G.fixed(bar - 1, flat(c2), 'post')
XL = 122880
def stage_small(v):
    L = [f's_mul_i32 s{t4}, s{sW}, 3072', f's_add_u32 s{t4}, s{t4}, {XL}', f's_sub_u32 s{t2}, s{sSTO}, {STAT}', f's_mul_i32 s{t2}, s{t2}, 160', f's_add_u32 s{t2}, s{t2}, s{sC160}']
    for i in range(3):
        L += [f'v_add_u32 v{v+1}, {64*i}, v0', f'v_mul_u32_u24 v{v}, 6554, v{v+1}', f'v_lshrrev_b32 v{v}, 16, v{v}', f'v_mul_u32_u24 v{v}, 1120, v{v}', f's_add_u32 m0, s{t4}, {1024*i}',
              f'v_lshl_add_u32 v{v}, v{v+1}, 4, v{v}']
        ld = I(f'buffer_load_dwordx4 v{v}, {q(X)}, s{t2} offen lds', tag='xd')
        L.append(('s_mov_b32 exec_hi, 0', ld, 's_mov_b32 exec_hi, -1') if i == 2 else ld)
    L += [f'v_add_u32 v{v}, s{sC160}, v14']
    for off, p in ((2560, pDSK), (2720, pB2)):
        L += [f's_add_u32 m0, s{t4}, {off}', ('s_mov_b64 exec, 0x3ff', I(f'global_load_lds_dwordx4 v{v}, {sp(p)}', tag='xd'), 's_mov_b64 exec, -1')]
    L += [f's_add_u32 m0, s{t4}, 2880', ('s_mov_b64 exec, 0xff', I(f'buffer_load_dwordx4 v14, {q(WS)}, s{sSTO} offen sc1 lds', tag='xd'), 's_mov_b64 exec, -1')]
    return L
def flag8(off):
    if afm()[1] == 2: return flag_store(off)
    return ('s_mov_b64 exec, 0xff', f'buffer_store_dwordx4 v[12:15], v14, {q(WS)}, s{off} offen sc1', 's_mov_b64 exec, -1')
def flag_store(off):
    return ('s_mov_b64 exec, 1', f'buffer_store_dword v13, v14, {q(WS)}, s{off} offen sc1', 's_mov_b64 exec, -1')

def p2_setup_v():
    L = [f'v_add_u32 v1, s{sWL}, v14']
    for t in range(1, 4): L += [f'v_add_u32 v{1+t}, {1024*t}, v1', f'v_and_b32 v{1+t}, 0xfff, v{1+t}']
    return L

def ffn_prologue(late):
    P = srds([(W1, K_W1, 640*3456)])
    A = P.append
    P += ids2()
    A('v_lshrrev_b32 v11, 3, v0'); A('v_lshrrev_b32 v8, 4, v0'); A('v_lshlrev_b32 v8, 1, v8'); A('v_and_b32 v9, 7, v0')
    A('v_xor_b32 v8, v8, v9'); A('v_lshlrev_b32 v8, 4, v8')
    A('v_mul_u32_u24 v9, 3456, v11'); A('v_add_u32 v9, v9, v8')
    A(f's_mul_i32 s18, s3, 86'); A('s_lshr_b32 s18, s18, 8')
    A('s_mul_i32 s19, s18, 3'); A(f's_sub_u32 s19, s3, s19'); A(f's_mul_i32 s20, s{sCG}, 3'); A('s_add_u32 s19, s19, s20')
    A(f's_mul_i32 s20, s18, {160*3456}'); A('s_lshl_b32 s21, s19, 7'); A('s_add_u32 s20, s20, s21')
    A(f's_mul_i32 s21, s{sW}, {8*3456}'); A('s_add_u32 s20, s20, s21')
    A('s_cmp_lt_u32 s3, 12'); A(f's_cselect_b32 s20, s20, {OOB}')
    for i in range(5):
        A(f's_add_u32 m0, s{sWL}, {i*4096}')
        if i: A(f's_add_u32 s20, s20, {32*3456}')
        P.append(I(f'buffer_load_dwordx4 v9, {q(W1)}, s20 offen lds', tag='cs'))
    P += srds([(B1, K_B1, 3456), (W2, K_W2, 1728*1280)]) + late
    P += [f's_lshl_b32 s21, s{sCG}, 1', f's_add_u32 s21, s21, s{sWF}', 's_mul_i32 s21, s21, 192', 'v_lshlrev_b32 v13, 1, v13']
    P += [f'buffer_load_ushort v{236+b}, v13, {q(B1)}, s21 offen offset:{64*b}' for b in range(3)]
    P += [f's_load_dword s{sTAG}, {sp(WS)}, {EPO}'] + ST('pro')
    A('s_branch L_ffn')
    return P

def ffn_main(vm):
    P = ['L_ffn:']; A = P.append
    A('v_mul_u32_u24 v10, 1280, v11'); A('v_add_u32 v10, v10, v8')
    P += [f's_mov_b32 s{sC1}, 40960', f's_mov_b32 s{sC2}, 81920', f's_mov_b32 s{sC3}, 122880']
    P += xswz(1, 12)
    A(f's_lshl_b32 s{t4}, s{sRB}, 4'); A(f's_add_u32 s{t4}, s{t4}, s{sW}'); A(f's_lshl_b32 s{t4}, s{t4}, 3')
    A(f'v_add_u32 v12, s{t4}, v11'); A('v_mul_u32_u24 v12, 1280, v12'); A('v_add_u32 v1, v1, v12')
    A(f's_lshl_b32 s{t4}, s{sW}, 3'); A(f'v_add_u32 v12, s{t4}, v11'); A('v_mul_u32_u24 v12, 3456, v12')
    A('v_bfe_u32 v13, v0, 4, 1'); A('v_lshlrev_b32 v13, 2, v13'); A('v_and_b32 v2, 7, v0'); A('v_xor_b32 v2, v2, v13'); A('v_lshl_add_u32 v2, v2, 4, v12')
    A(f's_mul_i32 s{sWK}, s{sCG}, 384')
    P += pair_swap('ffn')
    S = []
    S += [f's_lshl_b32 s{sU1}, s19, 6', f's_lshl_b32 s21, s{sW}, 4', f's_add_u32 s{sU1}, s{sU1}, s21', f's_lshl_b32 s{sU1}, s{sU1}, 5', 's_lshl_b32 s21, s18, 3', f's_add_u32 s{sU1}, s{sU1}, s21',
          f's_add_u32 s{sU1}, s{sU1}, {CS}', ('s_cmp_lt_u32 s3, 12', f's_cselect_b32 s{sU1}, s{sU1}, {OOB}'), 'v_lshlrev_b32 v218, 5, v0']
    S += p2_setup(18, 19, 20, 21) + warm_flags()
    S += ['v_bfe_u32 v12, v0, 1, 3', 'v_lshrrev_b32 v3, 5, v0', 'v_xor_b32 v12, v12, v3', 'v_and_b32 v3, 31, v0', 'v_lshlrev_b32 v3, 7, v3', 'v_lshl_add_u32 v3, v12, 4, v3',
          f's_lshl_b32 s{t4}, s{sWT}, 13', f's_add_u32 s{t4}, s{t4}, {SLOT0}', f'v_add_u32 v3, s{t4}, v3']
    S += [f'v_xor_b32 v{3+s}, {s*32}, v3' for s in range(1, 4)]
    S += ['v_lshrrev_b32 v11, 5, v0', 'v_bfe_u32 v12, v0, 2, 2', 'v_lshl_add_u32 v11, v11, 3, v12', 'v_lshlrev_b32 v11, 7, v11',
          'v_bfe_u32 v12, v0, 3, 1', 'v_lshl_add_u32 v11, v12, 6, v11', 'v_bfe_u32 v12, v0, 4, 1', 'v_lshl_add_u32 v11, v12, 5, v11',
          'v_and_b32 v12, 3, v0', 'v_lshl_add_u32 v11, v12, 3, v11']
    for b in range(3):
        S += [f's_mul_i32 s{t4}, s{sWF}, 3', f's_add_u32 s{t4}, s{t4}, {b}', f's_and_b32 s{t5}, s{t4}, 1', f's_lshl_b32 s{t5}, s{t5}, 6',
              f's_lshr_b32 s{t4}, s{t4}, 1', f's_lshl_b32 s{t4}, s{t4}, 13', f's_add_u32 s{t4}, s{t4}, {SLOT0 + WOFF}',
              f'v_xor_b32 v{7+b}, s{t5}, v11', f'v_add_u32 v{7+b}, s{t4}, v{7+b}']
    S += ['v_lshrrev_b32 v216, 5, v0', 'v_lshlrev_b32 v216, 4, v216', 'v_bfe_u32 v12, v0, 2, 3', 'v_add_u32 v216, v216, v12',
          'v_lshrrev_b32 v12, 1, v12', 'v_lshlrev_b32 v12, 5, v12', 'v_lshl_add_u32 v216, v216, 7, v12', 'v_and_b32 v12, 3, v0', 'v_lshl_add_u32 v216, v12, 3, v216',
          f's_lshl_b32 s{t4}, s{sW}, 5', f'v_xor_b32 v217, s{t4}, v216', f's_lshl_b32 s{t4}, s{sW}, 12', f'v_add_u32 v216, s{t4}, v216']
    S += [f'v_mov_b32 v{160+i}, 0x3f803f80' for i in range(4)]
    S += ['v_lshlrev_b32 v14, 4, v0', 'v_add_u32 v15, 4096, v14']
    S += [f's_lshl_b32 s18, s{sCG}, 4', f's_add_u32 s18, s18, s{sRB}', f's_mul_i32 s{r2_}, s18, 4682', f's_lshr_b32 s{r2_}, s{r2_}, 16', f's_mul_i32 s19, s{r2_}, 14', 's_sub_u32 s19, s18, s19',
          's_lshl_b32 s20, s19, 2', f's_add_u32 s20, s20, s{sW}', 's_mul_i32 s21, s20, 3641', 's_lshr_b32 s21, s21, 16', f's_mul_i32 s{t4}, s21, 18', f's_sub_u32 s{t4}, s20, s{t4}',
          f's_mul_i32 s{t4}, s{t4}, 3', f's_add_u32 s{t4}, s{t4}, s21',
          f's_mul_i32 s{r0}, s{t4}, {32*1280}', f's_lshl_b32 s{t4}, s{r2_}, 7', f's_add_u32 s{r0}, s{r0}, s{t4}',
          f's_and_b32 s{r1}, s20, 7', f's_mul_i32 s{r1}, s{r1}, 12', f's_lshr_b32 s{t4}, s20, 3', f's_add_u32 s{r1}, s{r1}, s{t4}', f's_mul_i32 s{r1}, s{r1}, 5120',
          f's_lshl_b32 s21, s{r2_}, 12', f's_add_u32 s{r1}, s{r1}, s21', f's_add_u32 s{r1}, s{r1}, {W2F}',
          ('s_cmp_lt_u32 s20, 54', 's_cselect_b32 s21, s18, 200'), ('s_cmp_lt_u32 s21, 140', f's_cselect_b32 s{r1}, s{r1}, {OOB}', f's_cselect_b32 s{r0}, s{r0}, {OOB}'), f's_lshl_b32 s{r3}, s{sW}, 12',
          's_and_b32 s21, s20, 7', 's_lshl_b32 s21, s21, 3', f's_add_u32 s21, s21, s{t4}', f's_lshl_b32 s{t4}, s{r2_}, 6', f's_add_u32 s21, s21, s{t4}', 's_lshl_b32 s21, s21, 2', f's_add_u32 s21, s21, {PF}',
          f'v_mul_u32_u24 v231, {PFS}, v0',
          ('s_cmp_lt_u32 s18, 140', f's_cselect_b32 s{sPUB}, s21, {OOB}')]
    for jj in range(4):
        S += [f's_lshl_b32 s{t4}, s{r2_}, 2', f's_add_u32 s{t4}, s{t4}, {jj}', f's_mul_i32 s{t4}, s{t4}, 52', f's_lshr_b32 s{t4}, s{t4}, 8', f's_mul_i32 s{t4}, s{t4}, {95*5120}', f'v_add_u32 v{232+jj}, s{t4}, v14']
    S += [f's_lshl_b32 s{t1}, s{sCG}, 1', f's_add_u32 s{t1}, s{t1}, s{sWF}'] + act_offsets(t1, 'f', t2, t3)
    S += [f's_lshl_b32 s{r4}, s{t2}, 6', f's_add_u32 s{r4}, s{r4}, {STAT}', f's_mul_i32 s{r5}, s{t1}, 3072', f's_add_u32 s{r5}, s{r5}, {CS}',
          'v_and_b32 v12, 31, v0', 'v_lshlrev_b32 v219, 3, v12', 'v_lshrrev_b32 v220, 5, v0', 'v_lshlrev_b32 v220, 4, v220', 'v_lshl_add_u32 v220, v12, 5, v220',
          'v_bfe_u32 v11, v0, 4, 1', 'v_lshlrev_b32 v11, 10, v11', 'v_lshrrev_b32 v12, 5, v0', 'v_lshl_add_u32 v11, v12, 8, v11', 'v_and_b32 v12, 15, v0', 'v_lshl_add_u32 v11, v12, 4, v11']
    S += [f'v_mov_b32 v{188+4*k+2+h}, 0' for k in range(5) for h in range(2)]
    S += ['s_mov_b32 s36, -1', 's_mov_b32 s37, 0', 's_mov_b32 s38, 0x07060302', 's_mov_b32 s39, 0x05040302', f's_mov_b32 s{sU0}, 0x01000100']
    d0 = [tuple(g) for g in dma_chunk('ffn', 0)]
    P += preloop(S, d0) + ST('d0') + [f'v_mov_b32 v13, s{sTAG}'] + ST('tag')
    d1 = [tuple(g) for g in dma_chunk('ffn', 1)]
    rl = [(f's_add_u32 m0, s{r3}, {20480 + i*1024}', I(f'buffer_load_dwordx4 v10, {q(W2)}, s{r0} offen lds', tag='rl'), f's_add_u32 s{r0}, s{r0}, {8*1280}') for i in range(4)]
    NPRE = CFG.get('npre', 10)
    T_ = [Wait('cs'), 's_waitcnt lgkmcnt(0)', 's_barrier']
    for ks in range(5):
        for u in range(2): T_.append(f'ds_read_b64_tr_b16 {pr(168+4*ks+2*u)}, v217 offset:{ks*4096+u*1024}')
    for ks in range(5): T_.append(f'v_mfma_f32_16x16x32_bf16 v[164:167], v[160:163], {q4(168+4*ks)}, ' + ('0' if ks == 0 else 'v[164:167]'))
    T_ += ['v_mov_b32 v165, v13', ('s_mov_b64 exec, 0xffff', f'buffer_store_dwordx2 v[164:165], v218, {q(WS)}, s{sU1} offen sc1', 's_mov_b64 exec, -1')]
    if CFG.get('rl_pos', 1) == 0: d1 = rl + d1
    X_, left = sprinkle(T_, d1[:NPRE], CFG.get('d1_every', 6)); P += X_ + ST('stats') + left
    P += [Wait('c0'), 's_barrier'] + ST('bar') + ffn_reads(0)
    rp = CFG.get('rl_pos', 1)
    G, bars = ffn_loop({})
    seq = [(list(g), 0) for g in d1[NPRE:]]
    for c in range(2, 10):
        if rp == c - 1: seq += [(list(g), 0) for g in rl] + [('pause', CFG.get('rl_pause', 0))]
        seq += [(g, bars[c-3] if c > 2 else 0) for g in dma_chunk('ffn', c)]
    last = sched_dma(G, bars, 'ffn', seq, 24, CFG.get('rate', 11.0))
    BU = CFG.get('bud', 4)
    g_w = max(last['c9'], int(24 * CFG.get('p_w', 7.5))) + 1
    pf_place(G, g_w, 24, 'pf_ff', 'f', 28, 217)
    S = []
    for jj in range(4):
        S += [f'v_xor_b32 v12, {jj*32}, v216'] + [I(f'ds_read_b64_tr_b16 {pr(152+4*jj+2*u)}, v12 offset:{20480+u*1024}', need=['rl']) for u in range(2)]
    nxt, left = G.place(S, bars[rp] + 1 - CFG.get('rl_early', 0), budget=6); assert not left
    S = [I(f'buffer_store_dwordx4 {q4(152+4*jj)}, v{232+jj}, {q(WS)}, s{r1} offen offset:{1024*jj} sc1', tag='rls') for jj in range(4)]
    g_rl, left = G.place(S, nxt + 1, step=CFG.get('rls_step', 3), budget=8); assert not left
    g_rl, left = G.place([Wait('rls')] + pf_publish(sPUB, False), g_rl + CFG.get('rls_wait', 20)); assert not left
    ld = [f'buffer_load_dwordx2 {pr(168+2*tb)}, v219, {q(WS)}, s{r4} offen offset:{256*tb} sc1' for tb in range(2)] + \
         [f'buffer_load_dwordx4 {q4(172+4*b)}, v220, {q(WS)}, s{r5} offen offset:{1024*b} sc1' for b in range(3)]
    ld = [I(x, tag='ext') for x in ld]
    nxt, left = G.place(ld, max(nxt, int(24 * CFG.get('p_ext', 4.0))), step=CFG.get('ext_step', 4)); assert not left
    S = check('ext', ld, tagacc(12, [169, 171] + [173+2*k for k in range(6)]), ['v_cmp_ne_u32 vcc, 0, v12'])
    EX = 188
    for tb in range(2):
        f = EX + 4 * tb
        S += [f'v_cndmask_b32 v{f+1}, 0, v{168+2*tb}, s[36:37]', f'v_perm_b32 v{f}, v{f+1}, v{f+1}, s{sU0}']
    S += [f'v_add_f32 v{172+4*b}, v{172+4*b}, v{174+4*b}' for b in range(3)] + [f'v_mov_b32 v{173+4*b}, v{172+4*b}' for b in range(3)]
    for b in range(3):
        r = 172 + 4 * b; f = EX + 8 + 4 * b; t = r + 1
        S += [f'v_permlane32_swap_b32 v{r}, v{t}', f'v_add_f32 v{r}, v{r}, v{t}',
              f'v_and_b32 v{t}, 0xffff0000, v{r}', f'v_sub_f32 v{t}, v{r}, v{t}', f'v_perm_b32 v{f}, v{t}, v{r}, s38',
              f'v_and_b32 v{r}, 0xffff0000, v{t}', f'v_sub_f32 v{t}, v{t}, v{r}', f'v_perm_b32 v{f+1}, v{236+b}, v{t}, s39']
    c1 = -2 * math.sqrt(2 / math.pi) * LOG2E; c3 = c1 * 0.044715
    S += [f'v_and_b32 v{212+tb}, 0xffff0000, v{168+2*tb}' for tb in range(2)] + [f'v_rcp_f32 v{169+2*tb}, v{212+tb}' for tb in range(2)]
    for tb in range(2):
        r = 169 + 2 * tb
        S += [f'v_mul_f32 v{208+tb}, {fbits(c1)}, v{r}', f'v_mul_f32 v12, v{r}, v{r}', f'v_mul_f32 v12, v12, v{r}', f'v_mul_f32 v{210+tb}, {fbits(c3)}, v12']
    nxt, left_ext = G.place(S, nxt + 22, budget=BU)
    WL = w2f_loads()
    g3, WL = G.place(WL, g_w, step=CFG.get('w_step', 2), budget=6)
    if CFG.get('stg', 'tail') == 'loop': g3, left = G.place(stage_small(222), bars[8] + 1, budget=6); left_ext += left
    g3, left = G.place(p2_setup_v(), 234, budget=6); left_ext += left
    print('ffn: last dma gap', last['c9'], 'rl', g_rl, 'ext done', nxt, 'left', len(left_ext), 'w2f left', len(WL), file=sys.stderr)
    assert len(WL) >= 25
    P += G.emit() + left_ext + ST('loop')
    if CFG.get('warm2', True): P += [I(f's_buffer_load_dword s{t1}, {q(WS)}, s{sHF+b} glc', tag='async') for b in range(3)]
    P += ffn_mfmas(EX, False)
    return P, WL

def ffn_tail(WL, late):
    P = []
    T = 112; n = 0
    E = []; held = []
    for t in range(6):
        b, tb = divmod(t, 2)
        sel = f'op_sel:[0,{tb},{tb}] op_sel_hi:[1,{tb},{tb}]'
        for piece in range(2):
            o = 128 + 4 * (n % 4); n += 1
            a = lambda p: pr(ACC + 16*t + 8*piece + 2*p)
            tt = lambda p: pr(T + 2*p)
            if n - 1 == CFG.get('late_at', 10): E += late
            if n - 1 == CFG.get('f0_at', 7): E += [Wait('h0'), flag8(sHF)]
            if n - 1 == CFG.get('f1_at', 11): E += [Wait('h1'), flag8(sHF + 1)]
            E += [f'v_pk_mul_f32 {tt(p)}, {a(p)}, {a(p)}' for p in range(4)]
            E += [f'v_pk_fma_f32 {tt(p)}, {tt(p)}, v[210:211], v[208:209] {sel}' for p in range(4)]
            E += [f'v_pk_mul_f32 {tt(p)}, {tt(p)}, {a(p)}' for p in range(4)]
            E += [f'v_exp_f32 v{T+p}, v{T+p}' for p in range(8)]
            E += [f'v_pk_fma_f32 {tt(p)}, {tt(p)}, v[212:213], v[212:213] {sel}' for p in range(4)]
            E += [f'v_rcp_f32 v{T+p}, v{T+p}' for p in range(8)]
            E += [f'v_pk_mul_f32 {tt(p)}, {tt(p)}, {a(p)}' for p in range(4)]
            E += [f'v_cvt_pk_bf16_f32 v{o+p}, v{T+2*p}, v{T+2*p+1}' for p in range(4)]
            E.append(I(f'buffer_store_dwordx4 {q4(o)}, v11, {q(WS)}, s{sHA+b} offen offset:{tb*2048+piece*512} sc1', tag=f'h{b}'))
        if tb == 1: E += ST(f'e{b}')
    if CFG.get('f1_at', 11) >= 12: E += [Wait('h1'), flag8(sHF + 1)]
    ld, c1, c2 = pf_check('pf_fy', 'y', 28, 221)
    k = len(E) // 3; nf = len(WL) - 25
    E1, left = sprinkle(E[:k], WL[:nf], CFG.get('w_every', 90))
    E2, WL = sprinkle(E[k:], left + WL[nf:], CFG.get('w_every', 90))
    E = (stage_small(222) if CFG.get('stg', 'tail') == 'tail' else []) + ld + E1 + c1 + E2[:4] + c2 + ['s_barrier'] + E2[4:]
    P += E + ST('t1') + ST('te')
    return P, WL, [[Wait('h2'), flag8(sHF + 2)]]

def cpow(dst, rho, th, n, t):
    nn = n if isinstance(n, str) else fbits(n)
    return [f'v_mul_f32 v{t}, {nn}, v{rho}', f'v_mul_f32 v{t+1}, {nn}, v{th}', f'v_exp_f32 v{t}, v{t}', f'v_fract_f32 v{t+1}, v{t+1}',
            f'v_cos_f32 v{dst}, v{t+1}', f'v_sin_f32 v{dst+1}, v{t+1}', f'v_mul_f32 v{dst}, v{t}, v{dst}', f'v_mul_f32 v{dst+1}, v{t}, v{dst+1}']
def rho_theta(lr, li, ld, rho):
    return [f'v_lshlrev_b32 v{ld}, 16, v{ld}', f'v_mul_f32 v{ld}, {fbits(LOG2E)}, v{ld}', f'v_exp_f32 v{ld}, v{ld}', f'v_lshlrev_b32 v{lr}, 16, v{lr}', f'v_lshlrev_b32 v{li}, 16, v{li}',
            f'v_cvt_pk_bf16_f32 v{ld}, v{ld}, v{ld}', f'v_and_b32 v{ld}, 0xffff0000, v{ld}',
            f'v_mul_f32 v{rho}, v{ld}, v{lr}', f'v_mul_f32 v{rho+1}, v{ld}, v{li}',
            f'v_mul_f32 v{rho}, {fbits(LOG2E)}, v{rho}', f'v_mul_f32 v{rho+1}, {fbits(1/(2*math.pi))}, v{rho+1}']
BC_LO = 'op_sel:[0,0,0] op_sel_hi:[0,1,1]'
BC_HI = 'op_sel:[1,0,0] op_sel_hi:[1,1,1]'
NEG0 = 'neg_lo:[1,0,0] neg_hi:[1,0,0]'
SWP = 'op_sel:[1,1,0] op_sel_hi:[1,0,1] neg_lo:[1,0,0]'
def cma(dst, a, x, add):
    return [f'v_pk_fma_f32 {pr(add)}, {pr(a)}, {pr(x)}, {pr(add)} {BC_LO}', f'v_pk_fma_f32 {pr(dst)}, {pr(a)}, {pr(x)}, {pr(add)} {SWP}']

PB_ = 168
def par(b, k): return PB_ + 12 * b + k
A1, A8, A16, A128, RT, ASG = [(lambda k: (lambda b: par(b, k)))(k) for k in (0, 2, 4, 6, 8, 10)]
A512 = RT
A16S = 204
PRM = 16
def s5_prologue(late):
    P = ['L_pro_s5:'] + [srd(x, k, 0)[0][0] for x, k in ((BRE, K_BRE), (BIM, K_BIM), (LRE, K_LRE), (LIM, K_LIM), (LDT, K_LDT))]
    A = P.append
    P += ids2()
    A(f's_sub_u32 s{sU1}, s{sCG}, 9')
    A(f's_mul_i32 s{t2}, s{sU1}, 96')
    A('v_and_b32 v7, 15, v0'); A('v_lshrrev_b32 v8, 4, v0')
    A(f's_mul_i32 s{sWK}, s{sWF}, 48'); A(f's_add_u32 s{sWK}, s{sWK}, s{t2}')
    A(f's_lshl4_add_u32 s{t4}, s{sU1}, s{sRB}'); A(f's_mul_i32 s{r0}, s{t4}, 6554'); A(f's_lshr_b32 s{r0}, s{r0}, 16')
    A('v_cmp_eq_u32 vcc, 3, v8'); A(f's_lshl2_add_u32 s{t5}, s{r0}, s{sW}'); A(f'v_add_u32 v9, s{sWK}, v0'); A(f'v_lshl_add_u32 v13, s{t5}, 4, v7')
    A('v_cndmask_b32 v9, v9, v13, vcc'); A('v_min_u32 v9, 639, v9'); A('v_lshlrev_b32 v9, 1, v9')
    A(f's_mul_i32 s{r1}, s{r0}, 10'); A(f's_sub_u32 s{r1}, s{t4}, s{r1}')
    A(f's_cmp_ge_u32 s3, 6'); A(f's_cselect_b32 s{t3}, 1, 0')
    A(f's_mul_i32 s{t4}, s{t3}, 6'); A(f's_sub_u32 s{t4}, s3, s{t4}'); A(f's_lshl4_add_u32 s{t4}, s{t4}, s{t2}'); A(f's_lshl2_add_u32 s{t4}, s{sW}, s{t4}')
    A('s_cmp_lt_u32 s3, 12'); A(f's_cselect_b32 s{t4}, s{t4}, 1000')
    A(f'v_add_u32 v10, s{t4}, v8'); A('v_mul_u32_u24 v11, 1280, v10'); A('v_lshl_add_u32 v11, v7, 4, v11')
    A(f's_mov_b32 s{TSRD+2}, 819200'); A(f's_mov_b32 s{TSRD+3}, 0x20000')
    for k, s in enumerate((LRE, LIM, LDT)): A(f'global_load_ushort v{PRM+k}, v9, {sp(s)}')
    A(f's_cmp_ge_u32 s3, 6'); A(f's_cselect_b32 s{TSRD}, s{BIM}, s{BRE}'); A(f's_cselect_b32 s{TSRD+1}, s{BIM+1}, s{BRE+1}')
    for i in range(5): A(f'buffer_load_dwordx4 {q4(32+4*i)}, v11, {q(TSRD)}, 0 offen offset:{256*i}')
    P += srds([(CRE, K_CRE, 819200), (CIM, K_CIM, 819200)]) + late + srd(BRE, 0, 819200)[1] + srd(BIM, 0, 819200)[1]
    A('v_min_u32 v13, 9, v7'); A('v_lshlrev_b32 v13, 7, v13'); A(f'global_load_dword v28, v13, {sp(pDSK)}'); A(f'global_load_dword v29, v13, {sp(pB2)}')
    P += [f's_load_dword s{sTAG}, {sp(WS)}, {EPO}'] + ST('pro')
    A('s_branch L_s5')
    return P

def s5_main(early):
    P = ['L_s5:']; A = P.append
    P += [f's_mov_b32 s{sC1}, 5120', f's_mov_b32 s{sC2}, 81920', f's_mov_b32 s{sC3}, 87040', f's_mov_b32 s{sU0}, 40960']
    P += xswz(2, 12)
    A('v_lshrrev_b32 v12, 5, v0'); A('v_lshlrev_b32 v12, 4, v12'); A('v_bfe_u32 v13, v0, 3, 1'); A('v_lshl_add_u32 v12, v13, 3, v12')
    A('v_bfe_u32 v13, v0, 4, 1'); A('v_add_u32 v12, v12, v13')
    A(f's_lshl_b32 s{t4}, s{sRB}, 2'); A(f's_add_u32 s{t4}, s{t4}, s{sWT}'); A(f's_lshl_b32 s{t4}, s{t4}, 4'); A(f's_add_u32 s{t4}, s{t4}, s{sWF}'); A(f's_lshl_b32 s{t4}, s{t4}, 1')
    A(f'v_add_u32 v12, s{t4}, v12'); A('v_mul_u32_u24 v12, 1280, v12'); A('v_add_u32 v1, v2, v12')
    A(f's_lshl_b32 s{t4}, s{sW}, 3'); A('v_lshrrev_b32 v12, 3, v0'); A(f'v_add_u32 v12, s{t4}, v12'); A('v_mul_u32_u24 v12, 1280, v12'); A('v_add_u32 v206, v2, v12')
    A(f's_mul_i32 s{t4}, s{t2}, 1280'); A(f'v_add_u32 v2, s{t4}, v206')
    P += pair_swap('s5')
    S = []
    S += ['v_lshrrev_b32 v12, 1, v7', 'v_xor_b32 v12, v12, v8', 'v_lshlrev_b32 v12, 4, v12', 'v_lshl_add_u32 v12, v7, 7, v12',
          f's_lshl_b32 s{t4}, s{sWT}, 13', f's_add_u32 s{t4}, s{t4}, {SLOT0}', f'v_add_u32 v3, s{t4}, v12', 'v_xor_b32 v4, 64, v3',
          f's_mul_i32 s{t4}, s{sWF}, 6144', f's_add_u32 s{t4}, s{t4}, {SLOT0 + WOFF}', f'v_add_u32 v5, s{t4}, v12', 'v_xor_b32 v6, 64, v5']
    S += ['v_lshlrev_b32 v14, 4, v0', 'v_add_u32 v15, 4096, v14']
    S += [f's_lshl_b32 s{t4}, s{sWT}, 2', f'v_add_u32 v9, s{t4}, v8']
    SC = p2_setup(t1, t2, t4, r3) if CFG.get('thin5', True) else p2_setup(r2_, r3, r4, r5) + warm_flags()
    SC += [f's_lshl_b32 s{t1}, s{sU1}, 1', f's_add_u32 s{t1}, s{t1}, s{sWF}'] + act_offsets(t1, 'y', r3, r4)
    SC += [(f's_cmp_lt_u32 s{sWK}, 624', f's_cselect_b32 s{r5}, 0, {OOB}')] + [f's_add_u32 s{k+b}, s{k+b}, s{r5}' for k in (sHA, sHF) for b in (1, 2)]
    SC += [f's_lshl_b32 s{r3}, s{r3}, 6', f's_add_u32 s{r3}, s{r3}, {STAT}', f's_lshl_b32 s{r4}, s{sWK}, 4', f's_add_u32 s{r4}, s{r4}, {CS5}']
    if not CFG.get('thin5', True): S += SC; SC = []
    T = 56; Q_ = 64
    lr, li, ld = PRM, PRM + 1, PRM + 2
    S += rho_theta(lr, li, ld, Q_ + 8) + cpow(Q_, Q_ + 8, Q_ + 9, 1.0, T)
    def sq(dst, src): return [f'v_pk_mul_f32 {pr(T)}, {pr(src)}, {pr(src)} op_sel:[0,0] op_sel_hi:[0,1]', f'v_pk_fma_f32 {pr(dst)}, {pr(src)}, {pr(src)}, {pr(T)} {SWP}']
    S += sq(Q_+2, Q_) + sq(Q_+2, Q_+2) + sq(Q_+2, Q_+2) + sq(Q_+4, Q_+2) + sq(Q_+6, Q_+4) + sq(Q_+6, Q_+6) * 4
    k = Q_ + 10
    S += [f'v_add_f32 v{T}, -1.0, v{Q_}', f'v_mul_f32 v{T+1}, v{lr}, v{lr}', f'v_fmac_f32 v{T+1}, v{li}, v{li}', f'v_rcp_f32 v{T+1}, v{T+1}',
          f'v_mul_f32 v{k}, v{T}, v{lr}', f'v_fmac_f32 v{k}, v{Q_+1}, v{li}', f'v_mul_f32 v{k+1}, v{Q_+1}, v{lr}', f'v_fma_f32 v{k+1}, -v{T}, v{li}, v{k+1}',
          f'v_add_f32 v{T+1}, v{T+1}, v{T+1}', f'v_mul_f32 v{k}, v{k}, v{T+1}', f'v_mul_f32 v{k+1}, v{k+1}, v{T+1}',
          f'v_mov_b64 {pr(A16S)}, {pr(Q_+4)}', f's_lshl_b32 s{t4}, s{sW}, 12', 'v_mul_u32_u24 v12, 48, v0', f'v_add_u32 v12, s{t4}, v12']
    S += [f'ds_write_b128 v12, {q4(Q_+4*i)} offset:{16*i}' for i in range(3)]
    S += [f'v_lshl_add_u32 v12, v0, 3, s{t4}', f'ds_write_b64 v12, {pr(k)} offset:3072', 'v_mul_u32_u24 v12, 48, v7', f'v_add_u32 v12, s{t4}, v12']
    S += [f'ds_read_b128 {q4(par(b, 4*i))}, v12 offset:{768*b + 16*i}' for b in range(3) for i in range(3)]
    S += ['v_and_b32 v13, 1, v8', f'v_lshl_add_u32 v12, v13, 6, s{t4}'] + [f'ds_read_b128 {q4(208+4*i)}, v12 offset:{3072 + 384 + 16*i}' for i in range(4)]
    S += ['v_lshrrev_b32 v12, 1, v8', 'v_lshl_add_u32 v207, v12, 4, v7', 'v_lshlrev_b32 v207, 7, v207',
          f's_lshl_b32 s{t4}, s{sW}, 1', f'v_add_u32 v62, s{t4}, v13', 'v_lshrrev_b32 v63, 1, v7', 'v_xor_b32 v62, v62, v63', 'v_lshl_add_u32 v207, v62, 4, v207',
          'v_lshlrev_b32 v13, 8, v13', 'v_lshl_add_u32 v13, v7, 4, v13', f's_lshl_b32 s{t4}, s{r1}, 2', f'v_add_u32 v12, s{t4}, v12', f's_mov_b32 s{t5}, {95*5120}']
    for u in range(2):
        S += [f'v_mul_u32_u24 v62, 52, v12', 'v_lshrrev_b32 v62, 8, v62', f'v_mul_u32_u24 v62, s{t5}, v62', f'v_lshl_add_u32 v62, v12, 10, v62', f'v_add_u32 v{224+u}, v62, v13', 'v_add_u32 v12, 2, v12']
    S += [(f's_cmp_ge_u32 s{r0}, 5', f's_cselect_b32 s{t4}, 3, 0'), f's_add_u32 s{t4}, s{t4}, s{r0}', f's_lshl_b32 s{t5}, s{r1}, 4', f's_add_u32 s{t4}, s{t4}, s{t5}', f's_lshl_b32 s{t4}, s{t4}, 2',
          f's_add_u32 s{sPUB}, s{t4}, {PF + 3072}',
          f's_lshl_b32 s{t4}, s{r0}, 2', f's_add_u32 s{t4}, s{t4}, s{sW}', f's_mul_i32 s{t5}, s{t4}, 86', f's_lshr_b32 s{t5}, s{t5}, 8', f's_mul_i32 s{t1}, s{t5}, 3', f's_sub_u32 s{t4}, s{t4}, s{t1}',
          f's_mul_i32 s{t4}, s{t4}, 27', f's_add_u32 s{t4}, s{t4}, 1', f's_lshr_b32 s{t4}, s{t4}, 1', f's_add_u32 s{t4}, s{t4}, s{t5}',
          f's_and_b32 s{t5}, s{t4}, 7', f's_mul_i32 s{t5}, s{t5}, 12', f's_lshr_b32 s{t4}, s{t4}, 3', f's_add_u32 s{t4}, s{t4}, s{t5}', f's_mul_i32 s{t4}, s{t4}, 5120', f's_add_u32 s{r2_}, s{t4}, {W2F + 7*5120}',
          f's_mul_i32 s{r1}, s{r1}, {64*1280}', f's_lshl_b32 s{t4}, s{r0}, 7', f's_add_u32 s{t4}, s{t4}, s{r1}',
          (f's_cmp_lt_u32 s{r0}, 10', f's_cselect_b32 s{r0}, s{t4}, {OOB}', f's_cselect_b32 s{r2_}, s{r2_}, {OOB}', f's_cselect_b32 s{sPUB}, s{sPUB}, {OOB}'), f's_add_u32 s{r1}, s{r0}, {32*1280}']
    d0 = [tuple(g) for g in dma_chunk('s5', 0)]
    P += preloop(S, d0) + ST('d0') + [f'v_mov_b32 v13, s{sTAG}'] + ST('tag')
    d1 = [tuple(g) for g in dma_chunk('s5', 1)]
    NPRE = CFG.get('npre', 10)
    rl = []
    for part in range(2):
        for hi in range(2):
            rl.append((f's_add_u32 m0, s{sWL}, {20480 + 8192*part + 4096*hi}', I(f'buffer_load_dwordx4 v206, {q(CIM if part else CRE)}, s{r1 if hi else r0} offen lds', tag='rl')))
    T_ = ['v_mov_b32 v56, 0'] + [f'v_dot2c_f32_bf16 v56, 0x3f803f80, v{32+i}' for i in range(20)] + dpp_row_sum(56)
    T_ += ['v_mov_b32 v57, v13', f's_lshl_b32 s{t4}, s{t3}, 3', f's_add_u32 s{t4}, s{t4}, {CS5}',
          'v_lshlrev_b32 v11, 4, v10', 'v_cmp_gt_u32 vcc, 640, v10', f'v_mov_b32 v12, {OOB}', 'v_cndmask_b32 v11, v12, v11, vcc',
          ('s_mov_b32 exec_lo, 0x10001', 's_mov_b32 exec_hi, 0x10001', f'buffer_store_dwordx2 v[56:57], v11, {q(WS)}, s{t4} offen sc1', 's_mov_b64 exec, -1')]
    pre = d1
    X_, left = sprinkle(T_, pre[:NPRE], CFG.get('d1_every', 6)); P += X_ + ST('stats') + left
    P += [f'v_mov_b32 v{VX2}, v238', f'v_mov_b32 v{VW2}, v239', Wait('c0'), 's_waitcnt lgkmcnt(0)', 's_barrier'] + ST('bar') + [s5_x(0, 0), s5_b(0, 0)] + [s5_x(0, t) for t in range(1, 4)] + [s5_b(0, n) for n in range(1, 6)] + [bmp(3, 0), bmp(5, 0)]
    rp = CFG.get('rc_pos', 1); c_rl_ack = CFG.get('c_ack5', rp + 4)
    rb_ = rp - CFG.get('rc_early', 0)
    G, bars = s5_loop({rb_: ['rl'], c_rl_ack: ['rls']})
    seq = [(list(g), 0) for g in pre[NPRE:]]
    for c in range(2, 10):
        if rp == c - 1: seq += [(list(g), 0) for g in rl] + [('pause', CFG.get('rc_pause', 0))]
        seq += [(g, bars[c-3] if c > 2 else 0) for g in dma_chunk('s5', c)]
    last = sched_dma(G, bars, 's5', seq, 48, CFG.get('rate5', 11.0))
    g_w = max(last['c9'], int(48 * CFG.get('p_w5', 7.6))) + 1
    pf_place(G, g_w, 48, 'pf_sf', 'f', 32, 226)
    if not CFG.get('pfy_tail'): pf_place(G, bars[8], 48, 'pf_sy', 'y', 32, 250)
    else: pf_place(G, 478, 48, 'pf_sy', 'y', 32, 250)
    S = []
    D, O, Tm = 228, 236, 244
    for u in range(2):
        S += [f'ds_read_b128 {q4(D+4*part)}, v207 offset:{20480 + 8192*part + 4096*u}' for part in range(2)]
        for k in range(4):
            for h in range(2):
                e = 2 * k + h
                un = (lambda d, s: f'v_lshlrev_b32 v{d}, 16, v{s}') if h == 0 else (lambda d, s: f'v_and_b32 v{d}, 0xffff0000, v{s}')
                kr, ki = 208 + 2 * e, 209 + 2 * e
                S += [un(Tm, D + k), un(Tm + 1, D + 4 + k), f'v_mul_f32 v{Tm+2+h}, v{Tm}, v{kr}', f'v_mul_f32 v{Tm+4+h}, v{Tm}, v{ki}',
                      f'v_fma_f32 v{Tm+2+h}, -v{Tm+1}, v{ki}, v{Tm+2+h}', f'v_fmac_f32 v{Tm+4+h}, v{Tm+1}, v{kr}']
            S += [f'v_cvt_pk_bf16_f32 v{O+k}, v{Tm+2}, v{Tm+3}', f'v_cvt_pk_bf16_f32 v{O+4+k}, -v{Tm+4}, -v{Tm+5}']
        S += [I(f'buffer_store_dwordx4 {q4(O+4*part)}, v{224+u}, {q(WS)}, s{r2_} offen offset:{512*part} sc1', tag='rls') for part in range(2)]
    g_pub, left = G.place([f'v_mul_u32_u24 v231, {PFS}, v0'] + pf_publish(sPUB, True), bars[c_rl_ack], budget=3); assert not left
    nxt, left = G.place(S, bars[rb_] + 1, budget=CFG.get('bud5', 2)); assert not left and nxt < bars[c_rl_ack], (nxt, bars)
    g_rl = nxt
    g_sc, left = G.place(SC, 0, thin=True); assert not left
    nxt = max(nxt, g_sc + 1)
    CSR = 208
    S = ['v_lshlrev_b32 v223, 3, v0', 'v_lshlrev_b32 v224, 4, v7', f'v_add_u32 v225, s{r5}, v224', (f's_cmp_eq_u32 s{r5}, 0', f's_cselect_b32 s{t4}, s{sTAG}, 0', f'v_mov_b32 v222, s{t4}')]
    nxt, left = G.place(S, nxt, budget=1); assert not left
    ld = [f'buffer_load_dwordx2 v[220:221], v223, {q(WS)}, s{r3} offen sc1'] + \
         [f'buffer_load_dwordx4 {q4(CSR+4*b)}, v{224 if b == 0 else 225}, {q(WS)}, s{r4} offen offset:{256*b} sc1' for b in range(3)]
    ld = [I(x, tag='ext') for x in ld]
    nxt, left = G.place(ld, max(nxt, int(48 * CFG.get('p_ext', 4.0))), step=2*CFG.get('ext_step', 4), budget=1); assert not left
    S = check('ext5', ld, tagacc(12, [221] + [CSR+1+2*k for k in range(6)], [13, 13, 13, 222, 222, 222, 222]), ['v_cmp_ne_u32 vcc, 0, v12'])
    E16 = 8192; GX = 65536
    S += ['v_and_b32 v221, 0xffff0000, v220', 'v_rcp_f32 v221, v221', 'v_lshlrev_b32 v220, 16, v220', 'v_and_b32 v12, 7, v0', 'v_bfe_u32 v11, v0, 3, 1', 'v_lshl_add_u32 v11, v12, 1, v11',
          'v_lshl_add_u32 v11, v8, 4, v11', f's_lshl_b32 s{r0}, s{sW}, 9', f's_add_u32 s{r0}, s{r0}, 37376', f'v_lshl_add_u32 v11, v11, 2, s{r0}',
          'ds_write_b32 v11, v220', 'ds_write_b32 v11, v221 offset:256', f'v_lshl_add_u32 v206, v8, 6, s{r0}',
          f's_mul_i32 s{r0}, s{sWF}, 384', f's_add_u32 s{r0}, s{r0}, {E16}', f'v_lshl_add_u32 v11, v7, 3, s{r0}',
          'v_mul_u32_u24 v12, 768, v9', 'v_add_u32 v12, v12, v11', 'v_lshl_add_u32 v10, v8, 7, v11',
          f's_mul_i32 s{r0}, s{sRB}, {EST_STRIDE}', f's_mul_i32 s{r1}, s{sU1}, 768', f's_add_u32 s{r1}, s{r1}, {EST}', f's_add_u32 s{r1}, s{r1}, s{r0}',
          f's_mul_i32 s{r0}, s{sWF}, 384', f's_add_u32 s{r0}, s{r0}, s{r1}', (f's_cmp_eq_u32 s{sWT}, 0', f's_cselect_b32 s{r0}, s{r0}, {OOB}'),
          f's_add_u32 s{r2_}, s{sW}, 1', f's_mul_i32 s{r3}, s{r2_}, {EST_STRIDE}', f's_sub_u32 s{r1}, s{r1}, s{r3}', f's_sub_u32 s{r2_}, s{sRB}, s{r2_}',
          f's_mul_i32 s{r3}, s{sW}, 768', f's_add_u32 s{r3}, s{r3}, {GX}', f'v_add_u32 v207, s{r3}, v14', 'v_lshlrev_b32 v223, 3, v0',
          'v_lshrrev_b32 v224, 8, v13', 'v_mul_u32_u24 v225, 768, v8', f'v_add_u32 v225, {GX - E16}, v225', 'v_add_u32 v225, v225, v11']
    direct = CFG.get('est') == 'direct'
    if direct:
        S = S[:-3] + [f's_lshl_b32 s{r1}, s{sWK}, 3', f's_add_u32 s{r1}, s{r1}, {EST}', f's_sub_u32 s{r3}, s{sRB}, 1', f'v_sub_u32 v225, s{r3}, v8', f's_mov_b32 s{r3}, {EST_STRIDE}', 'v_lshlrev_b32 v207, 3, v7',
                      f'v_mov_b32 v240, {OOB}', 'v_mov_b32 v241, 0xff']
        for k in range(4):
            S += [f'v_subrev_u32 v{232+k}, {4*k}, v225', f'v_mad_u32_u24 v{232+k}, v{232+k}, s{r3}, v207', f'v_cmp_le_i32 s[{t2}:{t3}], {4*k}, v225',
                  f'v_cndmask_b32 v{236+k}, 0, v241, s[{t2}:{t3}]', f'v_cndmask_b32 v{232+k}, v240, v{232+k}, s[{t2}:{t3}]']
    nxt, left_ext = G.place(S, nxt + 44, budget=1)
    WL = w2f_loads(CFG.get('wrot', 3))
    g3, WL = G.place(WL, g_w, step=CFG.get('w_step5', 4), budget=2)
    if CFG.get('stg5', 'pre') == 'loop': g3, left = G.place(stage_small(228), bars[8] + 1); left_ext += left
    g3, left = G.place(p2_setup_v() + [f'ds_read_b128 {q4(112+4*i)}, v206 offset:{16*i}' for i in range(4)], 457); left_ext += left
    print('s5: last dma gap', last['c9'], 'rl done', g_rl, 'sc', g_sc, 'ext done', nxt, 'left', len(left_ext), 'w2f left', len(WL), file=sys.stderr)
    assert len(WL) >= 25
    P += G.emit() + left_ext + ST('loop')
    E = []; B = E.append
    NM, R = 112, 128
    E += [f'ds_read_b128 {q4(R+4*i)}, v206 offset:{256+16*i}' for i in range(4)]
    U = lambda b, part, j: s5_acc(2 * b + part, j >> 1) + 2 * (j & 1)
    st = lambda k, b, part: 144 + 12 * k + 4 * b + 2 * part
    def step(b, sre, sim, ure, uim, dre, dim, a=None):
        a = pr(A1(b) if a is None else a)
        return [f'v_pk_fma_f32 {pr(dre)}, {a}, {pr(sre)}, {pr(ure)} {BC_LO}', f'v_pk_fma_f32 {pr(dim)}, {a}, {pr(sim)}, {pr(uim)} {BC_LO}',
                f'v_pk_fma_f32 {pr(dre)}, {a}, {pr(sim)}, {pr(dre)} {BC_HI} {NEG0}', f'v_pk_fma_f32 {pr(dim)}, {a}, {pr(sre)}, {pr(dim)} {BC_HI}']
    for b in range(3):
        for part in range(2):
            E += [f'v_pk_fma_f32 {pr(U(b,part,j))}, {pr(CSR+4*b+2*part)}, {pr(NM+2*j)}, {pr(U(b,part,j))} {BC_LO}' for j in range(8)]
            E += [f'v_pk_mul_f32 {pr(U(b,part,j))}, {pr(U(b,part,j))}, {pr(R+2*j)}' for j in range(8)]
        for j in range(1, 8):
            s = (U(b, 0, 0), U(b, 1, 0)) if j == 1 else (st(j & 1 ^ 1, b, 0), st(j & 1 ^ 1, b, 1))
            E += step(b, s[0], s[1], U(b, 0, j), U(b, 1, j), st(j & 1, b, 0), st(j & 1, b, 1))
        re, im, e, a8 = st(1, b, 0), st(1, b, 1), st(0, b, 0), A8(b)
        E += [f'v_fma_f32 v{e}, v{a8}, v{re}, v{re+1}', f'v_fma_f32 v{e+1}, v{a8}, v{im}, v{im+1}',
              f'v_fma_f32 v{e}, -v{a8+1}, v{im}, v{e}', f'v_fma_f32 v{e+1}, v{a8+1}, v{re}, v{e+1}', f'ds_write_b64 v12, {pr(e)} offset:{128*b}']
    nw = min(CFG.get('s5_w1', 0), len(WL) - 25)
    E, _ = sprinkle(E, WL[:nw], 20); WL = _ + WL[nw:]
    P += E
    P += ['s_waitcnt lgkmcnt(0)', 's_barrier'] + ST('t1')
    PB = 112
    P += [f'ds_read_b64 {pr(PB+2*k)}, v10 offset:{768*k}' for k in range(8)]
    for k in range(0 if direct else 4):
        P += [f's_sub_u32 s{32+k}, s{r1}, {4*k*EST_STRIDE}', f's_cmp_ge_i32 s{r2_}, {4*k}', f's_cselect_b32 s{32+k}, s{32+k}, {OOB}', f's_cselect_b32 s{36+k}, 0xff, 0']
    P += [f's_mov_b32 s{t3}, 0xff']
    for k in range(1, 8): P += cma(PB + 2*k if k < 7 else 128, A16S, PB + 2*k - 2, PB + 2*k)
    P += [f'v_bfi_b32 v128, s{t3}, v13, v128', f'v_bfi_b32 v129, s{t3}, v224, v129',
          's_mov_b32 exec_hi, 0xffff', f'buffer_store_dwordx2 v[128:129], v223, {q(WS)}, s{r0} offen sc1', 's_mov_b32 exec_hi, -1']
    P += ST('pub')
    PD = 228
    ld = [('s_mov_b32 exec_hi, 0xffff',) + tuple(f'buffer_load_dwordx4 {q4(PD+4*k)}, v14, {q(WS)}, s{32+k} offen sc1' for k in range(4)) + ('s_mov_b32 exec_hi, -1',)]
    acc = []
    for k in range(4):
        a = PD + 4 * k
        acc += [f'v_xor_b32 v130, v13, v{a}', f'v_bitop3_b32 v130, v130, v{a+1}, v224 bitop3:0xf6', f'v_bitop3_b32 v130, v130, v{a+2}, v13 bitop3:0xf6', f'v_bitop3_b32 v130, v130, v{a+3}, v224 bitop3:0xf6',
                f'v_and_b32 v131, s{36+k}, v130' if k == 0 else f'v_and_or_b32 v131, v130, s{36+k}, v131']
    pd = lambda k, b: 208 + 6 * k + 2 * b if k < 2 else 132 + 6 * (k - 2) + 2 * b
    if direct:
        pd = lambda k, b: 208 + 6 * k + 2 * b if k < 2 else 240 + 6 * (k - 2) + 2 * b
        ld = [f'buffer_load_dwordx2 {pr(pd(k, b))}, v{232+k}, {q(WS)}, s{r1} offen offset:{128*b} sc1' for k in (3, 2, 1, 0) for b in range(3)]
        acc = []
        for k in (3, 2, 1, 0):
            acc += [f'v_xor_b32 v130, v13, v{pd(k,0)}'] + [f'v_bitop3_b32 v130, v130, v{pd(k,0)+i}, v{224 if i & 1 else 13} bitop3:0xf6' for i in range(1, 6)]
            acc += [f'v_and_b32 v131, v{236+k}, v130' if k == 3 else f'v_and_or_b32 v131, v130, v{236+k}, v131']
    E = []
    PFX = lambda b: st(0, b, 1)
    eb = lambda k, b: PB + 6 * (k % 3) + 2 * b
    E += [f'ds_read_b64 {pr(eb(k,b))}, v11 offset:{768*k + 128*b}' for k in range(3) for b in range(3)]
    for b in range(3): E += [f'v_mov_b32 v{PFX(b)}, 0', f'v_mov_b32 v{PFX(b)+1}, 0']
    MK = [('0xffff0000', '-1'), ('0', '-1'), ('0', '0xffff0000'), ('0', '0')]
    for k in range(7):
        lo, hi = MK[k & 3]
        sel = (lambda m: f'-1, {m}') if k < 4 else (lambda m: f'{m}, 0')
        grp = [f's_cmp_eq_u32 s{sWT}, 1', f's_cselect_b32 exec_lo, {sel(lo)}', f's_cselect_b32 exec_hi, {sel(hi)}']
        x = [cma(PFX(b), A16(b), PFX(b), eb(k, b)) for b in range(3)]
        grp += [y[0] for y in x] + [y[1] for y in x] + ['s_mov_b64 exec, -1']
        E.append(tuple(grp))
        if k + 3 < 7: E += [f'ds_read_b64 {pr(eb(k+3,b))}, v11 offset:{768*(k+3) + 128*b}' for b in range(3)]
    NPFX = len(E)
    E += ['v_lshlrev_b32 v142, 4, v9', 'v_cvt_f32_u32 v142, v142', 'v_lshlrev_b32 v143, 7, v8', 'v_cvt_f32_u32 v143, v143']
    for b in range(3):
        E += cpow(ASG(b), RT(b), RT(b) + 1, 'v142', 140) + cpow(A512(b), RT(b), RT(b) + 1, 'v143', 140)
    E += [f's_mul_i32 s{t4}, s{sW}, 15360', 'v_mul_u32_u24 v10, 144, v7', 'v_lshl_add_u32 v10, v8, 5, v10', f'v_add_u32 v10, s{t4}, v10',
          'v_bfe_u32 v12, v0, 2, 2', 'v_lshl_add_u32 v11, v8, 3, v12', 'v_mul_u32_u24 v11, 144, v11', 'v_and_b32 v12, 3, v0', 'v_lshl_add_u32 v11, v12, 3, v11', f'v_add_u32 v11, s{t4}, v11']
    gl = [f's_buffer_load_dword s{24+2*k+h}, {q(WS)}, s{32+k} offset:{384*h + 128*((k+h)%3)} glc' for k in range(4) for h in range(2)]
    tst = []
    for k in range(4):
        tst += [f's_xor_b32 s{24+2*k}, s{24+2*k}, s{sTAG}', f's_xor_b32 s{25+2*k}, s{25+2*k}, s{sTAG}', f's_or_b32 s{24+2*k}, s{24+2*k}, s{25+2*k}', f's_and_b32 s{24+2*k}, s{24+2*k}, s{36+k}']
    tst += ['s_or_b32 s24, s24, s26', 's_or_b32 s28, s28, s30', 's_or_b32 s24, s24, s28', 's_cmp_eq_u32 s24, 0']
    nw = CFG.get('s5_w2', 6)
    sg_ = CFG.get('stg5', 'pre')
    eg = CFG.get('eg', True)
    E1, _ = sprinkle(E[:NPFX], WL[:nw], CFG.get('s5_w2e', 14))
    E2, _ = sprinkle(E[NPFX:], _, CFG.get('s5_w2e', 14)); WL = _ + WL[nw:]
    P += (stage_small(140) if sg_ == 'pre' else []) + E1 + (gl if eg else []) + (stage_small(140) if sg_ == 'mid' else []) + E2 + ST('pl0') + (gate('eg', gl, tst) if eg else []) + ld + (stage_small(130 if direct else 140) if sg_ == 'poll' else []) + [fl_load(0)] + ST('t2')
    if direct:
        P += check('est', ld, acc, ['v_cmp_ne_u32 vcc, 0, v131']) + ST('t3')
    else:
        P += check('est', ld, acc + ['v_cmp_ne_u32 vcc, 0, v131'], [f's_and_b32 vcc_hi, vcc_hi, 0xffff', 's_cmp_eq_u64 vcc, 0'])
        P += ['s_mov_b32 exec_hi, 0xffff'] + [f'ds_write_b128 v207, {q4(PD+4*k)} offset:{3072*k}' for k in range(4)] + ['s_mov_b32 exec_hi, -1', 's_waitcnt lgkmcnt(0)', 's_barrier']
        P += ST('t3') + [f'ds_read_b64 {pr(pd(k, b))}, v225 offset:{3072*k + 128*b}' for k in (3, 2, 1, 0) for b in range(3)]
    E = []
    for k in (2, 1, 0):
        x = [cma(pd(k, b), A128(b), pd(k+1, b), pd(k, b)) for b in range(3)]
        E += [y[0] for y in x] + [y[1] for y in x]
    Z = 112
    for b in range(3):
        E += [f'v_pk_mul_f32 {pr(Z+2*b)}, {pr(A512(b))}, {pr(pd(0,b))} op_sel:[0,0] op_sel_hi:[0,1]']
    for b in range(3):
        E += [f'v_pk_fma_f32 {pr(Z+2*b)}, {pr(A512(b))}, {pr(pd(0,b))}, {pr(Z+2*b)} {SWP}']
    for sw in ('v_permlane16_swap_b32', 'v_permlane32_swap_b32'):
        E += [f'v_mov_b64 {pr(Z+6+2*b)}, {pr(Z+2*b)}' for b in range(3)]
        E += [f'{sw} v{Z+i}, v{Z+6+i}' for i in range(6)]
        E += [f'v_pk_add_f32 {pr(Z+2*b)}, {pr(Z+2*b)}, {pr(Z+6+2*b)}' for b in range(3)]
    PK, FG = 124, 208
    for b in range(3):
        E += cma(PFX(b), ASG(b), Z + 2*b, PFX(b))
        re, im, a8, ca = st(1, b, 0), st(1, b, 1), A8(b), PFX(b)
        E += [f'v_fma_f32 v{re+1}, v{a8}, v{ca}, v{re}', f'v_fma_f32 v{im+1}, v{a8}, v{ca+1}, v{im}',
              f'v_fma_f32 v{re+1}, -v{a8+1}, v{ca+1}, v{re+1}', f'v_fma_f32 v{im+1}, v{a8+1}, v{ca}, v{im+1}',
              f'v_mov_b32 v{re}, v{ca}', f'v_mov_b32 v{im}, v{ca+1}']
    E += [f'v_mov_b64 {pr(140+2*b-2)}, {pr(A1(b))}' for b in (1, 2)] + ST('z')
    P += E; E = []
    A1x = lambda b: A1(0) if b == 0 else 138 + 2*b
    def stores(b):
        fg = FG + 16 * (b & 1)
        return [I(f'buffer_store_dwordx4 {q4(fg+4*tb)}, v14, {q(WS)}, s{sHA+b} offen offset:{1024*tb} sc1', tag=f'h{b}') for tb in range(4)]
    for b in range(3):
        for j in range(8):
            s = (st(1, b, 0), st(1, b, 1)) if j == 0 else (U(b, 0, j - 1), U(b, 1, j - 1))
            E += step(b, s[0], s[1], U(b, 0, j), U(b, 1, j), U(b, 0, j), U(b, 1, j), A1x(b))
            if j & 1:
                E += [f'v_cvt_pk_bf16_f32 v{PK+8*part+4*sub+j//2}, v{U(b,part,j-1)+sub}, v{U(b,part,j)+sub}' for part in range(2) for sub in range(2)]
            if j == 3 and b > 0: E += stores(b - 1) + ST(f'hb{b-1}')
        E += [f'ds_write_b128 v10, {q4(PK+8*part+4*sub)} offset:{2304*part + 16*sub}' for part in range(2) for sub in range(2)]
        fg = FG + 16 * (b & 1)
        E += [f'ds_read_b64_tr_b16 {pr(fg+4*tb+2*u)}, v11 offset:{576*u + 32*tb}' for tb in range(4) for u in range(2)]
    k = next(i for i, x in enumerate(E) if isinstance(x, I) and x.tag == 'h0')
    E1, left = sprinkle(E[:k], early[1], CFG.get('early_e', 8))
    P += early[0] + E1 + left + E[k:] + stores(2) + ST('t4')
    return P, WL, [[Wait(f'h{b}'), flag8(sHF + b)] for b in range(3)]

SYS = 0
CLS = 40960
NS = 12
STAGES = [(0, 0, 2), (0, 2, 4), (0, 4, 7), (1, 0, 7), (0, 7, 12), (1, 7, 12)]
FB = 24
AA, AB, RING = 16, 96, 176
def fl_load(k):
    h, a, b = STAGES[k]; base = FB + 8 * (k & 1)
    if afm()[1] == 7: return tuple(f's_buffer_load_dword s{base+i-a}, {q(WS)}, s{sFL2 if h else sFL} offset:{128*i} glc' for i in range(a, b))
    return (f's_buffer_load_dwordx8 s[{base}:{base+7}], {q(WS)}, s{sFL2 if h else sFL} offset:{4*a} glc',)
def fl_check(name, k):
    h, a, b = STAGES[k]; base = FB + 8 * (k & 1)
    pre = [('s_cmp_lg_u32 s3, 0', f's_cselect_b32 s{base+6-a}, s{sTAG}, s{base+6-a}')] if a <= 6 < b else []
    return check_s(f'{name}_a{k}', fl_load(k), list(range(base, base + b - a)), pre, sleep=CFG.get('af_sleep', 0))
SETS = {3: (AB, AB + 20), 4: (AB + 40, AB + 60), 5: (AB, AB + 40)}
def mfma_order():
    L = []
    for i in range(4): L += [(0, i, t, j, AA + 20*t + 4*j, i == 0) for t in range(4) for j in range(5)]
    for t in (1, 2, 3, 0): L += [(0, i, t, j, AA + 20*t + 4*j, False) for i in range(4, 7) for j in range(5)]
    for k in (3, 4, 5):
        h, a, b = STAGES[k]
        for p in range(4): L += [(h, i, 3 - p, j, SETS[k][p & 1] + 4*j, p == 0 and i == a) for j in range(5) for i in range(a, b)]
    return L
PRE = [q4(RING + 4*k) for k in range(8)] + [q4(240 + 4*k, 'a') for k in range(4)]
def a_plan(npre, name):
    M = mfma_order()
    fu = {}; lu = {}; wl = {}
    for g, (h, i, t, j, d, f) in enumerate(M):
        fu.setdefault((h, i, t), g); lu[h, i, t] = g; wl[i, j] = g
    GR = sorted(fu, key=lambda x: fu[x])
    areg = {}; agap = {}
    free = [(q4(RING + 32 + 4*k), -1, CFG.get('v_end', 330)) for k in range(4)] + [(q4(AB + 40 + 4*k), -1, 270) for k in range(10)]
    free += [(q4(20*i + 4*j, 'a'), wl[i, j], 999) for i in range(7) for j in range(5)]
    prev = CFG.get('a_first_' + name, 4 if name == 'ff' else 14) - CFG.get('a_pace', 4)
    for n, gr in enumerate(GR):
        if n < 12: reg, av, lim = PRE[n], -1, (999 if n >= 8 else CFG.get('v_end', 330))
        else:
            cand = sorted((x for x in free if x[2] > lu[gr]), key=lambda x: x[1])
            reg, av, lim = cand[0]; free.remove(cand[0])
        if n >= npre:
            la = CFG.get('la1', 56) if n <= 16 else CFG.get('la2', 75)
            if n == 56: la = CFG.get('la_y', 66)
            g = max(prev + CFG.get('a_pace', 4), fu[gr] - la, av)
            agap[gr] = g; prev = g
            assert g + 16 < fu[gr], (gr, g, fu[gr])
        areg[gr] = reg
        free.append((reg, lu[gr], lim))
    return M, GR, fu, areg, agap
def a_load(areg, gr, n):
    h, i, t = gr
    g = [f's_add_u32 s{t1}, s{sAown if h else sA}, {4096*i}'] if (n >= 16 or t == 0) else []
    if i == 6: g.append(f's_or_b32 s{t1}, s{t1}, s3')
    return g + [f'buffer_load_dwordx4 {areg[gr]}, v{1+t}, {q(WS)}, s{t1} offen sc1']
def p2_first(name, npre):
    M, GR, fu, areg, agap = a_plan(npre, name)
    return (fl_check(name, 0) if name == 'ff' else check_s('sy_a01', fl_load(0), list(range(FB, FB + (4 if npre > 8 else 2))))) + ST('a0'), [tuple(a_load(areg, GR[n], n)) for n in range(npre)]

def phase2(name, npre, WL, flags):
    P = []; A = P.append
    M, GR, fu, areg, agap = a_plan(npre, name)
    NG = 40 * NS
    SK = 224; RAW = 244
    def unpack(dst, src, n): return [x for k in range(n) for x in (f'v_lshlrev_b32 v{dst+2*k}, 16, v{src+k}', f'v_and_b32 v{dst+2*k+1}, 0xffff0000, v{src+k}')]
    nw0 = CFG.get('p2_wpre_' + name, 2 if name == 'ff' else 0)
    if name == 'ff' and CFG.get('stg', 'tail') == 'p2': P += stage_small(224)
    P += WL[:nw0]; WL = WL[nw0:]
    k0 = 1 if npre <= 8 else 2
    def x_read(dst, va): return [f'ds_read_b64 {pr(dst+4*j+2)}, v{va} offset:{32*j}' for j in range(5)]
    def x_unp(dst, j): a = dst + 4*j; return [f'v_lshlrev_b32 v{a}, 16, v{a+2}', f'v_and_b32 v{a+1}, 0xffff0000, v{a+2}', f'v_lshlrev_b32 v{a+2}, 16, v{a+3}', f'v_and_b32 v{a+3}, 0xffff0000, v{a+3}']
    sl = [f'buffer_load_dwordx2 v[254:255], v12, {q(WS)}, s{sSTO} offen sc1']
    EN = ['v_and_b32 v12, 15, v0', 'v_lshrrev_b32 v11, 4, v0', 'v_lshlrev_b32 v11, 3, v11', f's_mul_i32 s{r0}, s{sW}, 3072', f's_add_u32 s{r0}, s{r0}, {XL}', f'v_add_u32 v8, s{r0}, v11',
          'v_mul_u32_u24 v5, 160, v12', 'v_add_u32 v6, v5, v8', 'v_lshlrev_b32 v12, 3, v12', f'v_add_u32 v254, s{r0}, v12', Wait('xd'), 'ds_read_b64 v[254:255], v254 offset:2880'] + x_read(SK, 6)
    EN += [f'ds_read_b64 {pr(AB+4*j+2)}, v8 offset:{2720 + 32*j}' for j in range(5)] + [f'ds_read_b64 {pr(RAW+2*j)}, v8 offset:{2560 + 32*j}' for j in range(5)]
    P += ([fl_load(k0)] + flat(flags[0]) + EN if (name == 'sy' or CFG.get('stg', 'tail') == 'p2') else EN + [fl_load(k0)] + flat(flags[0])) + ST('a1')
    flags = flags[1:]
    G = Gaps3(2, 2)
    last_of = {}
    for g, (h, i, t, j, d, first) in enumerate(M):
        c = q4(d) if (not first or (h, i) == (1, 0)) else (q4(SK + 4*j) if (h, i) == (1, 7) else '0')
        G.add(f'v_mfma_f32_16x16x32_bf16 {q4(d)}, {q4(20*i+4*j, "a")}, {areg[h, i, t]}, {c}')
        if g % 20 == 0: G.fixed(g, ST(f's{g//20}'))
        last_of[h, i >= 7, t, j] = g
    for n, gr in enumerate(GR):
        h, i, t = gr
        if n < 28:
            if fu[gr] > 0: G.need(fu[gr] - 1, Need(areg[gr] + ' ' + q4(20*i+16, 'a')))
        elif i in (0, 7): G.need(fu[gr] - 1, Need(areg[h, 6 if i == 0 else 11, t] + ' ' + q4(236 if i == 7 else 0, 'a')))
    pg = -1
    for n, gr in enumerate(GR):
        if gr not in agap: continue
        g = agap[gr]; L = a_load(areg, gr, n)
        if len(L) == 3: G.fixed(g - 1, L[:2], 'post')
        elif len(L) == 2: G.scalar_before(g, L[0], pg)
        G.fixed(g, L[-1:]); pg = g
    ph = 0; win = {}
    for k in (3, 4, 5):
        h, a, b = STAGES[k]; n = b - a
        tid = str(k) in CFG.get('tid', '')
        for p in range(3):
            for j in range(5):
                e = last_of[h, a >= 7, 3 - p, j]; off = 20480 * (ph & 1) + 1024 * j
                src = SETS[k][p & 1] + 4*j; dst = SETS[k][(p + 1) & 1] + 4*j
                if tid:
                    W = [I(f'ds_write_addtid_b32 v{src+r} offset:{off + 256*r}', tag=f'sw{ph}{j}') for r in range(4)]
                    R = [f'ds_read2st64_b32 {pr(dst+2*r)}, v6 offset0:{off//256 + 2*r} offset1:{off//256 + 2*r + 1}' for r in range(2)]
                else:
                    W = [I(f'ds_write_b128 v11, {q4(src)} offset:{off}', tag=f'sw{ph}{j}')]
                    R = [f'ds_read_b128 {q4(dst)}, v7 offset:{off}']
                gw, left = G.place(W, e + CFG.get('sy_w', 4)); assert not left
                gb = gw + CFG.get('sy_b', 3 if tid else 4)
                if CFG.get('bar_split', True):
                    gb += 1
                    while G.g[gb]['mem'] or G.g[gb]['used'] > 0 or G.g[gb]['fs'] or G.g[gb-1]['first']: gb += 1
                    G.need(gb - 1, Wait(f'sw{ph}{j}')); G.g[gb]['first'].append('s_barrier'); G.g[gb]['fs'] = True; G.g[gb]['used'] += 1; G.g[gb]['nomem'] = True
                else:
                    while G.g[gb]['used'] > 0: gb += 1
                    G.need(gb, Wait(f'sw{ph}{j}')); G.fixed(gb, ['s_barrier'], 'pre'); G.g[gb]['used'] = 2
                gr_, left = G.place(R, gb + 1); assert not left
                use = e + 1 + 4 * n
                assert gr_ + 4 < use, (k, p, j, gr_, use)
                G.need(min(use - 1, gr_ + 7) if (p, j) == (2, 4) else use - 1, Need(q4(dst)))
                if (p, j) == (2, 4): win[k] = [gr_ + 8]
                if (p, j) == (0, 0) and k > 3: win[k-1].append(gb - 2)
            ph += 1
    first_of = lambda k: min(g for (h, i, t), g in agap.items() if h == STAGES[k][0] and STAGES[k][1] <= i < STAGES[k][2])
    for fl, gf in zip(flags, CFG.get('f2_gaps', (30, 58))):
        gf, left = G.place(fl, gf, budget=3); assert not left and gf < first_of(4) - 20
    pchk = -1
    for k in range(k0, 4):
        gl = first_of(k)
        ck = fl_check(name, k)
        g0 = max(0, gl - 3 - int(1.6 * len(ck)))
        assert g0 > pchk, (k, g0, pchk)
        if k > k0: [G.fixed(max(pchk + 1, g0 - CFG.get('fl_lead', 28)) + z // 2, [x]) for z, x in enumerate(fl_load(k))]
        pchk, left = G.place(ck, g0, budget=2); assert not left and pchk < gl, (k, pchk, gl)
        if k == k0: g_k0 = pchk
    gl = first_of(4)
    g_yfl = gl - 8 - CFG.get('yfl_lead', 34)
    if name == 'sy' or CFG.get('yf_vec'):
        g, left = G.place([f'buffer_load_dword v9, v9, {q(WS)}, 0 offen offset:{7 << afm()[1]} sc1'], g_yfl); assert not left
        G.need(gl - 7, Need('v9')); g, left = G.place([f'v_cmp_ne_u32 vcc, s{sTAG}, v9'], gl - 7); assert not left
        assert g + 1 < gl
        G.fixed(gl - 1, [f's_cbranch_vccnz L_spin_{name}_yf', f'L_ret_{name}_yf:'], 'post')
    else:
        G.fixed(gl - 1, [f's_branch L_spin_{name}_yf', f'L_ret_{name}_yf:'], 'post')
    ch, last_ = chain(list(range(FB, FB + 5)) + list(range(FB + 8, FB + 13)))
    SPINS.append([f'L_spin_{name}_yf:', f's_mov_b32 s{t5}, 0', f'L_spinl_{name}_yf:', *fl_load(4), *fl_load(5), 's_waitcnt lgkmcnt(0)', f's_add_u32 s{t5}, s{t5}, 1', f's_cmp_gt_u32 s{t5}, {SPIN_MAX*2}',
                  f's_cbranch_scc1 L_ret_{name}_yf'] + flat(ch) + [last_, f's_cbranch_scc0 L_spinl_{name}_yf', f's_branch L_ret_{name}_yf'])
    gi = CFG.get('p2_wfirst', 22)
    for m, w in enumerate(WL):
        k = int(w[-1].tag[1:])
        gi, left = G.place([w], gi, budget=2); assert not left
        assert gi + 40 < (280 if k >= 35 else fu[0, k // 5, 0 if k < 20 else 1]), ('weight load too late', k, gi)
        gi += max(2, min(CFG.get('p2_wstep', 14), 200 // len(WL)))
    S = [f's_add_u32 s{r1}, s{sW}, 1', f's_and_b32 s{r1}, s{r1}, 3', f's_mul_i32 s{r0}, s{r1}, 3072', f's_add_u32 s{r0}, s{r0}, {XL}', f'v_add3_u32 v5, v5, v11, s{r0}',
         f's_sub_u32 s{r1}, s{sW}, 1', f's_and_b32 s{r1}, s{r1}, 3',
         *(['v_mul_u32_u24 v10, 160, v12', f'v_add3_u32 v10, v10, v11, s{sOO}', 'v_lshlrev_b32 v10, 1, v10'] if not CFG.get('otr', True) else []),
         f's_mul_i32 s{r0}, s{r1}, 5120', f'v_add_u32 v7, s{r0}, v14', f'v_lshl_add_u32 v6, v0, 2, s{r0}', f's_mul_i32 m0, s{sW}, 5120', 'v_add_u32 v11, m0, v14',
         'v_and_b32 v9, 7, v0', 'v_min_u32 v9, 4, v9', f'v_lshl_add_u32 v9, v9, {afm()[1]}, s{sFL}', 'v_and_b32 v8, 8, v0', f'v_lshlrev_b32 v8, {afm()[0]}, v8', 'v_xor_b32 v9, v9, v8',
         f's_mul_i32 s{r0}, s{sW}, 15360', f'v_add_u32 v8, s{r0}, v14',
         f's_mov_b32 s{r2_}, 0x07060100', f's_add_u32 s{r1}, s{sXI}, 3072', f's_add_u32 s{r4}, s{sXO}, 3072', f's_mov_b32 s{t2}, {fbits(-LOG2E)}', f's_mov_b32 s{t3}, {fbits(-LOG2E)}']
    nxt, left = G.place(S, 0); assert not left and nxt < g_yfl
    nxt = max(nxt, g_k0 + 1)
    g_b0, left = G.place(['s_barrier'], CFG.get('bar0', 86)); assert not left
    g = g_b0 + 1.0; gcb = {}
    for t in range(1, 4):
        for j in range(5):
            g = max(g, last_of[0, False, t, j] + 5)
            nx2, left = G.place([I(f'ds_write_b128 v8, {q4(AA + 20*t + 4*j)} offset:{CLS + (t-1)*5120 + 1024*j}', tag=f'cw{t}')], int(g)); assert not left
            g = max(g, nx2) + CFG.get('red_step', 2.0)
        if t > 1:
            gb = nx2 + 5
            while G.g[gb]['used'] > 0: gb += 1
            G.need(gb, Wait(f'cw{t}')); G.fixed(gb, ['s_barrier'], 'pre'); G.g[gb]['used'] = 2; gcb[t] = gb
    gcb[1] = gcb[2]; g_b1 = gcb[3]
    S = check(f'{name}_st', sl, [], [f'v_cmp_ne_u32 vcc, s{sTAG}, v255'])
    S += ['v_and_b32 v255, 0xffff0000, v254', 'v_rcp_f32 v255, v255', 'v_lshlrev_b32 v254, 16, v254', 'v_mul_f32 v254, v254, v255']
    for j in range(5): S += x_unp(SK, j) + [f'v_fma_f32 v{SK+4*j+r}, v{SK+4*j+r}, v255, v254' for r in range(4)]
    for k in range(20): S += [f'v_and_b32 v12, 0xffff0000, v{RAW+k//2}' if k & 1 else f'v_lshlrev_b32 v12, 16, v{RAW+k//2}', f'v_mul_f32 v{SK+k}, v{SK+k}, v12']
    g_sk, left = G.place(sum((x_unp(AB, j) for j in range(5)), []) + S, nxt); assert not left and g_sk < 134, g_sk
    g2 = g_sk; gr = {}
    for t in range(1, 4):
        g2, left = G.place([f's_sub_u32 s{r0}, s{sW}, {t}', f's_and_b32 s{r0}, s{r0}, 3', f's_mul_i32 s{r0}, s{r0}, 15360', f'v_add_u32 v{252+t}, s{r0}, v14'], g2); assert not left
    for t in range(1, 4):
        g2, left = G.place([f'ds_read_b128 {q4(AA + 20*t + 4*j)}, v{252+t} offset:{CLS + (t-1)*5120 + 1024*j}' for j in range(5)], max(g2, gcb[t] + 1)); assert not left
        gr[t] = g2
    def pack(a):
        L = []
        for g in range(3):
            gl = [f'v_cvt_pk_bf16_f32 v{AA+4*g+k}, v{a+7*g+2*k}, v{a+7*g+2*k+1}' for k in range(3)]
            if g < 2: gl += [f'v_cvt_pk_bf16_f32 v{AA+4*g+3}, v{a+7*g+6}, v{a+7*g+6}', f'v_perm_b32 v{AA+4*g+3}, v{AA+4*g+3}, v13, s{r2_}']
            else: gl += [f'v_mov_b32 v{AA+11}, v13']
            L.append(gl)
        return L
    st = lambda g, so: f'buffer_store_dwordx4 {q4(AA+4*g)}, v14, {q(WS)}, s{so} offen offset:{1024*g} sc1'
    g, left = G.place([Need(q4(AA + 56))] + [f'v_add_f32 v{AA+20+k}, v{AA+20+k}, v{AA+40+k}' for k in range(20)], gr[2] + 4); assert not left
    g, left = G.place([f'v_add_f32 v{AA+k}, v{AA+k}, v{AA+20+k}' for k in range(20)], max(g, 144)); assert not left
    g, left = G.place([Need(q4(AA + 76))] + [f'v_add_f32 v{AA+k}, v{AA+k}, v{AA+60+k}' for k in range(20)], max(g, gr[3] + 4)); assert not left
    g, left = G.place(sum(pack(AA), []), g); assert not left
    g_f, left = G.place([st(k, sXO) for k in range(3)], g + 1, step=CFG.get('x_step', 12)); assert not left
    pk = pack(SETS[4][1]); g_y = g_f
    for k, j in enumerate((1, 3, 4)):
        g_y, left = G.place(pk[k] + [st(k, r4)], max(g_y, last_of[0, True, 0, j] + 4)); assert not left
    FT, XU, T, YU = SETS[3][1], AA + 20, AA + 40, AA + 60
    def xch(b, so): return [f'buffer_load_dwordx4 {q4(b+4*g)}, v14, {q(WS)}, s{so} offen offset:{1024*g} sc1' for g in range(3)]
    def recv_check(nm, b, ld): return check(f'{name}_{nm}', ld, tagacc(8, [b + 3, b + 7, b + 11]) + ['v_and_b32 v8, 0xffff, v8'], ['v_cmp_ne_u32 vcc, 0, v8'])
    def run(d, k, b=RAW):
        g, e = divmod(k, 7); r = b + 4 * g + e // 2
        return f'v_and_b32 v{d}, 0xffff0000, v{r}' if (e & 1 or e == 6) else f'v_lshlrev_b32 v{d}, 16, v{r}'
    for k, nm, off, msk in ((3, 'gf', 12, True), (4, 'gy', 6144, False)):
        if nm[1] not in CFG.get('xg', 'fy'): continue
        l_ = I(f's_buffer_load_dword s24, {q(WS)}, s{sXI} offset:{off} glc', tag='async')
        tst = ([f's_xor_b32 s24, s24, s{sTAG}', 's_and_b32 s24, s24, 0xffff', 's_cmp_eq_u32 s24, 0'] if msk else [f's_cmp_eq_u32 s24, s{sTAG}'])
        G.fixed(win[k][0], [l_], 'post'); G.need(win[k][1], 's_waitcnt lgkmcnt(0)'); G.fixed(win[k][1], flat(gate(f'{name}_{nm}', [l_], tst)), 'post')
    g_hb, left = G.place([f's_add_u32 s{r3}, s{sXO}, 6144', flag_store(r3)], CFG.get('hb_gap', 326), budget=3); assert not left
    ly = xch(RAW, r1)
    g_ly, left = G.place(ly, win[4][0] + g_y - g_hb + CFG.get('y_ld', 12), step=2); assert not left
    lf = xch(YU, sXI)
    g_lf, left = G.place(lf, max(win[3][1] + 1, win[3][0] + 2 * CFG.get('x_step', 12) + CFG.get('f_ld', 10)), step=3); assert not left
    g, left = G.place(x_read(XU, 5) + [Need(pr(XU + 18))], max(g, g_sk)); assert not left and g < win[3][0], g
    g, left = G.place(sum((x_unp(XU, j) for j in range(5)), []), g); assert not left
    g_fr, left = G.place(recv_check('xf', YU, lf) + [run(T + k, k, YU) for k in range(20)], max(g, g_lf + CFG.get('f_wait', 28))); assert not left
    g_fu = g_fr
    for j in range(5):
        g_fr, left = G.place([f'v_add_f32 v{FT+k}, v{FT+k}, v{T+k}' for k in range(4*j, 4*j + 4)], max(g_fr, last_of[1, False, 0, j] + 5)); assert not left
    if CFG.get('otr', True):
        S = [f's_mul_i32 s{r0}, s{sW}, 6400', f's_add_u32 s{r0}, s{r0}, {CLS}', 'v_and_b32 v9, 15, v0', 'v_mul_u32_u24 v9, 80, v9', 'v_and_b32 v12, 48, v0', f'v_add3_u32 v9, v9, v12, s{r0}',
             'v_lshrrev_b32 v10, 2, v0', 'v_mul_u32_u24 v15, 80, v10', 'v_and_b32 v12, 48, v14', f'v_add3_u32 v15, v15, v12, s{r0}',
             f's_lshl_b32 s{r0}, s{sOO}, 1', 'v_mul_u32_u24 v10, 2560, v10', f'v_add3_u32 v10, v10, v12, s{r0}']
        g, left = G.place(S, 262); assert not left
    g = g_fr; done = 0; vleft = []
    while done < 5 and g < NG - CFG.get('silu_stop', 10):
        a = T + 4*done; f = FT + 4*done
        S = [f'v_mul_f32 v{a+r}, s{t2}, v{f+r}' for r in range(4)] + [f'v_exp_f32 v{a+r}, v{a+r}' for r in range(4)] + [f'v_add_f32 v{a+r}, 1.0, v{a+r}' for r in range(4)] + \
            [f'v_rcp_f32 v{a+r}, v{a+r}' for r in range(4)] + [f'v_mul_f32 v{a+r}, v{a+r}, v{f+r}' for r in range(4)]
        g, vleft = G.place(S, g); done += 1
    def silu(j):
        f = FT + 4*j; t = T + 4*j
        return [f'v_pk_mul_f32 {pr(t+2*h)}, {pr(f+2*h)}, s[{t2}:{t3}]' for h in range(2)] + [f'v_exp_f32 v{t+r}, v{t+r}' for r in range(4)] + \
               [f'v_pk_add_f32 {pr(t+2*h)}, {pr(t+2*h)}, 1.0 op_sel_hi:[1,0]' for h in range(2)] + [f'v_rcp_f32 v{t+r}, v{t+r}' for r in range(4)] + \
               [f'v_pk_mul_f32 {pr(t+2*h)}, {pr(t+2*h)}, {pr(f+2*h)}' for h in range(2)]
    print(name, 'w left', len(WL), 'bars', g_b0, g_b1, 'win', win, 'hb', g_hb, 'skip', g_sk, 'last a load', max(agap.values()), 'f sent', g_f, 'f recv', g_lf, g_fu, g_fr, 'y sent', g_y, 'y ld', g_ly, 'silu', done, g, 'left', len(vleft), file=sys.stderr)
    body = []
    for x in G.emit():
        if not isinstance(x, PSEUDO):
            y = mk(x); d = CFG.get('drop', '')
            if 'A' in d and y.op == 'buffer_load_dwordx4' and f's{t1} offen' in y.text: continue
            if 'W' in d and y.op == 'buffer_load_dwordx4' and (f's{t0} offen' in y.text or f's{sWB} offen' in y.text): continue
            if 'L' in d and (y.kind == 'ds' or y.op == 's_barrier'): continue
            if 'B' in d and y.op == 's_barrier': continue
            if 'V' in d and y.kind == 'valu' and not y.op.startswith('v_cmp') and min(r[1] for r in y.defs) >= 16: continue
            if 'X' in d and ((y.kind == 'vmem' and y.wide_store) or 'spin_' + name + '_xf' in y.text): continue
            if 'F' in d and y.op.startswith('s_cbranch') and ('_a' in y.text or '_yf' in y.text): continue
            if 'S' in d and y.kind == 'smem' and 'glc' in y.text: continue
        body.append(x)
    if CFG.get('silu_first', True):
        body += ST('p2end') + vleft + sum((silu(j) for j in range(done, 5)), []); vleft = []; done = 5
    P += body + (ST('p2end') if not CFG.get('silu_first', True) else []) + ST('xw') + (recv_check('xy', RAW, ly) if not CFG.get('drop') else []) + ST('xok')
    Y = SETS[5][1]
    for j in range(5):
        if j == done - 1: P += vleft
        if j >= done: P += silu(j)
        P += [run(YU + 4*j + r, 4*j + r) for r in range(4)]
        P += [f'v_pk_add_f32 {pr(Y+4*j+2*h)}, {pr(Y+4*j+2*h)}, {pr(YU+4*j+2*h)}' for h in range(2)]
        P += [f'v_pk_fma_f32 {pr(T+4*j+2*h)}, {pr(T+4*j+2*h)}, {pr(Y+4*j+2*h)}, {pr(XU+4*j+2*h)}' for h in range(2)]
        if CFG.get('otr', True):
            P += [f'ds_write_b128 v9, {q4(T+4*j)} offset:{1280*j}', f'ds_read_b128 {q4(T+4*j)}, v15 offset:{1280*j}']
            for jj in ([j - 1] if 0 < j < 4 else [3, 4] if j == 4 else []): A(f'global_store_dwordx4 v10, {q4(T+4*jj)}, {sp(pOUT)} offset:{64*jj} sc1')
        else:
            A(f'global_store_dwordx4 v10, {q4(T+4*j)}, {sp(pOUT)} offset:{64*j} sc1')
    if name == 'sy':
        P += [f's_lshl_b32 s{t4}, s{sW}, 8', f's_or_b32 s{t4}, s{t4}, s2', f's_cmp_eq_u32 s{t4}, 191', f's_mov_b32 s{t4}, {EPO}', f's_cselect_b32 s{t4}, s{t4}, {OOB}', flag_store(t4)]
    P += ST('fin') + ST_dump() + ['s_endpgm']
    return P

def with_state(segs):
    vm, lg = [], []
    out = []
    for s in segs:
        out.append(add_waits(flat(s), vm, lg))
    return out, vm, lg

def diag(seq):
    out = []
    for x in seq:
        if CFG.get('no_r1') and not isinstance(x, PSEUDO) and (mk(x).tag == 'cs' or 'global_load_dwordx2 v[24' in mk(x).text or q(TSRD) + ', 0 offen' in mk(x).text): continue
        if isinstance(x, I) and ((x.tag == 'rl' and CFG.get('no_rl_ld')) or (x.tag == 'rls' and CFG.get('no_rl_st')) or (x.tag == 'ext' and CFG.get('no_ext'))): continue
        if isinstance(x, str) and CFG.get('no_ext') and ('L_spin_ext' in x and 'branch' in x): continue
        out.append(x)
    return out

def build():
    del SPINS[:]; del NOPSTATS[:]
    ent, late = entry()
    fp = ffn_prologue(late); fm, fWL = ffn_main(None)
    sp_ = s5_prologue(late); sm, sWL_, sfl = s5_main(p2_first('sy', CFG.get('npre_s', 8)))
    vm0, lg0 = [], []
    ent = add_waits(diag(flat(ent)), vm0, lg0)
    vm, lg = list(vm0), list(lg0)
    a_fp = add_waits(diag(flat(fp)), vm, lg)
    tl, wl, fl = ffn_tail(fWL, [fl_load(0)])
    a_fm = add_waits(diag(flat(fm)) + flat(tl + sum(p2_first('ff', 8), []) + phase2('ff', 8, wl, fl)), vm, lg)
    vm, lg = list(vm0), list(lg0)
    a_sp = add_waits(diag(flat(sp_)), vm, lg)
    a_sm = add_waits(diag(flat(sm)) + flat(phase2('sy', CFG.get('npre_s', 8), sWL_, sfl)), vm, lg)
    code = add_nops([mk(x) for x in ent], NOPSTATS) + add_nops(a_fp, NOPSTATS) + add_nops(a_sp, NOPSTATS) + add_nops(a_fm, NOPSTATS) + add_nops(a_sm, NOPSTATS)
    code.append(mk('L_spins:'))
    for blk in SPINS: code += add_nops([mk('s_nop 4')] * 0 + [mk(x) for x in blk])
    code.append(mk('L_end:'))
    pend = None
    for x in code:
        if ('vcc', 0) in x.uses or x.op.startswith('s_cbranch_vcc'): pend = None
        if ('vcc', 0) in x.defs:
            assert pend is None or CFG.get('drop'), (pend.text, x.text)
            pend = x
    if CFG.get('align', True):
        code, a, b = align_runs(code, CFG.get('minrun', 6)); print('aligned', a, b, file=sys.stderr)
    return kg.single(render(code), 256, 256, 163840, 512, accum=256)

if __name__ == '__main__':
    out = sys.argv[1] if len(sys.argv) > 1 else 'v2.s'
    for kv in sys.argv[2:]:
        k, v = kv.split('='); CFG[k] = eval(v)
    open(out, 'w').write(build())
    from collections import Counter
    print('nops inserted:', len(NOPSTATS), 'states', sum(p for p, _ in NOPSTATS), Counter(t.split()[0] for p, t in NOPSTATS).most_common(8), file=sys.stderr)
```

```python
import sys, struct, math
from asmlib import *
import kg

def fbits(x): return '0x%08x' % struct.unpack('<I', struct.pack('<f', x))[0]

K_X, K_LRE, K_LIM, K_BRE, K_BIM, K_CRE, K_CIM, K_LDT, K_DSK, K_W1, K_B1, K_W2, K_B2, K_OUT, K_DBG, K_WS = \
    0, 8, 16, 24, 32, 40, 48, 56, 64, 80, 88, 96, 104, 112, 120, 128
ACT = 0
W2F = 0xC00000
STAT = 0x1000000
CS = 0x1010000
EST = 0x1040000; EST_STRIDE = 768 * 8
EPO = 78 * 4096
PF = 0x10C0000
PFY = 0x10000
AF = 0x1780000
def afm(): return {'pack': (6, 2), 'line': (7, 2), 'full': (11, 7)}[CFG.get('af', 'pack')]
CS5 = 0x1030000
STAMP_OFF = 0x10A0000
XCH = 0x1100000
WS_USED = 0x1B00000
OOB = 0x40000000
PFS = 3840
LOG2E = 1.4426950408889634
SPIN_MAX = 20000

CFG = dict(stamps=False, w_every=45, eg=False, npre_s=8, s5_w1=6, s5_w2=10, yf_vec=1, la2=60, la_y=56, swap=False, wrot=0, stg5='poll', est='direct', thin5=False, warm=False, rate5=12, x_step=6, f_ld=6, f_wait=22, af='line', pf_rep=4, f0_at=8, f1_at=12, p_w5=8.2)

X, WS = 4, 8
pOUT, pDSK, pB2 = 12, 14, 16
sHA, sHF = 18, 21
W1, W2, B1 = 24, 28, 72
BRE, BIM, CRE, CIM, LRE, LIM, LDT = 24, 28, 32, 36, 40, 44, 48
TSRD = 72
def q(s): return f's[{s}:{s+3}]'
def sp(s): return f's[{s}:{s+1}]'
sA, sAown, sFL, sFL2, sXO, sXI, sOO, sC160, sSTO, sPFf, sPFy, sPUB = range(40, 52)
sW, sRB, sCG, sTAG, sC1, sC2, sC3, sWL, sWK, sWT, sWF, sWB, r0, r1 = range(52, 66)
t0, t1, t2, t3, t4, t5 = range(66, 72)
r2_, r3, r4, r5, sU0, sU1 = range(72, 78)
NSTAMP = 12
STSETS = {
 'A': ['entry','bar','loop','t1','t3','t4','s1','s7','s12','s19','p2end','end'],
 'S': ['entry','loop','t4','p2end','fin','end','te','s4','bar','loop#','s4#','fin#'],
 'H': ['entry','loop','t4','s4','s9','s12','s14','s16','s18','s21','p2end','fin'],
 'K': ['entry','bar','b4','loop','s4','fin','entry#','bar#','b4#','loop#','s4#','fin#'],
 'L': ['b4','b6','b8','loop','s0','s7','b4#','b6#','b8#','loop#','s0#','s7#'],
 'M': ['s0','s7','s12','s17','p2end','fin','s0#','s7#','s12#','s17#','p2end#','fin#'],
 'N': ['loop','e0','e1','t1','pub','z','loop#','e0#','e1#','t1#','pub#','z#'],
 'B': ['entry','pro','d0','tag','stats','bar','b0','b1','b2','b3','b4','end'],
 'F': ['entry','bar','b0','b1','b2','b3','b4','b5','b6','b7','b8','loop'],
 'G': ['entry','loop','t1','pub','pl0','t2','t3','z','a0','hb0','hb1','t4'],
 'C': ['entry','loop','e0','e1','t1','t4','a0','a1','s0','s1','s2','s3'],
 'D': ['entry','s3','s4','s5','s6','s7','s8','s9','s10','s11','s12','s13'],
 'E': ['entry','s13','s15','s17','s19','s21','s23','p2end','xw','xok','fin','end'],
}
def ST(name):
    if not CFG['stamps']: return []
    L = STSETS[CFG['stamps']]
    out = []
    for nm, op in ((name, 's_memrealtime'), (name + '#', 's_memtime')):
        if nm in L: k = L.index(nm); out.append(f'{op} s[{78+2*k}:{79+2*k}]')
    return out
def ST_dump():
    if not CFG['stamps']: return []
    L = ['s_waitcnt vmcnt(0)'] + ST('end') + ['s_waitcnt lgkmcnt(0)', f's_lshl_b32 s{t0}, s2, 2', f's_add_u32 s{t0}, s{t0}, s{sW}', f's_lshl_b32 s{t0}, s{t0}, 7',
         f's_add_u32 s{t0}, s{t0}, {STAMP_OFF}', 'v_mov_b32 v1, 0', 's_mov_b64 exec, 1']
    for k in range(NSTAMP):
        L += [f'v_mov_b32 v2, s{78+2*k}', f'buffer_store_dword v2, v1, {q(WS)}, s{t0} offen offset:{4*k}']
    return L

def srd(s, koff, size):
    return [f's_load_dwordx2 s[{s}:{s+1}], s[0:1], {koff}'], [f's_mov_b32 s{s+2}, {size}', f's_mov_b32 s{s+3}, 0x20000']
def srds(lst):
    a, b = [], []
    for s, k, z in lst:
        x, y = srd(s, k, z); a += x; b += y
    return a + b
def pr(r): return f'v[{r}:{r+1}]'
def q4(r, f='v'): return f'{f}[{r}:{r+3}]'

NOPSTATS = []
def fin(P): return finalize(flat(P), NOPSTATS)

SPINS = []
def check(name, loads, accum, cond):
    br_bad, br_ok = ('s_cbranch_vccnz', 's_cbranch_vccz') if cond[-1].startswith('v_cmp') else ('s_cbranch_scc0', 's_cbranch_scc1')
    blk = [f'L_spin_{name}:', f's_mov_b32 s{t5}, 0', f'L_spinl_{name}:', 's_sleep 1'] + [mk(x).text for x in flat(loads)] + ['s_waitcnt vmcnt(0)'] + flat(accum) + \
          [f's_add_u32 s{t5}, s{t5}, 1', f's_cmp_gt_u32 s{t5}, {SPIN_MAX}', f's_cbranch_scc1 L_ret_{name}'] + cond + [f'{br_bad} L_spinl_{name}', f's_branch L_ret_{name}']
    SPINS.append(blk)
    return list(accum) + [tuple(cond + [f'{br_bad} L_spin_{name}', f'L_ret_{name}:'])]

def chain(regs):
    L = []; cur = regs[0]
    for r in regs[1:]:
        L.append((f's_cmp_eq_u32 s{cur}, s{sTAG}', f's_cselect_b32 s{regs[0]}, s{r}, s{cur}')); cur = regs[0]
    return L, f's_cmp_eq_u32 s{cur}, s{sTAG}'
def check_s(name, load, regs, pre=[], sleep=0):
    ch, last = chain(regs)
    blk = [f'L_spin_{name}:', f's_mov_b32 s{t5}, 0', f'L_spinl_{name}:'] + ([f's_sleep {sleep}'] if sleep else []) + [mk(x).text for x in flat([load])] + ['s_waitcnt lgkmcnt(0)',
           f's_add_u32 s{t5}, s{t5}, 1', f's_cmp_gt_u32 s{t5}, {SPIN_MAX*2}', f's_cbranch_scc1 L_ret_{name}'] + flat(pre) + flat(ch) + [last, f's_cbranch_scc0 L_spinl_{name}', f's_branch L_ret_{name}']
    SPINS.append(blk)
    return list(pre) + ch + [(last, f's_cbranch_scc0 L_spin_{name}', f'L_ret_{name}:')]

def gate(name, loads, test):
    SPINS.append([f'L_spin_{name}:', f's_mov_b32 s{t5}, 0', f'L_spinl_{name}:'] + [mk(x).text for x in loads] + ['s_waitcnt lgkmcnt(0)', f's_add_u32 s{t5}, s{t5}, 1',
                  f's_cmp_gt_u32 s{t5}, {SPIN_MAX*2}', f's_cbranch_scc1 L_ret_{name}'] + flat(test) + [f's_cbranch_scc0 L_spinl_{name}', f's_branch L_ret_{name}'])
    return list(test[:-1]) + [(test[-1], f's_cbranch_scc0 L_spin_{name}', f'L_ret_{name}:')]

def tagacc(acc, regs, exp=None):
    L = []
    for i, r in enumerate(regs):
        e = f's{sTAG}' if exp is None else f'v{exp[i]}'
        if i == 0: L.append(f'v_xor_b32 v{acc}, {e}, v{r}')
        else: L.append(f'v_bitop3_b32 v{acc}, v{acc}, v{r}, {e} bitop3:0xf6')
    return L

def dpp_row_sum(v):
    return [f'v_add_f32_dpp v{v}, v{v}, v{v} row_ror:{n} row_mask:0xf bank_mask:0xf' for n in (8, 4, 2, 1)]

VTK, VST = 254, 240
def entry():
    P = ['L_base:'] + ST('entry') + [f's_getpc_b64 s[{t0}:{t1}]', 'L_pc:'] + [f's_load_dwordx2 {sp(p)}, s[0:1], {k}' for p, k in ((X, K_X), (WS, K_WS), (pDSK, K_DSK))] + [
        's_cmp_ge_u32 s2, 256', 's_cbranch_scc1 L_end', *([f's_sleep {CFG["dbg_sleep"]}'] if CFG.get('dbg_sleep') else []),
        f's_lshr_b32 s{t3}, s2, 3', 'v_lshrrev_b32 v11, 4, v0', f'v_lshl_add_u32 v11, s{t3}, 4, v11', 'v_lshlrev_b32 v11, 7, v11', 'v_min_u32 v11, (L_end-L_pc), v11',
        f'global_load_dword v253, v11, s[{t0}:{t1}]',
        f's_and_b32 s{t4}, s2, 1', f's_lshl_b32 s{t4}, s{t4}, 3', f's_and_b32 s{t5}, s{t3}, 7', f's_add_u32 s{sRB}, s{t4}, s{t5}',
        f's_and_b32 s{t4}, s2, 6', f's_lshr_b32 s{t5}, s2, 6', f's_add_u32 s{t4}, s{t4}, s{t5}', f's_cmp_ge_u32 s{t5}, 2', f's_cselect_b32 s{t5}, 7, 0', f's_add_u32 s{sCG}, s{t4}, s{t5}',
        f's_cmp_eq_u32 s{sCG}, 16', f's_cselect_b32 s{sCG}, 8, s{sCG}', f's_lshl4_add_u32 s{t4}, s{sRB}, s{sCG}',
        f'v_lshrrev_b32 v{VTK}, 5, v0', f'v_lshl_add_u32 v{VTK}, s{t4}, 3, v{VTK}', f'v_mul_u32_u24 v12, 1280, v{VTK}', 'v_and_b32 v13, 31, v0', 'v_lshl_add_u32 v12, v13, 3, v12',
        'v_lshrrev_b32 v1, 6, v0', 'v_and_b32 v0, 63, v0', f's_cmp_ge_u32 s{sCG}, 9', f'v_readfirstlane_b32 s{sW}, v1']
    P += [f'global_load_dwordx2 {pr(VST+2*i)}, v12, {sp(X)} offset:{256*i}' for i in range(5)]
    P += ['s_cbranch_scc1 L_pro_s5']
    late = [f's_load_dwordx2 {sp(p)}, s[0:1], {k}' for p, k in ((pOUT, K_OUT), (pB2, K_B2))] + srd(WS, K_WS, WS_USED)[1] + srd(X, K_X, 2621440)[1]
    return P, late

def ids2():
    duty = [f's_lshr_b32 s3, s{sRB}, 2', f's_sub_u32 s3, s{sRB}, s3', 's_sub_u32 s3, s3, 1', f's_and_b32 s{t4}, s{sRB}, 3', 's_cselect_b32 s3, s3, 12'] if CFG.get('duty', 'even') == 'even' else [f's_mov_b32 s3, s{sRB}']
    return duty + [
            f's_lshl_b32 s{sWL}, s{sW}, 10', f's_and_b32 s{sWT}, s{sW}, 1', f's_lshr_b32 s{sWF}, s{sW}, 1']
def get_tag():
    return [f's_mul_i32 s{sTAG}, s{sTAG}, 0x9e3779b1', f's_add_u32 s{sTAG}, s{sTAG}, 0x7f4a7c15']
def preloop(S, d0):
    n0 = CFG.get('d0_first', 3); k = 0; a = 0
    while k < len(S) and a < CFG.get('st_at', 150):
        a += Gaps.cost(flat([S[k]])); k += 1
    while k < len(S) and any((f's', t4) in mk(y).uses for x in S[k:k+1] for y in flat([x]) if not isinstance(y, PSEUDO)): k += 1
    S = S[:k] + get_tag() + token_stats() + S[k:]
    tot = Gaps.cost(flat(S))
    X_, left = sprinkle(S, d0[n0:], max(1, int((tot - CFG.get('d0_skip', 100)) / (len(d0) - n0 + 0.5))), start=CFG.get('d0_skip', 100))
    return d0[:n0] + X_ + left
def token_stats():
    a, b, c, d = 250, 251, 252, 253
    L = [f'v_mov_b32 v{a}, 0', f'v_mov_b32 v{b}, 0']
    for i in range(10):
        L += [f'v_dot2c_f32_bf16 v{a}, 0x3f803f80, v{VST+i}', f'v_dot2c_f32_bf16 v{b}, v{VST+i}, v{VST+i}']
    for x, y in zip(dpp_row_sum(a), dpp_row_sum(b)): L += [x, y]
    L += [f'v_mov_b32 v{c}, v{a}', f'v_mov_b32 v{d}, v{b}', f'v_permlane16_swap_b32 v{a}, v{c}', f'v_permlane16_swap_b32 v{b}, v{d}',
          f'v_add_f32 v{a}, v{a}, v{c}', f'v_add_f32 v{b}, v{b}, v{d}',
          f'v_mul_f32 v{a}, {fbits(1/640)}, v{a}', f'v_mul_f32 v{b}, {fbits(1/640)}, v{b}',
          f'v_fma_f32 v{b}, -v{a}, v{a}, v{b}', f'v_max_f32 v{b}, 0, v{b}',
          f'v_cvt_pk_bf16_f32 v{b}, v{b}, v{b}', f'v_and_b32 v{b}, 0xffff0000, v{b}',
          f'v_add_f32 v{b}, {fbits(1e-5)}, v{b}', f'v_cvt_pk_bf16_f32 v{b}, v{b}, v{b}', f'v_and_b32 v{b}, 0xffff0000, v{b}',
          f'v_sqrt_f32 v{b}, v{b}', f'v_mov_b32 v{d}, s{sTAG}', f'v_lshlrev_b32 v{VTK}, 3, v{VTK}',
          f'v_cvt_pk_bf16_f32 v{c}, -v{a}, v{b}', f'v_add_u32 v{VTK}, {STAT}, v{VTK}',
          ('s_mov_b32 exec_lo, 1', 's_mov_b32 exec_hi, 1', f'buffer_store_dwordx2 {pr(c)}, v{VTK}, {q(WS)}, 0 offen sc1', 's_mov_b64 exec, -1')]
    return L

def xswz(dst, tmp):
    return [f's_lshl_b32 s{t4}, s{sWT}, 2', f'v_lshrrev_b32 v{tmp}, 4, v0', f'v_add_u32 v{tmp}, s{t4}, v{tmp}',
            f'v_and_b32 v{dst}, 7, v0', f'v_xor_b32 v{dst}, v{dst}, v{tmp}', f'v_lshlrev_b32 v{dst}, 4, v{dst}']

def act_offsets(n, role, a, b_):
    L = [f's_lshl_b32 s{a}, s{sRB}, 1', f's_add_u32 s{a}, s{a}, s{sWT}', f's_lshl_b32 s{a}, s{a}, 3']
    for b in range(3):
        d, fl = sHA + b, sHF + b
        L += [f's_add_u32 s{d}, s{n}, {(0,18,36)[b] if role == "f" else 56 + (0,14,27)[b]}', f's_and_b32 s{b_}, s{d}, 7', f's_add_u32 s{b_}, s{b_}, s{a}', f's_lshr_b32 s{d}, s{d}, 3',
              f's_lshl_b32 s{fl}, s{b_}, {afm()[0] - afm()[1]}', f's_add_u32 s{fl}, s{fl}, s{d}', f's_lshl_b32 s{fl}, s{fl}, {afm()[1]}', f's_add_u32 s{fl}, s{fl}, {AF}',
              f's_mul_i32 s{b_}, s{b_}, 12', f's_add_u32 s{d}, s{d}, s{b_}', f's_lshl_b32 s{d}, s{d}, 12']
    return L

SLOT0 = 40960; SLOT = 40960; WOFF = 16384
ACC = 16; FR = 112

VX2, VW2 = 252, 253
def dma_chunk(role, c):
    slot = SLOT0 + SLOT * (c % 3)
    soff = ['0', f's{sC1}', f's{sC2}', f's{sC3}']
    vx, vw = (1, 2) if c % 2 == 0 else ((VX2, VW2) if c > 1 else (238 if role == 's5' else 239, 239 if role == 's5' else 215))
    if role == 'ffn' and c % 2: vx, vw = 214, 215
    ce = c & ~1
    xs = [[f's_add_u32 m0, s{sWL}, {slot + 4096*n - 128*ce}',
           I(f'buffer_load_dwordx4 v{vx}, {q(X)}, {soff[n]} offen offset:{128*ce} lds', tag=f'c{c}')] for n in range(4)]
    ws = []
    if role == 's5':
        so = ['0', f's{sU0}', f's{sC2}']
        for n in range(6):
            ws.append([f's_add_u32 m0, s{sWL}, {slot + WOFF + 12288*(n%2) + 4096*(n//2) - 128*ce}',
                       I(f'buffer_load_dwordx4 v{vw}, {q(BIM if n % 2 else BRE)}, {so[n//2]} offen offset:{128*ce} lds', tag=f'c{c}')])
    else:
        for hi in range(2):
            for cb in range(3):
                g = [f's_add_u32 m0, s{sWL}, {slot + WOFF + 8192*cb + 4096*hi - 128*cb}',
                     I(f'buffer_load_dwordx4 v{vw}, {q(W1)}, s{sWK} offen offset:{128*cb} lds', tag=f'c{c}')]
                if cb == 2:
                    if hi == 0: g.append(f's_add_u32 s{sWK}, s{sWK}, {32*3456}')
                    elif c % 2 == 0: g.append(f's_sub_u32 s{sWK}, s{sWK}, {32*3456}')
                    else: g.append(f's_add_u32 s{sWK}, s{sWK}, {96*3456}')
                ws.append(g)
    return [xs[0], ws[0], ws[1], xs[1], ws[2], xs[2], ws[3], ws[4], xs[3], ws[5]]
def pair_swap(role):
    ox, ow = (214, 215) if role == 'ffn' else (238, 239)
    ks = 64 * 3456 if role == 'ffn' else 128
    par = [f's_lshr_b32 s{t4}, s2, 3', f's_lshr_b32 s{t5}, s2, 6', f's_xor_b32 s{t4}, s{t4}, s{t5}', f's_and_b32 s{t4}, s{t4}, 1'] if CFG.get('swap', True) else [f's_mov_b32 s{t4}, 0']
    return par + [f's_lshl_b32 s{t5}, s{t4}, 7', f'v_add_u32 v1, s{t5}, v1', f's_xor_b32 s{t5}, s{t5}, 128', f's_lshl_b32 s{t1}, s{t4}, 7', f's_sub_u32 s{t5}, s{t5}, s{t1}', f'v_add_u32 v{ox}, s{t5}, v1',
                  f's_mul_i32 s{t5}, s{t4}, {ks}', f'v_add_u32 v2, s{t5}, v2', f's_lshl_b32 s{t5}, s{t5}, 1', f's_sub_u32 s{t5}, {ks}, s{t5}', f'v_add_u32 v{ow}, s{t5}, v2']

def bmp(v, c):
    return f'v_add_u32 v{v}, 40960, v{v}' if c % 3 != 2 else f'v_subrev_u32 v{v}, 81920, v{v}'

def ffn_reads(sig):
    c, s = divmod(sig, 4)
    f = FR + 20 * (sig & 1)
    x = lambda tb: f'ds_read_b128 {q4(f+4*tb)}, v{3+s} offset:{4096*tb}'
    w = lambda b, u: f'ds_read_b64_tr_b16 {pr(f+8+4*b+2*u)}, v{7+b} offset:{(16*s+4*u)*128}'
    R = [x(0), w(0, 0), w(0, 1), x(1), w(1, 0), w(1, 1), w(2, 0), w(2, 1)]
    if c < 9:
        R.append(bmp(3 + s, c))
        if s == 3: R += [bmp(7, c), bmp(8, c), bmp(9, c)]
    return R
def ffn_mfmas(f, first):
    M = []
    for t in range(6):
        d = ACC + 16 * t
        M.append(f'v_mfma_f32_32x32x16_bf16 v[{d}:{d+15}], {q4(f+8+4*(t//2))}, {q4(f+4*(t%2))}, ' + ('0' if first else f'v[{d}:{d+15}]'))
    return M
def ffn_loop(extra_wait):
    G = Gaps3(6, 5); bars = []
    for sig in range(40):
        c, s = divmod(sig, 4)
        M = ffn_mfmas(FR + 20 * (sig & 1), sig == 0)
        R = ffn_reads(sig + 1) if sig < 39 else []
        bar = (s == 3 and c < 9)
        for t in range(6):
            i = G.add(M[t])
            if t == 1:
                if bar:
                    G.need(i, Wait(f'c{c+1}', *extra_wait.get(c, []))); G.need(i, 's_waitcnt lgkmcnt(0)')
                    G.fixed(i, ['s_barrier'] + ['s_nop 15'] * (CFG.get('dbg_idle', 0) if c in CFG.get('dbg_c', range(9)) else 0) + ST(f'b{c}'), 'pre'); bars.append(i)
                else: G.need(i, Need(f'v[{FR + 20*(sig&1)}:{FR + 20*(sig&1) + 19}]'))
            if t == 5 and sig < 39: G.need(i, Need(q4(FR + 20*((sig+1)&1) + 4)))
            if t >= (1 if bar else 0):
                n = 2 if t < 5 else len(R)
                if s == 2 and t >= 3 and t < 5: n = 3
                G.fixed(i, R[:n]); R = R[n:]
    return G, bars

def s5_x(sig, tt): return f'ds_read_b128 {q4(FR + 16*(sig&1) + 4*tt)}, v{3+(sig&1)} offset:{2048*tt}'
def s5_b(sig, n): return f'ds_read_b128 {q4(FR + 32 + 4*n)}, v{5+(sig&1)} offset:{12288*(n&1) + 2048*(n>>1)}'
def s5_acc(n, tt): return ACC + 16 * n + 4 * tt
def s5_loop(extra_wait):
    G = Gaps3(2, 2); bars = []
    for sig in range(20):
        c, s = divmod(sig, 2)
        nx = sig + 1
        for n in range(6):
            for tt in range(4):
                d = s5_acc(n, tt)
                i = G.add(f'v_mfma_f32_16x16x32_bf16 {q4(d)}, {q4(FR+16*(sig&1)+4*tt)}, {q4(FR+32+4*n)}, ' + ('0' if sig == 0 else q4(d)))
                bar = s == 1 and c < 9
                if n == 1 and tt == 3 and not bar: G.need(i, Need(q4(FR + 32 + 20)))
                if nx > 19: continue
                if bar and n == 0 and tt == 3:
                    G.need(i, Wait(f'c{c+1}', *extra_wait.get(c, []))); G.need(i, 's_waitcnt lgkmcnt(0)')
                    G.fixed(i, ['s_barrier'] + ['s_nop 15'] * (CFG.get('dbg_idle', 0) if c in CFG.get('dbg_c', range(9)) else 0) + ST(f'b{c}'), 'pre'); bars.append(i)
                if n == 5 and tt == 3: G.need(i, Need(q4(FR + 16*(nx&1) + 12)))
                if tt == 3: G.fixed(i, [s5_b(nx, n)])
                if n in (1, 2) and tt in (0, 1): G.fixed(i, [s5_x(nx, 2*(n-1) + tt)])
                if nx // 2 < 9:
                    if n == 3 and tt == 1: G.fixed(i, [bmp(3 + (nx & 1), nx // 2)])
                    if n == 5 and tt == 3: G.fixed(i, [bmp(5 + (nx & 1), nx // 2)])
    return G, bars

def sched_dma(G, bars, role, seq, u, rate):
    pos = 0.0
    last = {}
    prev = -1
    for it in seq:
        if it[0] == 'pause':
            pos += it[1] * u; continue
        grp, mg = it
        i = max(int(pos), mg)
        i = max(i, prev + 1)
        while not G.can_dma(i): i += 1
        G.dma(i, grp, prev); prev = i
        last[grp[1].tag] = i
        pos = max(pos, mg) + u / rate
    print(role, 'dma margins (chunks):', [round((bars[c-1] - last[f'c{c}']) / u, 2) for c in range(2, 10)], file=sys.stderr)
    return last

def w2f_loads(rot=0):
    L = []
    for i in [(rot + x) % 7 for x in range(7)] + list(range(7, 12)):
        for j in range(5):
            k = 5 * i + j
            g = []
            if j == 0: g.append(f's_add_u32 s{t0}, s{sWB}, {5120*i}')
            if k == 30: g.append(f's_or_b32 s{t0}, s{t0}, s3')
            g.append(I(f'buffer_load_dwordx4 {q4(4*k, "a")}, v{14 if j < 4 else 15}, {q(WS)}, s{t0} offen' + (f' offset:{1024*j}' if j < 4 else '') + ' sc1', tag=f'w{k}'))
            L.append(tuple(g))
    return L
def p2_setup(a, b, c, d):
    mix = CFG.get('mix', True)
    rsub = [f's_lshr_b32 s{b}, s2, 2', f's_and_b32 s{b}, s{b}, 2', f's_lshr_b32 s{c}, s2, 6', f's_xor_b32 s{b}, s{b}, s{c}'] if mix else [f's_bfe_u32 s{b}, s2, 0x20003']
    return [f's_and_b32 s{a}, s2, 6', f's_lshl_b32 s{a}, s{a}, 1'] + rsub + [f's_add_u32 s{a}, s{a}, s{b}', f's_lshl_b32 s{a}, s{a}, 1',
            f's_and_b32 s{c}, s2, 1', f's_add_u32 s{a}, s{a}, s{c}', f's_xor_b32 s{b}, s{a}, 1',
            f's_lshr_b32 s{sPFy}, s{a}, 1', f's_and_b32 s{sPFy}, s{sPFy}, {CFG.get("pf_rep", 16) - 1}', f's_mul_i32 s{sPFy}, s{sPFy}, {PFS}', f's_add_u32 s{sPFy}, s{sPFy}, {PF}',
            f's_lshl_b32 s{c}, s{c}, 2', f's_add_u32 s{c}, s{c}, s{sW}', (f's_cmp_ge_u32 s{c}, 6', f's_cselect_b32 s3, {OOB}, 0'),
            f's_lshl_b32 s{sPFf}, s{c}, 5', f's_add_u32 s{sPFf}, s{sPFf}, s{sPFy}',
            f's_lshl_b32 s{d}, s{b}, 3', f's_add_u32 s{d}, s{d}, s{c}', f's_mul_i32 s{sA}, s{d}, {12*4096}', f's_lshl_b32 s{sFL}, s{d}, {afm()[0]}', f's_add_u32 s{sFL}, s{sFL}, {AF + (4 if afm()[1] == 7 else 0)}',
            f's_lshl_b32 s{d}, s{a}, 3', f's_add_u32 s{d}, s{d}, s{c}', f's_mul_i32 s{sAown}, s{d}, {12*4096}',
            f's_bfe_u32 s{d}, s2, 0x30003' if mix else f's_lshr_b32 s{d}, s2, 5', f's_mul_i32 s{sC160}, s{d}, 160', f's_xor_b32 s{sFL2}, s{sFL}, {8 << afm()[0]}',
            f's_lshl_b32 s{sWB}, s{d}, 3', f's_add_u32 s{sWB}, s{sWB}, s{c}', f's_mul_i32 s{sWB}, s{sWB}, {12*5120}', f's_add_u32 s{sWB}, s{sWB}, {W2F}',
            f's_mul_i32 s{c}, s{d}, 5', f's_lshr_b32 s{c}, s{c}, 2',
            f's_lshl_b32 s{c}, s{c}, 8', f's_add_u32 s{sPFf}, s{sPFf}, s{c}', f's_add_u32 s{sPFy}, s{sPFf}, {PFY}',
            f's_lshl_b32 s{d}, s{d}, 2', f's_add_u32 s{d}, s{d}, s{sW}',
            f's_lshl_b32 s{c}, s{b}, 5', f's_add_u32 s{c}, s{c}, s{d}', f's_mul_i32 s{sXO}, s{c}, 6272', f's_add_u32 s{sXO}, s{sXO}, {XCH}',
            f's_lshl_b32 s{c}, s{a}, 5', f's_add_u32 s{c}, s{c}, s{d}', f's_mul_i32 s{sXI}, s{c}, 6272', f's_add_u32 s{sXI}, s{sXI}, {XCH}',
            f's_lshl_b32 s{c}, s{a}, 2', f's_add_u32 s{c}, s{c}, s{sW}', f's_mul_i32 s{sOO}, s{c}, {16*1280}', f's_add_u32 s{sOO}, s{sOO}, s{sC160}',
            f's_sub_u32 s{d}, s{sW}, 1', f's_and_b32 s{d}, s{d}, 3', f's_lshl_b32 s{c}, s{a}, 2', f's_add_u32 s{c}, s{c}, s{d}',
            f's_lshl_b32 s{sSTO}, s{c}, 7', f's_add_u32 s{sSTO}, s{sSTO}, {STAT}']
def warm_flags():
    L = [I(f's_buffer_load_dword s{t0}, {q(WS)}, s{x} glc', tag='async') for x in (sFL, sFL2)] if CFG.get('warm', True) else []
    if CFG.get('warm_pf'):
        L += [f's_lshl4_add_u32 s{t1}, s{sCG}, s{sRB}', f's_lshl2_add_u32 s{t1}, s{t1}, s{sW}', f's_lshl_b32 s{t1}, s{t1}, 7', f's_add_u32 s{t1}, s{t1}, {PF}',
              I(f's_buffer_load_dword s{t0}, {q(WS)}, s{t1} glc', tag='async')]
    return L
def pf_publish(off, wg, v=231):
    return ([(f's_cmp_eq_u32 s{sW}, 0', f's_cselect_b32 s{off}, s{off}, {OOB}')] if wg else []) + \
           [(f's_mov_b64 exec, {(1 << CFG.get("pf_rep", 16)) - 1}', f'buffer_store_dword v13, v{v}, {q(WS)}, s{off} offen sc1', 's_mov_b64 exec, -1')]
def pf_check(name, which, fb, v):
    n, so = (7, sPFf) if which == 'f' else (5, sPFy)
    if which == 'f': ld = [f'v_and_b32 v{v}, 7, v0', f'v_min_u32 v{v}, 6, v{v}', f'v_and_b32 v{v+1}, 8, v0', f'v_lshl_or_b32 v{v}, v{v+1}, 3, v{v}']
    else: ld = [f'v_min_u32 v{v}, {n-1}, v0']
    ld += [f'v_lshlrev_b32 v{v}, 2, v{v}', f'buffer_load_dword v{v}, v{v}, {q(WS)}, s{so} offen sc1']
    ch, last = chain(list(range(fb, fb + n)))
    blk = [f'L_spin_{name}:', f's_mov_b32 s{t5}, 0']
    for k in range(2 if which == 'f' else 1):
        blk += [f'L_spinl_{name}{k}:', 's_sleep 2', f's_buffer_load_dwordx8 s[{fb}:{fb+7}], {q(WS)}, s{so} offset:{256*k} glc', 's_waitcnt lgkmcnt(0)',
                f's_add_u32 s{t5}, s{t5}, 1', f's_cmp_gt_u32 s{t5}, {SPIN_MAX*2}', f's_cbranch_scc1 L_ret_{name}'] + flat(ch) + [last, f's_cbranch_scc0 L_spinl_{name}{k}']
    SPINS.append(blk + [f's_branch L_ret_{name}'])
    return ld, [Need(f'v{v}'), f'v_cmp_ne_u32 vcc, s{sTAG}, v{v}'], [(f's_cbranch_vccnz L_spin_{name}', f'L_ret_{name}:')]
def pf_place(G, bar, u, name, which, fb, v):
    ld, c1, c2 = pf_check(name, which, fb, v)
    g, left = G.place(ld, bar - int(u * CFG.get('pf_lead', 0.95))); assert not left
    g = bar - u // 8
    G.need(g, c1[0]); G.fixed(g, c1[1:]); G.fixed(bar - 1, flat(c2), 'post')
XL = 122880
def stage_small(v):
    L = [f's_mul_i32 s{t4}, s{sW}, 3072', f's_add_u32 s{t4}, s{t4}, {XL}', f's_sub_u32 s{t2}, s{sSTO}, {STAT}', f's_mul_i32 s{t2}, s{t2}, 160', f's_add_u32 s{t2}, s{t2}, s{sC160}']
    for i in range(3):
        L += [f'v_add_u32 v{v+1}, {64*i}, v0', f'v_mul_u32_u24 v{v}, 6554, v{v+1}', f'v_lshrrev_b32 v{v}, 16, v{v}', f'v_mul_u32_u24 v{v}, 1120, v{v}', f's_add_u32 m0, s{t4}, {1024*i}',
              f'v_lshl_add_u32 v{v}, v{v+1}, 4, v{v}']
        ld = I(f'buffer_load_dwordx4 v{v}, {q(X)}, s{t2} offen lds', tag='xd')
        L.append(('s_mov_b32 exec_hi, 0', ld, 's_mov_b32 exec_hi, -1') if i == 2 else ld)
    L += [f'v_add_u32 v{v}, s{sC160}, v14']
    for off, p in ((2560, pDSK), (2720, pB2)):
        L += [f's_add_u32 m0, s{t4}, {off}', ('s_mov_b64 exec, 0x3ff', I(f'global_load_lds_dwordx4 v{v}, {sp(p)}', tag='xd'), 's_mov_b64 exec, -1')]
    L += [f's_add_u32 m0, s{t4}, 2880', ('s_mov_b64 exec, 0xff', I(f'buffer_load_dwordx4 v14, {q(WS)}, s{sSTO} offen sc1 lds', tag='xd'), 's_mov_b64 exec, -1')]
    return L
def flag8(off):
    if afm()[1] == 2: return flag_store(off)
    return ('s_mov_b64 exec, 0xff', f'buffer_store_dwordx4 v[12:15], v14, {q(WS)}, s{off} offen sc1', 's_mov_b64 exec, -1')
def flag_store(off):
    return ('s_mov_b64 exec, 1', f'buffer_store_dword v13, v14, {q(WS)}, s{off} offen sc1', 's_mov_b64 exec, -1')

def p2_setup_v():
    L = [f'v_add_u32 v1, s{sWL}, v14']
    for t in range(1, 4): L += [f'v_add_u32 v{1+t}, {1024*t}, v1', f'v_and_b32 v{1+t}, 0xfff, v{1+t}']
    return L

def ffn_prologue(late):
    P = srds([(W1, K_W1, 640*3456)])
    A = P.append
    P += ids2()
    A('v_lshrrev_b32 v11, 3, v0'); A('v_lshrrev_b32 v8, 4, v0'); A('v_lshlrev_b32 v8, 1, v8'); A('v_and_b32 v9, 7, v0')
    A('v_xor_b32 v8, v8, v9'); A('v_lshlrev_b32 v8, 4, v8')
    A('v_mul_u32_u24 v9, 3456, v11'); A('v_add_u32 v9, v9, v8')
    A(f's_mul_i32 s18, s3, 86'); A('s_lshr_b32 s18, s18, 8')
    A('s_mul_i32 s19, s18, 3'); A(f's_sub_u32 s19, s3, s19'); A(f's_mul_i32 s20, s{sCG}, 3'); A('s_add_u32 s19, s19, s20')
    A(f's_mul_i32 s20, s18, {160*3456}'); A('s_lshl_b32 s21, s19, 7'); A('s_add_u32 s20, s20, s21')
    A(f's_mul_i32 s21, s{sW}, {8*3456}'); A('s_add_u32 s20, s20, s21')
    A('s_cmp_lt_u32 s3, 12'); A(f's_cselect_b32 s20, s20, {OOB}')
    for i in range(5):
        A(f's_add_u32 m0, s{sWL}, {i*4096}')
        if i: A(f's_add_u32 s20, s20, {32*3456}')
        P.append(I(f'buffer_load_dwordx4 v9, {q(W1)}, s20 offen lds', tag='cs'))
    P += srds([(B1, K_B1, 3456), (W2, K_W2, 1728*1280)]) + late
    P += [f's_lshl_b32 s21, s{sCG}, 1', f's_add_u32 s21, s21, s{sWF}', 's_mul_i32 s21, s21, 192', 'v_lshlrev_b32 v13, 1, v13']
    P += [f'buffer_load_ushort v{236+b}, v13, {q(B1)}, s21 offen offset:{64*b}' for b in range(3)]
    P += [f's_load_dword s{sTAG}, {sp(WS)}, {EPO}'] + ST('pro')
    A('s_branch L_ffn')
    return P

def ffn_main(vm):
    P = ['L_ffn:']; A = P.append
    A('v_mul_u32_u24 v10, 1280, v11'); A('v_add_u32 v10, v10, v8')
    P += [f's_mov_b32 s{sC1}, 40960', f's_mov_b32 s{sC2}, 81920', f's_mov_b32 s{sC3}, 122880']
    P += xswz(1, 12)
    A(f's_lshl_b32 s{t4}, s{sRB}, 4'); A(f's_add_u32 s{t4}, s{t4}, s{sW}'); A(f's_lshl_b32 s{t4}, s{t4}, 3')
    A(f'v_add_u32 v12, s{t4}, v11'); A('v_mul_u32_u24 v12, 1280, v12'); A('v_add_u32 v1, v1, v12')
    A(f's_lshl_b32 s{t4}, s{sW}, 3'); A(f'v_add_u32 v12, s{t4}, v11'); A('v_mul_u32_u24 v12, 3456, v12')
    A('v_bfe_u32 v13, v0, 4, 1'); A('v_lshlrev_b32 v13, 2, v13'); A('v_and_b32 v2, 7, v0'); A('v_xor_b32 v2, v2, v13'); A('v_lshl_add_u32 v2, v2, 4, v12')
    A(f's_mul_i32 s{sWK}, s{sCG}, 384')
    P += pair_swap('ffn')
    S = []
    S += [f's_lshl_b32 s{sU1}, s19, 6', f's_lshl_b32 s21, s{sW}, 4', f's_add_u32 s{sU1}, s{sU1}, s21', f's_lshl_b32 s{sU1}, s{sU1}, 5', 's_lshl_b32 s21, s18, 3', f's_add_u32 s{sU1}, s{sU1}, s21',
          f's_add_u32 s{sU1}, s{sU1}, {CS}', ('s_cmp_lt_u32 s3, 12', f's_cselect_b32 s{sU1}, s{sU1}, {OOB}'), 'v_lshlrev_b32 v218, 5, v0']
    S += p2_setup(18, 19, 20, 21) + warm_flags()
    S += ['v_bfe_u32 v12, v0, 1, 3', 'v_lshrrev_b32 v3, 5, v0', 'v_xor_b32 v12, v12, v3', 'v_and_b32 v3, 31, v0', 'v_lshlrev_b32 v3, 7, v3', 'v_lshl_add_u32 v3, v12, 4, v3',
          f's_lshl_b32 s{t4}, s{sWT}, 13', f's_add_u32 s{t4}, s{t4}, {SLOT0}', f'v_add_u32 v3, s{t4}, v3']
    S += [f'v_xor_b32 v{3+s}, {s*32}, v3' for s in range(1, 4)]
    S += ['v_lshrrev_b32 v11, 5, v0', 'v_bfe_u32 v12, v0, 2, 2', 'v_lshl_add_u32 v11, v11, 3, v12', 'v_lshlrev_b32 v11, 7, v11',
          'v_bfe_u32 v12, v0, 3, 1', 'v_lshl_add_u32 v11, v12, 6, v11', 'v_bfe_u32 v12, v0, 4, 1', 'v_lshl_add_u32 v11, v12, 5, v11',
          'v_and_b32 v12, 3, v0', 'v_lshl_add_u32 v11, v12, 3, v11']
    for b in range(3):
        S += [f's_mul_i32 s{t4}, s{sWF}, 3', f's_add_u32 s{t4}, s{t4}, {b}', f's_and_b32 s{t5}, s{t4}, 1', f's_lshl_b32 s{t5}, s{t5}, 6',
              f's_lshr_b32 s{t4}, s{t4}, 1', f's_lshl_b32 s{t4}, s{t4}, 13', f's_add_u32 s{t4}, s{t4}, {SLOT0 + WOFF}',
              f'v_xor_b32 v{7+b}, s{t5}, v11', f'v_add_u32 v{7+b}, s{t4}, v{7+b}']
    S += ['v_lshrrev_b32 v216, 5, v0', 'v_lshlrev_b32 v216, 4, v216', 'v_bfe_u32 v12, v0, 2, 3', 'v_add_u32 v216, v216, v12',
          'v_lshrrev_b32 v12, 1, v12', 'v_lshlrev_b32 v12, 5, v12', 'v_lshl_add_u32 v216, v216, 7, v12', 'v_and_b32 v12, 3, v0', 'v_lshl_add_u32 v216, v12, 3, v216',
          f's_lshl_b32 s{t4}, s{sW}, 5', f'v_xor_b32 v217, s{t4}, v216', f's_lshl_b32 s{t4}, s{sW}, 12', f'v_add_u32 v216, s{t4}, v216']
    S += [f'v_mov_b32 v{160+i}, 0x3f803f80' for i in range(4)]
    S += ['v_lshlrev_b32 v14, 4, v0', 'v_add_u32 v15, 4096, v14']
    S += [f's_lshl_b32 s18, s{sCG}, 4', f's_add_u32 s18, s18, s{sRB}', f's_mul_i32 s{r2_}, s18, 4682', f's_lshr_b32 s{r2_}, s{r2_}, 16', f's_mul_i32 s19, s{r2_}, 14', 's_sub_u32 s19, s18, s19',
          's_lshl_b32 s20, s19, 2', f's_add_u32 s20, s20, s{sW}', 's_mul_i32 s21, s20, 3641', 's_lshr_b32 s21, s21, 16', f's_mul_i32 s{t4}, s21, 18', f's_sub_u32 s{t4}, s20, s{t4}',
          f's_mul_i32 s{t4}, s{t4}, 3', f's_add_u32 s{t4}, s{t4}, s21',
          f's_mul_i32 s{r0}, s{t4}, {32*1280}', f's_lshl_b32 s{t4}, s{r2_}, 7', f's_add_u32 s{r0}, s{r0}, s{t4}',
          f's_and_b32 s{r1}, s20, 7', f's_mul_i32 s{r1}, s{r1}, 12', f's_lshr_b32 s{t4}, s20, 3', f's_add_u32 s{r1}, s{r1}, s{t4}', f's_mul_i32 s{r1}, s{r1}, 5120',
          f's_lshl_b32 s21, s{r2_}, 12', f's_add_u32 s{r1}, s{r1}, s21', f's_add_u32 s{r1}, s{r1}, {W2F}',
          ('s_cmp_lt_u32 s20, 54', 's_cselect_b32 s21, s18, 200'), ('s_cmp_lt_u32 s21, 140', f's_cselect_b32 s{r1}, s{r1}, {OOB}', f's_cselect_b32 s{r0}, s{r0}, {OOB}'), f's_lshl_b32 s{r3}, s{sW}, 12',
          's_and_b32 s21, s20, 7', 's_lshl_b32 s21, s21, 3', f's_add_u32 s21, s21, s{t4}', f's_lshl_b32 s{t4}, s{r2_}, 6', f's_add_u32 s21, s21, s{t4}', 's_lshl_b32 s21, s21, 2', f's_add_u32 s21, s21, {PF}',
          f'v_mul_u32_u24 v231, {PFS}, v0',
          ('s_cmp_lt_u32 s18, 140', f's_cselect_b32 s{sPUB}, s21, {OOB}')]
    for jj in range(4):
        S += [f's_lshl_b32 s{t4}, s{r2_}, 2', f's_add_u32 s{t4}, s{t4}, {jj}', f's_mul_i32 s{t4}, s{t4}, 52', f's_lshr_b32 s{t4}, s{t4}, 8', f's_mul_i32 s{t4}, s{t4}, {95*5120}', f'v_add_u32 v{232+jj}, s{t4}, v14']
    S += [f's_lshl_b32 s{t1}, s{sCG}, 1', f's_add_u32 s{t1}, s{t1}, s{sWF}'] + act_offsets(t1, 'f', t2, t3)
    S += [f's_lshl_b32 s{r4}, s{t2}, 6', f's_add_u32 s{r4}, s{r4}, {STAT}', f's_mul_i32 s{r5}, s{t1}, 3072', f's_add_u32 s{r5}, s{r5}, {CS}',
          'v_and_b32 v12, 31, v0', 'v_lshlrev_b32 v219, 3, v12', 'v_lshrrev_b32 v220, 5, v0', 'v_lshlrev_b32 v220, 4, v220', 'v_lshl_add_u32 v220, v12, 5, v220',
          'v_bfe_u32 v11, v0, 4, 1', 'v_lshlrev_b32 v11, 10, v11', 'v_lshrrev_b32 v12, 5, v0', 'v_lshl_add_u32 v11, v12, 8, v11', 'v_and_b32 v12, 15, v0', 'v_lshl_add_u32 v11, v12, 4, v11']
    S += [f'v_mov_b32 v{188+4*k+2+h}, 0' for k in range(5) for h in range(2)]
    S += ['s_mov_b32 s36, -1', 's_mov_b32 s37, 0', 's_mov_b32 s38, 0x07060302', 's_mov_b32 s39, 0x05040302', f's_mov_b32 s{sU0}, 0x01000100']
    d0 = [tuple(g) for g in dma_chunk('ffn', 0)]
    P += preloop(S, d0) + ST('d0') + [f'v_mov_b32 v13, s{sTAG}'] + ST('tag')
    d1 = [tuple(g) for g in dma_chunk('ffn', 1)]
    rl = [(f's_add_u32 m0, s{r3}, {20480 + i*1024}', I(f'buffer_load_dwordx4 v10, {q(W2)}, s{r0} offen lds', tag='rl'), f's_add_u32 s{r0}, s{r0}, {8*1280}') for i in range(4)]
    NPRE = CFG.get('npre', 10)
    T_ = [Wait('cs'), 's_waitcnt lgkmcnt(0)', 's_barrier']
    for ks in range(5):
        for u in range(2): T_.append(f'ds_read_b64_tr_b16 {pr(168+4*ks+2*u)}, v217 offset:{ks*4096+u*1024}')
    for ks in range(5): T_.append(f'v_mfma_f32_16x16x32_bf16 v[164:167], v[160:163], {q4(168+4*ks)}, ' + ('0' if ks == 0 else 'v[164:167]'))
    T_ += ['v_mov_b32 v165, v13', ('s_mov_b64 exec, 0xffff', f'buffer_store_dwordx2 v[164:165], v218, {q(WS)}, s{sU1} offen sc1', 's_mov_b64 exec, -1')]
    if CFG.get('rl_pos', 1) == 0: d1 = rl + d1
    X_, left = sprinkle(T_, d1[:NPRE], CFG.get('d1_every', 6)); P += X_ + ST('stats') + left
    P += [Wait('c0'), 's_barrier'] + ST('bar') + ffn_reads(0)
    rp = CFG.get('rl_pos', 1)
    G, bars = ffn_loop({})
    seq = [(list(g), 0) for g in d1[NPRE:]]
    for c in range(2, 10):
        if rp == c - 1: seq += [(list(g), 0) for g in rl] + [('pause', CFG.get('rl_pause', 0))]
        seq += [(g, bars[c-3] if c > 2 else 0) for g in dma_chunk('ffn', c)]
    last = sched_dma(G, bars, 'ffn', seq, 24, CFG.get('rate', 11.0))
    BU = CFG.get('bud', 4)
    g_w = max(last['c9'], int(24 * CFG.get('p_w', 7.5))) + 1
    pf_place(G, g_w, 24, 'pf_ff', 'f', 28, 217)
    S = []
    for jj in range(4):
        S += [f'v_xor_b32 v12, {jj*32}, v216'] + [I(f'ds_read_b64_tr_b16 {pr(152+4*jj+2*u)}, v12 offset:{20480+u*1024}', need=['rl']) for u in range(2)]
    nxt, left = G.place(S, bars[rp] + 1 - CFG.get('rl_early', 0), budget=6); assert not left
    S = [I(f'buffer_store_dwordx4 {q4(152+4*jj)}, v{232+jj}, {q(WS)}, s{r1} offen offset:{1024*jj} sc1', tag='rls') for jj in range(4)]
    g_rl, left = G.place(S, nxt + 1, step=CFG.get('rls_step', 3), budget=8); assert not left
    g_rl, left = G.place([Wait('rls')] + pf_publish(sPUB, False), g_rl + CFG.get('rls_wait', 20)); assert not left
    ld = [f'buffer_load_dwordx2 {pr(168+2*tb)}, v219, {q(WS)}, s{r4} offen offset:{256*tb} sc1' for tb in range(2)] + \
         [f'buffer_load_dwordx4 {q4(172+4*b)}, v220, {q(WS)}, s{r5} offen offset:{1024*b} sc1' for b in range(3)]
    ld = [I(x, tag='ext') for x in ld]
    nxt, left = G.place(ld, max(nxt, int(24 * CFG.get('p_ext', 4.0))), step=CFG.get('ext_step', 4)); assert not left
    S = check('ext', ld, tagacc(12, [169, 171] + [173+2*k for k in range(6)]), ['v_cmp_ne_u32 vcc, 0, v12'])
    EX = 188
    for tb in range(2):
        f = EX + 4 * tb
        S += [f'v_cndmask_b32 v{f+1}, 0, v{168+2*tb}, s[36:37]', f'v_perm_b32 v{f}, v{f+1}, v{f+1}, s{sU0}']
    S += [f'v_add_f32 v{172+4*b}, v{172+4*b}, v{174+4*b}' for b in range(3)] + [f'v_mov_b32 v{173+4*b}, v{172+4*b}' for b in range(3)]
    for b in range(3):
        r = 172 + 4 * b; f = EX + 8 + 4 * b; t = r + 1
        S += [f'v_permlane32_swap_b32 v{r}, v{t}', f'v_add_f32 v{r}, v{r}, v{t}',
              f'v_and_b32 v{t}, 0xffff0000, v{r}', f'v_sub_f32 v{t}, v{r}, v{t}', f'v_perm_b32 v{f}, v{t}, v{r}, s38',
              f'v_and_b32 v{r}, 0xffff0000, v{t}', f'v_sub_f32 v{t}, v{t}, v{r}', f'v_perm_b32 v{f+1}, v{236+b}, v{t}, s39']
    c1 = -2 * math.sqrt(2 / math.pi) * LOG2E; c3 = c1 * 0.044715
    S += [f'v_and_b32 v{212+tb}, 0xffff0000, v{168+2*tb}' for tb in range(2)] + [f'v_rcp_f32 v{169+2*tb}, v{212+tb}' for tb in range(2)]
    for tb in range(2):
        r = 169 + 2 * tb
        S += [f'v_mul_f32 v{208+tb}, {fbits(c1)}, v{r}', f'v_mul_f32 v12, v{r}, v{r}', f'v_mul_f32 v12, v12, v{r}', f'v_mul_f32 v{210+tb}, {fbits(c3)}, v12']
    nxt, left_ext = G.place(S, nxt + 22, budget=BU)
    WL = w2f_loads()
    g3, WL = G.place(WL, g_w, step=CFG.get('w_step', 2), budget=6)
    if CFG.get('stg', 'tail') == 'loop': g3, left = G.place(stage_small(222), bars[8] + 1, budget=6); left_ext += left
    g3, left = G.place(p2_setup_v(), 234, budget=6); left_ext += left
    print('ffn: last dma gap', last['c9'], 'rl', g_rl, 'ext done', nxt, 'left', len(left_ext), 'w2f left', len(WL), file=sys.stderr)
    assert len(WL) >= 25
    P += G.emit() + left_ext + ST('loop')
    if CFG.get('warm2', True): P += [I(f's_buffer_load_dword s{t1}, {q(WS)}, s{sHF+b} glc', tag='async') for b in range(3)]
    P += ffn_mfmas(EX, False)
    return P, WL

def ffn_tail(WL, late):
    P = []
    T = 112; n = 0
    E = []; held = []
    for t in range(6):
        b, tb = divmod(t, 2)
        sel = f'op_sel:[0,{tb},{tb}] op_sel_hi:[1,{tb},{tb}]'
        for piece in range(2):
            o = 128 + 4 * (n % 4); n += 1
            a = lambda p: pr(ACC + 16*t + 8*piece + 2*p)
            tt = lambda p: pr(T + 2*p)
            if n - 1 == CFG.get('late_at', 10): E += late
            if n - 1 == CFG.get('f0_at', 7): E += [Wait('h0'), flag8(sHF)]
            if n - 1 == CFG.get('f1_at', 11): E += [Wait('h1'), flag8(sHF + 1)]
            E += [f'v_pk_mul_f32 {tt(p)}, {a(p)}, {a(p)}' for p in range(4)]
            E += [f'v_pk_fma_f32 {tt(p)}, {tt(p)}, v[210:211], v[208:209] {sel}' for p in range(4)]
            E += [f'v_pk_mul_f32 {tt(p)}, {tt(p)}, {a(p)}' for p in range(4)]
            E += [f'v_exp_f32 v{T+p}, v{T+p}' for p in range(8)]
            E += [f'v_pk_fma_f32 {tt(p)}, {tt(p)}, v[212:213], v[212:213] {sel}' for p in range(4)]
            E += [f'v_rcp_f32 v{T+p}, v{T+p}' for p in range(8)]
            E += [f'v_pk_mul_f32 {tt(p)}, {tt(p)}, {a(p)}' for p in range(4)]
            E += [f'v_cvt_pk_bf16_f32 v{o+p}, v{T+2*p}, v{T+2*p+1}' for p in range(4)]
            E.append(I(f'buffer_store_dwordx4 {q4(o)}, v11, {q(WS)}, s{sHA+b} offen offset:{tb*2048+piece*512} sc1', tag=f'h{b}'))
        if tb == 1: E += ST(f'e{b}')
    if CFG.get('f1_at', 11) >= 12: E += [Wait('h1'), flag8(sHF + 1)]
    nf = len(WL) - 25
    E, left = sprinkle(E, WL[:nf], CFG.get('w_every', 90)); WL = left + WL[nf:]
    E = (stage_small(222) if CFG.get('stg', 'tail') == 'tail' else []) + E
    P += E + ST('t1') + ST('te')
    return P, WL, [[Wait('h2'), flag8(sHF + 2)]]

def cpow(dst, rho, th, n, t):
    nn = n if isinstance(n, str) else fbits(n)
    return [f'v_mul_f32 v{t}, {nn}, v{rho}', f'v_mul_f32 v{t+1}, {nn}, v{th}', f'v_exp_f32 v{t}, v{t}', f'v_fract_f32 v{t+1}, v{t+1}',
            f'v_cos_f32 v{dst}, v{t+1}', f'v_sin_f32 v{dst+1}, v{t+1}', f'v_mul_f32 v{dst}, v{t}, v{dst}', f'v_mul_f32 v{dst+1}, v{t}, v{dst+1}']
def rho_theta(lr, li, ld, rho):
    return [f'v_lshlrev_b32 v{ld}, 16, v{ld}', f'v_mul_f32 v{ld}, {fbits(LOG2E)}, v{ld}', f'v_exp_f32 v{ld}, v{ld}', f'v_lshlrev_b32 v{lr}, 16, v{lr}', f'v_lshlrev_b32 v{li}, 16, v{li}',
            f'v_cvt_pk_bf16_f32 v{ld}, v{ld}, v{ld}', f'v_and_b32 v{ld}, 0xffff0000, v{ld}',
            f'v_mul_f32 v{rho}, v{ld}, v{lr}', f'v_mul_f32 v{rho+1}, v{ld}, v{li}',
            f'v_mul_f32 v{rho}, {fbits(LOG2E)}, v{rho}', f'v_mul_f32 v{rho+1}, {fbits(1/(2*math.pi))}, v{rho+1}']
BC_LO = 'op_sel:[0,0,0] op_sel_hi:[0,1,1]'
BC_HI = 'op_sel:[1,0,0] op_sel_hi:[1,1,1]'
NEG0 = 'neg_lo:[1,0,0] neg_hi:[1,0,0]'
SWP = 'op_sel:[1,1,0] op_sel_hi:[1,0,1] neg_lo:[1,0,0]'
def cma(dst, a, x, add):
    return [f'v_pk_fma_f32 {pr(add)}, {pr(a)}, {pr(x)}, {pr(add)} {BC_LO}', f'v_pk_fma_f32 {pr(dst)}, {pr(a)}, {pr(x)}, {pr(add)} {SWP}']

PB_ = 168
def par(b, k): return PB_ + 12 * b + k
A1, A8, A16, A128, RT, ASG = [(lambda k: (lambda b: par(b, k)))(k) for k in (0, 2, 4, 6, 8, 10)]
A512 = RT
A16S = 204
PRM = 16
def s5_prologue(late):
    P = ['L_pro_s5:'] + [srd(x, k, 0)[0][0] for x, k in ((BRE, K_BRE), (BIM, K_BIM), (LRE, K_LRE), (LIM, K_LIM), (LDT, K_LDT))]
    A = P.append
    P += ids2()
    A(f's_sub_u32 s{sU1}, s{sCG}, 9')
    A(f's_mul_i32 s{t2}, s{sU1}, 96')
    A('v_and_b32 v7, 15, v0'); A('v_lshrrev_b32 v8, 4, v0')
    A(f's_mul_i32 s{sWK}, s{sWF}, 48'); A(f's_add_u32 s{sWK}, s{sWK}, s{t2}')
    A(f's_lshl4_add_u32 s{t4}, s{sU1}, s{sRB}'); A(f's_mul_i32 s{r0}, s{t4}, 6554'); A(f's_lshr_b32 s{r0}, s{r0}, 16')
    A('v_cmp_eq_u32 vcc, 3, v8'); A(f's_lshl2_add_u32 s{t5}, s{r0}, s{sW}'); A(f'v_add_u32 v9, s{sWK}, v0'); A(f'v_lshl_add_u32 v13, s{t5}, 4, v7')
    A('v_cndmask_b32 v9, v9, v13, vcc'); A('v_min_u32 v9, 639, v9'); A('v_lshlrev_b32 v9, 1, v9')
    A(f's_mul_i32 s{r1}, s{r0}, 10'); A(f's_sub_u32 s{r1}, s{t4}, s{r1}')
    A(f's_cmp_ge_u32 s3, 6'); A(f's_cselect_b32 s{t3}, 1, 0')
    A(f's_mul_i32 s{t4}, s{t3}, 6'); A(f's_sub_u32 s{t4}, s3, s{t4}'); A(f's_lshl4_add_u32 s{t4}, s{t4}, s{t2}'); A(f's_lshl2_add_u32 s{t4}, s{sW}, s{t4}')
    A('s_cmp_lt_u32 s3, 12'); A(f's_cselect_b32 s{t4}, s{t4}, 1000')
    A(f'v_add_u32 v10, s{t4}, v8'); A('v_mul_u32_u24 v11, 1280, v10'); A('v_lshl_add_u32 v11, v7, 4, v11')
    A(f's_mov_b32 s{TSRD+2}, 819200'); A(f's_mov_b32 s{TSRD+3}, 0x20000')
    for k, s in enumerate((LRE, LIM, LDT)): A(f'global_load_ushort v{PRM+k}, v9, {sp(s)}')
    A(f's_cmp_ge_u32 s3, 6'); A(f's_cselect_b32 s{TSRD}, s{BIM}, s{BRE}'); A(f's_cselect_b32 s{TSRD+1}, s{BIM+1}, s{BRE+1}')
    for i in range(5): A(f'buffer_load_dwordx4 {q4(32+4*i)}, v11, {q(TSRD)}, 0 offen offset:{256*i}')
    P += srds([(CRE, K_CRE, 819200), (CIM, K_CIM, 819200)]) + late + srd(BRE, 0, 819200)[1] + srd(BIM, 0, 819200)[1]
    A('v_min_u32 v13, 9, v7'); A('v_lshlrev_b32 v13, 7, v13'); A(f'global_load_dword v28, v13, {sp(pDSK)}'); A(f'global_load_dword v29, v13, {sp(pB2)}')
    P += [f's_load_dword s{sTAG}, {sp(WS)}, {EPO}'] + ST('pro')
    A('s_branch L_s5')
    return P

def s5_main(early):
    P = ['L_s5:']; A = P.append
    P += [f's_mov_b32 s{sC1}, 5120', f's_mov_b32 s{sC2}, 81920', f's_mov_b32 s{sC3}, 87040', f's_mov_b32 s{sU0}, 40960']
    P += xswz(2, 12)
    A('v_lshrrev_b32 v12, 5, v0'); A('v_lshlrev_b32 v12, 4, v12'); A('v_bfe_u32 v13, v0, 3, 1'); A('v_lshl_add_u32 v12, v13, 3, v12')
    A('v_bfe_u32 v13, v0, 4, 1'); A('v_add_u32 v12, v12, v13')
    A(f's_lshl_b32 s{t4}, s{sRB}, 2'); A(f's_add_u32 s{t4}, s{t4}, s{sWT}'); A(f's_lshl_b32 s{t4}, s{t4}, 4'); A(f's_add_u32 s{t4}, s{t4}, s{sWF}'); A(f's_lshl_b32 s{t4}, s{t4}, 1')
    A(f'v_add_u32 v12, s{t4}, v12'); A('v_mul_u32_u24 v12, 1280, v12'); A('v_add_u32 v1, v2, v12')
    A(f's_lshl_b32 s{t4}, s{sW}, 3'); A('v_lshrrev_b32 v12, 3, v0'); A(f'v_add_u32 v12, s{t4}, v12'); A('v_mul_u32_u24 v12, 1280, v12'); A('v_add_u32 v206, v2, v12')
    A(f's_mul_i32 s{t4}, s{t2}, 1280'); A(f'v_add_u32 v2, s{t4}, v206')
    P += pair_swap('s5')
    S = []
    S += ['v_lshrrev_b32 v12, 1, v7', 'v_xor_b32 v12, v12, v8', 'v_lshlrev_b32 v12, 4, v12', 'v_lshl_add_u32 v12, v7, 7, v12',
          f's_lshl_b32 s{t4}, s{sWT}, 13', f's_add_u32 s{t4}, s{t4}, {SLOT0}', f'v_add_u32 v3, s{t4}, v12', 'v_xor_b32 v4, 64, v3',
          f's_mul_i32 s{t4}, s{sWF}, 6144', f's_add_u32 s{t4}, s{t4}, {SLOT0 + WOFF}', f'v_add_u32 v5, s{t4}, v12', 'v_xor_b32 v6, 64, v5']
    S += ['v_lshlrev_b32 v14, 4, v0', 'v_add_u32 v15, 4096, v14']
    S += [f's_lshl_b32 s{t4}, s{sWT}, 2', f'v_add_u32 v9, s{t4}, v8']
    SC = p2_setup(t1, t2, t4, r3) if CFG.get('thin5', True) else p2_setup(r2_, r3, r4, r5) + warm_flags()
    SC += [f's_lshl_b32 s{t1}, s{sU1}, 1', f's_add_u32 s{t1}, s{t1}, s{sWF}'] + act_offsets(t1, 'y', r3, r4)
    SC += [(f's_cmp_lt_u32 s{sWK}, 624', f's_cselect_b32 s{r5}, 0, {OOB}')] + [f's_add_u32 s{k+b}, s{k+b}, s{r5}' for k in (sHA, sHF) for b in (1, 2)]
    SC += [f's_lshl_b32 s{r3}, s{r3}, 6', f's_add_u32 s{r3}, s{r3}, {STAT}', f's_lshl_b32 s{r4}, s{sWK}, 4', f's_add_u32 s{r4}, s{r4}, {CS5}']
    if not CFG.get('thin5', True): S += SC; SC = []
    T = 56; Q_ = 64
    lr, li, ld = PRM, PRM + 1, PRM + 2
    S += rho_theta(lr, li, ld, Q_ + 8) + cpow(Q_, Q_ + 8, Q_ + 9, 1.0, T)
    def sq(dst, src): return [f'v_pk_mul_f32 {pr(T)}, {pr(src)}, {pr(src)} op_sel:[0,0] op_sel_hi:[0,1]', f'v_pk_fma_f32 {pr(dst)}, {pr(src)}, {pr(src)}, {pr(T)} {SWP}']
    S += sq(Q_+2, Q_) + sq(Q_+2, Q_+2) + sq(Q_+2, Q_+2) + sq(Q_+4, Q_+2) + sq(Q_+6, Q_+4) + sq(Q_+6, Q_+6) * 4
    k = Q_ + 10
    S += [f'v_add_f32 v{T}, -1.0, v{Q_}', f'v_mul_f32 v{T+1}, v{lr}, v{lr}', f'v_fmac_f32 v{T+1}, v{li}, v{li}', f'v_rcp_f32 v{T+1}, v{T+1}',
          f'v_mul_f32 v{k}, v{T}, v{lr}', f'v_fmac_f32 v{k}, v{Q_+1}, v{li}', f'v_mul_f32 v{k+1}, v{Q_+1}, v{lr}', f'v_fma_f32 v{k+1}, -v{T}, v{li}, v{k+1}',
          f'v_add_f32 v{T+1}, v{T+1}, v{T+1}', f'v_mul_f32 v{k}, v{k}, v{T+1}', f'v_mul_f32 v{k+1}, v{k+1}, v{T+1}',
          f'v_mov_b64 {pr(A16S)}, {pr(Q_+4)}', f's_lshl_b32 s{t4}, s{sW}, 12', 'v_mul_u32_u24 v12, 48, v0', f'v_add_u32 v12, s{t4}, v12']
    S += [f'ds_write_b128 v12, {q4(Q_+4*i)} offset:{16*i}' for i in range(3)]
    S += [f's_lshl_b32 s{t5}, s{sW}, 9', f'v_lshl_add_u32 v12, v0, 3, s{t5}', f'ds_write_b64 v12, {pr(k)} offset:16384', 'v_mul_u32_u24 v12, 48, v7', f'v_add_u32 v12, s{t4}, v12']
    S += [f'ds_read_b128 {q4(par(b, 4*i))}, v12 offset:{768*b + 16*i}' for b in range(3) for i in range(3)]
    S += ['v_and_b32 v13, 1, v8', f'v_lshl_add_u32 v231, v13, 6, s{t5}',
          'v_lshrrev_b32 v12, 1, v8', 'v_lshl_add_u32 v229, v12, 4, v7', 'v_lshlrev_b32 v229, 7, v229',
          f's_lshl_b32 s{t4}, s{sW}, 1', f'v_add_u32 v62, s{t4}, v13', 'v_lshrrev_b32 v63, 1, v7', 'v_xor_b32 v62, v62, v63', 'v_lshl_add_u32 v229, v62, 4, v229',
          'v_lshlrev_b32 v13, 8, v13', 'v_lshl_add_u32 v13, v7, 4, v13', f's_lshl_b32 s{t4}, s{r1}, 2', f'v_add_u32 v12, s{t4}, v12',
          f's_lshl2_add_u32 s{t4}, s{r0}, s{sW}', f's_mul_i32 s{t5}, s{t4}, 86', f's_lshr_b32 s{t5}, s{t5}, 8', f's_mul_i32 s{t1}, s{t5}, 3', f's_sub_u32 s{t4}, s{t4}, s{t1}',
          f's_mul_i32 s{t4}, s{t4}, 27', f's_add_u32 s{t4}, s{t4}, 1', f's_lshr_b32 s{t4}, s{t4}, 1', f's_add_u32 s{t4}, s{t4}, s{t5}',
          f's_and_b32 s{t5}, s{t4}, 7', f's_lshr_b32 s{t4}, s{t4}, 3',
          f's_lshl3_add_u32 s{t1}, s{r1}, s{t5}', f's_lshl3_add_u32 s{t1}, s{t1}, s{t4}', f's_lshl_b32 s{t1}, s{t1}, 2', f's_add_u32 s{sPUB}, s{t1}, {PF + PFY}',
          f's_mul_i32 s{t5}, s{t5}, 12', f's_add_u32 s{t4}, s{t4}, s{t5}', f's_mul_i32 s{t4}, s{t4}, 5120', f's_add_u32 s{r2_}, s{t4}, {W2F + 7*5120}',
          f's_mul_i32 s{r1}, s{r1}, {64*1280}', f's_lshl_b32 s{t4}, s{r0}, 7', f's_add_u32 s{t4}, s{t4}, s{r1}',
          (f's_cmp_lt_u32 s{r0}, 10', f's_cselect_b32 s{r0}, s{t4}, {OOB}', f's_cselect_b32 s{r2_}, s{r2_}, {OOB}', f's_cselect_b32 s{sPUB}, s{sPUB}, {OOB}'),
          f'v_add_u32 v228, s{r0}, v206', f'v_add_u32 v13, s{r2_}, v13', f's_mov_b32 s{t5}, {95*5120}']
    for u in range(2):
        S += [f'v_mul_u32_u24 v62, 52, v12', 'v_lshrrev_b32 v62, 8, v62', f'v_mul_u32_u24 v62, s{t5}, v62', f'v_lshl_add_u32 v62, v12, 10, v62', f'v_add_u32 v{(230, 255)[u]}, v62, v13', 'v_add_u32 v12, 2, v12']
    d0 = [tuple(g) for g in dma_chunk('s5', 0)]
    P += preloop(S, d0) + ST('d0') + [f'v_mov_b32 v13, s{sTAG}'] + ST('tag')
    d1 = [tuple(g) for g in dma_chunk('s5', 1)]
    NPRE = CFG.get('npre', 10)
    rl = []
    for part in range(2):
        for hi in range(2):
            rl.append((f's_add_u32 m0, s{sWL}, {20480 + 8192*part + 4096*hi}', I(f'buffer_load_dwordx4 v228, {q(CIM if part else CRE)}, {"s%d" % sU0 if hi else 0} offen lds', tag='rl')))
    T_ = ['v_mov_b32 v56, 0'] + [f'v_dot2c_f32_bf16 v56, 0x3f803f80, v{32+i}' for i in range(20)] + dpp_row_sum(56)
    T_ += ['v_mov_b32 v57, v13', f's_lshl_b32 s{t4}, s{t3}, 3', f's_add_u32 s{t4}, s{t4}, {CS5}',
          'v_lshlrev_b32 v11, 4, v10', 'v_cmp_gt_u32 vcc, 640, v10', f'v_mov_b32 v12, {OOB}', 'v_cndmask_b32 v11, v12, v11, vcc',
          ('s_mov_b32 exec_lo, 0x10001', 's_mov_b32 exec_hi, 0x10001', f'buffer_store_dwordx2 v[56:57], v11, {q(WS)}, s{t4} offen sc1', 's_mov_b64 exec, -1')]
    pre = d1
    X_, left = sprinkle(T_, pre[:NPRE], CFG.get('d1_every', 6)); P += X_ + ST('stats') + left
    P += [f'v_mov_b32 v{VX2}, v238', f'v_mov_b32 v{VW2}, v239', Wait('c0'), 's_waitcnt lgkmcnt(0)', 's_barrier'] + ST('bar') + [s5_x(0, 0), s5_b(0, 0)] + [s5_x(0, t) for t in range(1, 4)] + [s5_b(0, n) for n in range(1, 6)] + [bmp(3, 0), bmp(5, 0)]
    rp = CFG.get('rc_pos', 9)
    G, bars = s5_loop({})
    seq = [(list(g), 0) for g in pre[NPRE:]]
    for c in range(2, 11):
        if rp == c - 1: seq += [(list(g), 0) for g in rl] + [('pause', CFG.get('rc_pause', 0))]
        if c < 10: seq += [(g, bars[c-3] if c > 2 else 0) for g in dma_chunk('s5', c)]
    last = sched_dma(G, bars, 's5', seq, 48, CFG.get('rate5', 11.0))
    g_w = max(last['c9'], last['rl'] + 1, int(48 * CFG.get('p_w5', 7.6))) + 1
    pf_place(G, g_w, 48, 'pf_sf', 'f', 32, 226)
    CM = [f'ds_read_b128 {q4(112+4*i)}, v231 offset:{16384 + 384 + 16*i}' for i in range(4)]
    CM += [f'ds_read_b128 {q4((128, 240)[u]+4*part)}, v229 offset:{20480 + 8192*part + 4096*u}' for u in range(2) for part in range(2)]
    for u in range(2):
        D, O, Tm = (128, 240)[u], 208, 136
        for k in range(4):
            for h in range(2):
                un = (lambda d, s: f'v_lshlrev_b32 v{d}, 16, v{s}') if h == 0 else (lambda d, s: f'v_and_b32 v{d}, 0xffff0000, v{s}')
                CM += [un(Tm + 2*h, D + k), un(Tm + 2*h + 1, D + 4 + k)]
            CM += [f'v_pk_mul_f32 {pr(Tm+4+2*h)}, {pr(Tm+2*h)}, {pr(112+4*k+2*h)} op_sel:[0,0] op_sel_hi:[0,1]' for h in range(2)]
            CM += [f'v_pk_fma_f32 {pr(Tm+4+2*h)}, {pr(Tm+2*h)}, {pr(112+4*k+2*h)}, {pr(Tm+4+2*h)} {SWP}' for h in range(2)]
            CM += [f'v_cvt_pk_bf16_f32 v{O+k}, v{Tm+4}, v{Tm+6}', f'v_cvt_pk_bf16_f32 v{O+4+k}, -v{Tm+5}, -v{Tm+7}']
        CM += [I(f'buffer_store_dwordx4 {q4(O+4*part)}, v{(230, 255)[u]}, {q(WS)}, 0 offen offset:{512*part} sc1', tag='rls') for part in range(2)]
    nxt = g_rl = 40
    g_sc, left = G.place(SC, 0, thin=True); assert not left
    nxt = max(nxt, g_sc + 1)
    CSR = 208
    S = ['v_lshlrev_b32 v223, 3, v0', 'v_lshlrev_b32 v224, 4, v7', f'v_add_u32 v225, s{r5}, v224', (f's_cmp_eq_u32 s{r5}, 0', f's_cselect_b32 s{t4}, s{sTAG}, 0', f'v_mov_b32 v222, s{t4}')]
    nxt, left = G.place(S, nxt, budget=1); assert not left
    ld = [f'buffer_load_dwordx2 v[220:221], v223, {q(WS)}, s{r3} offen sc1'] + \
         [f'buffer_load_dwordx4 {q4(CSR+4*b)}, v{224 if b == 0 else 225}, {q(WS)}, s{r4} offen offset:{256*b} sc1' for b in range(3)]
    ld = [I(x, tag='ext') for x in ld]
    nxt, left = G.place(ld, max(nxt, int(48 * CFG.get('p_ext', 4.0))), step=2*CFG.get('ext_step', 4), budget=1); assert not left
    S = check('ext5', ld, tagacc(12, [221] + [CSR+1+2*k for k in range(6)], [13, 13, 13, 222, 222, 222, 222]), ['v_cmp_ne_u32 vcc, 0, v12'])
    E16 = 8192; GX = 65536
    S += ['v_and_b32 v221, 0xffff0000, v220', 'v_rcp_f32 v221, v221', 'v_lshlrev_b32 v220, 16, v220', 'v_and_b32 v12, 7, v0', 'v_bfe_u32 v11, v0, 3, 1', 'v_lshl_add_u32 v11, v12, 1, v11',
          'v_lshl_add_u32 v11, v8, 4, v11', f's_lshl_b32 s{r0}, s{sW}, 9', f's_add_u32 s{r0}, s{r0}, 37376', f'v_lshl_add_u32 v11, v11, 2, s{r0}',
          'ds_write_b32 v11, v220', 'ds_write_b32 v11, v221 offset:256', f'v_lshl_add_u32 v206, v8, 6, s{r0}',
          f's_mul_i32 s{r0}, s{sWF}, 384', f's_add_u32 s{r0}, s{r0}, {E16}', f'v_lshl_add_u32 v11, v7, 3, s{r0}',
          'v_mul_u32_u24 v12, 768, v9', 'v_add_u32 v12, v12, v11', 'v_lshl_add_u32 v10, v8, 7, v11',
          f's_mul_i32 s{r0}, s{sRB}, {EST_STRIDE}', f's_mul_i32 s{r1}, s{sU1}, 768', f's_add_u32 s{r1}, s{r1}, {EST}', f's_add_u32 s{r1}, s{r1}, s{r0}',
          f's_mul_i32 s{r0}, s{sWF}, 384', f's_add_u32 s{r0}, s{r0}, s{r1}', (f's_cmp_eq_u32 s{sWT}, 0', f's_cselect_b32 s{r0}, s{r0}, {OOB}'),
          f's_add_u32 s{r2_}, s{sW}, 1', f's_mul_i32 s{r3}, s{r2_}, {EST_STRIDE}', f's_sub_u32 s{r1}, s{r1}, s{r3}', f's_sub_u32 s{r2_}, s{sRB}, s{r2_}',
          f's_mul_i32 s{r3}, s{sW}, 768', f's_add_u32 s{r3}, s{r3}, {GX}', f'v_add_u32 v207, s{r3}, v14', 'v_lshlrev_b32 v223, 3, v0',
          'v_lshrrev_b32 v224, 8, v13', 'v_mul_u32_u24 v225, 768, v8', f'v_add_u32 v225, {GX - E16}, v225', 'v_add_u32 v225, v225, v11']
    direct = CFG.get('est') == 'direct'
    if direct:
        S = S[:-3] + [f's_lshl_b32 s{r1}, s{sWK}, 3', f's_add_u32 s{r1}, s{r1}, {EST}', f's_sub_u32 s{r3}, s{sRB}, 1', f'v_sub_u32 v225, s{r3}, v8', f's_mov_b32 s{r3}, {EST_STRIDE}', 'v_lshlrev_b32 v207, 3, v7',
                      f'v_mov_b32 v240, {OOB}', 'v_mov_b32 v241, 0xff']
        for k in range(4):
            S += [f'v_subrev_u32 v{232+k}, {4*k}, v225', f'v_mad_u32_u24 v{232+k}, v{232+k}, s{r3}, v207', f'v_cmp_le_i32 s[{t2}:{t3}], {4*k}, v225',
                  f'v_cndmask_b32 v{236+k}, 0, v241, s[{t2}:{t3}]', f'v_cndmask_b32 v{232+k}, v240, v{232+k}, s[{t2}:{t3}]']
    nxt, left_ext = G.place(S, nxt + 44, budget=1)
    WL = w2f_loads(CFG.get('wrot', 3))
    g3, WL = G.place(WL, g_w, step=CFG.get('w_step5', 4), budget=2)
    if CFG.get('stg5', 'pre') == 'loop': g3, left = G.place(stage_small(228), bars[8] + 1); left_ext += left
    g3, left = G.place(p2_setup_v() + [f'ds_read_b128 {q4(112+4*i)}, v206 offset:{16*i}' for i in range(4)], 457); left_ext += left
    print('s5: last dma gap', last['c9'], 'rl done', g_rl, 'sc', g_sc, 'ext done', nxt, 'left', len(left_ext), 'w2f left', len(WL), file=sys.stderr)
    assert len(WL) >= 25
    P += G.emit() + left_ext + ST('loop')
    E = []; B = E.append
    NM, R = 112, 128
    E += [f'ds_read_b128 {q4(R+4*i)}, v206 offset:{256+16*i}' for i in range(4)]
    U = lambda b, part, j: s5_acc(2 * b + part, j >> 1) + 2 * (j & 1)
    st = lambda k, b, part: 144 + 12 * k + 4 * b + 2 * part
    def step(b, sre, sim, ure, uim, dre, dim, a=None):
        a = pr(A1(b) if a is None else a)
        return [f'v_pk_fma_f32 {pr(dre)}, {a}, {pr(sre)}, {pr(ure)} {BC_LO}', f'v_pk_fma_f32 {pr(dim)}, {a}, {pr(sim)}, {pr(uim)} {BC_LO}',
                f'v_pk_fma_f32 {pr(dre)}, {a}, {pr(sim)}, {pr(dre)} {BC_HI} {NEG0}', f'v_pk_fma_f32 {pr(dim)}, {a}, {pr(sre)}, {pr(dim)} {BC_HI}']
    for b in range(3):
        for part in range(2):
            E += [f'v_pk_fma_f32 {pr(U(b,part,j))}, {pr(CSR+4*b+2*part)}, {pr(NM+2*j)}, {pr(U(b,part,j))} {BC_LO}' for j in range(8)]
            E += [f'v_pk_mul_f32 {pr(U(b,part,j))}, {pr(U(b,part,j))}, {pr(R+2*j)}' for j in range(8)]
        for j in range(1, 8):
            s = (U(b, 0, 0), U(b, 1, 0)) if j == 1 else (st(j & 1 ^ 1, b, 0), st(j & 1 ^ 1, b, 1))
            E += step(b, s[0], s[1], U(b, 0, j), U(b, 1, j), st(j & 1, b, 0), st(j & 1, b, 1))
        re, im, e, a8 = st(1, b, 0), st(1, b, 1), st(0, b, 0), A8(b)
        E += [f'v_fma_f32 v{e}, v{a8}, v{re}, v{re+1}', f'v_fma_f32 v{e+1}, v{a8}, v{im}, v{im+1}',
              f'v_fma_f32 v{e}, -v{a8+1}, v{im}, v{e}', f'v_fma_f32 v{e+1}, v{a8+1}, v{re}, v{e+1}', f'ds_write_b64 v12, {pr(e)} offset:{128*b}']
    nw = min(CFG.get('s5_w1', 0), len(WL) - 25)
    E, _ = sprinkle(E, WL[:nw], 20); WL = _ + WL[nw:]
    P += E
    P += [Wait('rl'), 's_waitcnt lgkmcnt(0)', 's_barrier'] + ST('t1')
    PB = 112
    P += [f'ds_read_b64 {pr(PB+2*k)}, v10 offset:{768*k}' for k in range(8)]
    for k in range(0 if direct else 4):
        P += [f's_sub_u32 s{32+k}, s{r1}, {4*k*EST_STRIDE}', f's_cmp_ge_i32 s{r2_}, {4*k}', f's_cselect_b32 s{32+k}, s{32+k}, {OOB}', f's_cselect_b32 s{36+k}, 0xff, 0']
    P += [f's_mov_b32 s{t3}, 0xff']
    for k in range(1, 8): P += cma(PB + 2*k if k < 7 else 128, A16S, PB + 2*k - 2, PB + 2*k)
    P += [f'v_bfi_b32 v128, s{t3}, v13, v128', f'v_bfi_b32 v129, s{t3}, v224, v129',
          's_mov_b32 exec_hi, 0xffff', f'buffer_store_dwordx2 v[128:129], v223, {q(WS)}, s{r0} offen sc1', 's_mov_b32 exec_hi, -1']
    P += ST('pub') + CM
    PD = 228
    ld = [('s_mov_b32 exec_hi, 0xffff',) + tuple(f'buffer_load_dwordx4 {q4(PD+4*k)}, v14, {q(WS)}, s{32+k} offen sc1' for k in range(4)) + ('s_mov_b32 exec_hi, -1',)]
    acc = []
    for k in range(4):
        a = PD + 4 * k
        acc += [f'v_xor_b32 v130, v13, v{a}', f'v_bitop3_b32 v130, v130, v{a+1}, v224 bitop3:0xf6', f'v_bitop3_b32 v130, v130, v{a+2}, v13 bitop3:0xf6', f'v_bitop3_b32 v130, v130, v{a+3}, v224 bitop3:0xf6',
                f'v_and_b32 v131, s{36+k}, v130' if k == 0 else f'v_and_or_b32 v131, v130, s{36+k}, v131']
    pd = lambda k, b: 208 + 6 * k + 2 * b if k < 2 else 132 + 6 * (k - 2) + 2 * b
    if direct:
        pd = lambda k, b: 208 + 6 * k + 2 * b if k < 2 else 240 + 6 * (k - 2) + 2 * b
        ld = [f'buffer_load_dwordx2 {pr(pd(k, b))}, v{232+k}, {q(WS)}, s{r1} offen offset:{128*b} sc1' for k in (3, 2, 1, 0) for b in range(3)]
        acc = []
        for k in (3, 2, 1, 0):
            acc += [f'v_xor_b32 v130, v13, v{pd(k,0)}'] + [f'v_bitop3_b32 v130, v130, v{pd(k,0)+i}, v{224 if i & 1 else 13} bitop3:0xf6' for i in range(1, 6)]
            acc += [f'v_and_b32 v131, v{236+k}, v130' if k == 3 else f'v_and_or_b32 v131, v130, v{236+k}, v131']
    E = []
    PFX = lambda b: st(0, b, 1)
    eb = lambda k, b: PB + 6 * (k % 3) + 2 * b
    E += [f'ds_read_b64 {pr(eb(k,b))}, v11 offset:{768*k + 128*b}' for k in range(3) for b in range(3)]
    for b in range(3): E += [f'v_mov_b32 v{PFX(b)}, 0', f'v_mov_b32 v{PFX(b)+1}, 0']
    MK = [('0xffff0000', '-1'), ('0', '-1'), ('0', '0xffff0000'), ('0', '0')]
    for k in range(7):
        lo, hi = MK[k & 3]
        sel = (lambda m: f'-1, {m}') if k < 4 else (lambda m: f'{m}, 0')
        grp = [f's_cmp_eq_u32 s{sWT}, 1', f's_cselect_b32 exec_lo, {sel(lo)}', f's_cselect_b32 exec_hi, {sel(hi)}']
        x = [cma(PFX(b), A16(b), PFX(b), eb(k, b)) for b in range(3)]
        grp += [y[0] for y in x] + [y[1] for y in x] + ['s_mov_b64 exec, -1']
        E.append(tuple(grp))
        if k + 3 < 7: E += [f'ds_read_b64 {pr(eb(k+3,b))}, v11 offset:{768*(k+3) + 128*b}' for b in range(3)]
    NPFX = len(E)
    E += ['v_lshlrev_b32 v142, 4, v9', 'v_cvt_f32_u32 v142, v142', 'v_lshlrev_b32 v143, 7, v8', 'v_cvt_f32_u32 v143, v143']
    for b in range(3):
        E += cpow(ASG(b), RT(b), RT(b) + 1, 'v142', 140) + cpow(A512(b), RT(b), RT(b) + 1, 'v143', 140)
    E += [f's_mul_i32 s{t4}, s{sW}, 15360', 'v_mul_u32_u24 v10, 144, v7', 'v_lshl_add_u32 v10, v8, 5, v10', f'v_add_u32 v10, s{t4}, v10',
          'v_bfe_u32 v12, v0, 2, 2', 'v_lshl_add_u32 v11, v8, 3, v12', 'v_mul_u32_u24 v11, 144, v11', 'v_and_b32 v12, 3, v0', 'v_lshl_add_u32 v11, v12, 3, v11', f'v_add_u32 v11, s{t4}, v11']
    gl = [f's_buffer_load_dword s{24+2*k+h}, {q(WS)}, s{32+k} offset:{384*h + 128*((k+h)%3)} glc' for k in range(4) for h in range(2)]
    tst = []
    for k in range(4):
        tst += [f's_xor_b32 s{24+2*k}, s{24+2*k}, s{sTAG}', f's_xor_b32 s{25+2*k}, s{25+2*k}, s{sTAG}', f's_or_b32 s{24+2*k}, s{24+2*k}, s{25+2*k}', f's_and_b32 s{24+2*k}, s{24+2*k}, s{36+k}']
    tst += ['s_or_b32 s24, s24, s26', 's_or_b32 s28, s28, s30', 's_or_b32 s24, s24, s28', 's_cmp_eq_u32 s24, 0']
    nw = min(CFG.get('s5_w2', 6), len(WL) - 25)
    sg_ = CFG.get('stg5', 'pre')
    eg = CFG.get('eg', True)
    E1, _ = sprinkle(E[:NPFX], WL[:nw], CFG.get('s5_w2e', 14))
    E2, _ = sprinkle(E[NPFX:], _, CFG.get('s5_w2e', 14)); WL = _ + WL[nw:]
    P += (stage_small(140) if sg_ == 'pre' else []) + E1 + (gl if eg else []) + (stage_small(140) if sg_ == 'mid' else []) + E2 + ST('pl0') + (gate('eg', gl, tst) if eg else []) + ld + (stage_small(130 if direct else 140) if sg_ == 'poll' else []) + WL[:len(WL) - 25] + [fl_load(0)] + ST('t2'); WL = WL[-25:]
    if direct:
        P += check('est', ld, acc, ['v_cmp_ne_u32 vcc, 0, v131']) + [f'v_mul_u32_u24 v130, {PFS}, v0', Wait('rls')] + pf_publish(sPUB, False, 130) + ST('t3')
    else:
        P += check('est', ld, acc + ['v_cmp_ne_u32 vcc, 0, v131'], [f's_and_b32 vcc_hi, vcc_hi, 0xffff', 's_cmp_eq_u64 vcc, 0'])
        P += ['s_mov_b32 exec_hi, 0xffff'] + [f'ds_write_b128 v207, {q4(PD+4*k)} offset:{3072*k}' for k in range(4)] + ['s_mov_b32 exec_hi, -1', 's_waitcnt lgkmcnt(0)', 's_barrier']
        P += ST('t3') + [f'ds_read_b64 {pr(pd(k, b))}, v225 offset:{3072*k + 128*b}' for k in (3, 2, 1, 0) for b in range(3)]
    E = []
    for k in (2, 1, 0):
        x = [cma(pd(k, b), A128(b), pd(k+1, b), pd(k, b)) for b in range(3)]
        E += [y[0] for y in x] + [y[1] for y in x]
    Z = 112
    for b in range(3):
        E += [f'v_pk_mul_f32 {pr(Z+2*b)}, {pr(A512(b))}, {pr(pd(0,b))} op_sel:[0,0] op_sel_hi:[0,1]']
    for b in range(3):
        E += [f'v_pk_fma_f32 {pr(Z+2*b)}, {pr(A512(b))}, {pr(pd(0,b))}, {pr(Z+2*b)} {SWP}']
    for sw in ('v_permlane16_swap_b32', 'v_permlane32_swap_b32'):
        E += [f'v_mov_b64 {pr(Z+6+2*b)}, {pr(Z+2*b)}' for b in range(3)]
        E += [f'{sw} v{Z+i}, v{Z+6+i}' for i in range(6)]
        E += [f'v_pk_add_f32 {pr(Z+2*b)}, {pr(Z+2*b)}, {pr(Z+6+2*b)}' for b in range(3)]
    PK, FG = 124, 208
    for b in range(3):
        E += cma(PFX(b), ASG(b), Z + 2*b, PFX(b))
        re, im, a8, ca = st(1, b, 0), st(1, b, 1), A8(b), PFX(b)
        E += [f'v_fma_f32 v{re+1}, v{a8}, v{ca}, v{re}', f'v_fma_f32 v{im+1}, v{a8}, v{ca+1}, v{im}',
              f'v_fma_f32 v{re+1}, -v{a8+1}, v{ca+1}, v{re+1}', f'v_fma_f32 v{im+1}, v{a8+1}, v{ca}, v{im+1}',
              f'v_mov_b32 v{re}, v{ca}', f'v_mov_b32 v{im}, v{ca+1}']
    E += [f'v_mov_b64 {pr(140+2*b-2)}, {pr(A1(b))}' for b in (1, 2)] + ST('z')
    P += E; E = []
    A1x = lambda b: A1(0) if b == 0 else 138 + 2*b
    def stores(b):
        fg = FG + 16 * (b & 1)
        return [I(f'buffer_store_dwordx4 {q4(fg+4*tb)}, v14, {q(WS)}, s{sHA+b} offen offset:{1024*tb} sc1', tag=f'h{b}') for tb in range(4)]
    for b in range(3):
        for j in range(8):
            s = (st(1, b, 0), st(1, b, 1)) if j == 0 else (U(b, 0, j - 1), U(b, 1, j - 1))
            E += step(b, s[0], s[1], U(b, 0, j), U(b, 1, j), U(b, 0, j), U(b, 1, j), A1x(b))
            if j & 1:
                E += [f'v_cvt_pk_bf16_f32 v{PK+8*part+4*sub+j//2}, v{U(b,part,j-1)+sub}, v{U(b,part,j)+sub}' for part in range(2) for sub in range(2)]
            if j == 3 and b > 0: E += stores(b - 1) + ST(f'hb{b-1}')
        E += [f'ds_write_b128 v10, {q4(PK+8*part+4*sub)} offset:{2304*part + 16*sub}' for part in range(2) for sub in range(2)]
        fg = FG + 16 * (b & 1)
        E += [f'ds_read_b64_tr_b16 {pr(fg+4*tb+2*u)}, v11 offset:{576*u + 32*tb}' for tb in range(4) for u in range(2)]
    k = next(i for i, x in enumerate(E) if isinstance(x, I) and x.tag == 'h0')
    E1, left = sprinkle(E[:k], early[1], CFG.get('early_e', 8))
    P += early[0] + E1 + left + E[k:] + stores(2) + ST('t4')
    return P, WL, [[Wait(f'h{b}'), flag8(sHF + b)] for b in range(3)]

SYS = 0
CLS = 40960
NS = 12
STAGES = [(0, 0, 2), (0, 2, 4), (0, 4, 7), (1, 0, 7), (0, 7, 12), (1, 7, 12)]
FB = 24
AA, AB, RING = 16, 96, 176
def fl_load(k):
    h, a, b = STAGES[k]; base = FB + 8 * (k == 5)
    if afm()[1] == 7: return tuple(f's_buffer_load_dword s{base+i-a}, {q(WS)}, s{sFL2 if h else sFL} offset:{128*i} glc' for i in range(a, b))
    return (f's_buffer_load_dwordx8 s[{base}:{base+7}], {q(WS)}, s{sFL2 if h else sFL} offset:{4*a} glc',)
def fl_check(name, k):
    h, a, b = STAGES[k]; base = FB + 8 * (k == 5)
    pre = [('s_cmp_lg_u32 s3, 0', f's_cselect_b32 s{base+6-a}, s{sTAG}, s{base+6-a}')] if a <= 6 < b else []
    return check_s(f'{name}_a{k}', fl_load(k), list(range(base, base + b - a)), pre, sleep=CFG.get('af_sleep', 0))
SETS = {3: (AB, AB + 20), 4: (AB + 40, AB + 60), 5: (AB, AB + 40)}
def mfma_order():
    L = []
    for i in range(4): L += [(0, i, t, j, AA + 20*t + 4*j, i == 0) for t in range(4) for j in range(5)]
    for t in (1, 2, 3, 0): L += [(0, i, t, j, AA + 20*t + 4*j, False) for i in range(4, 7) for j in range(5)]
    for k in (3, 4, 5):
        h, a, b = STAGES[k]
        for p in range(4): L += [(h, i, 3 - p, j, SETS[k][p & 1] + 4*j, p == 0 and i == a) for j in range(5) for i in range(a, b)]
    return L
PRE = [q4(RING + 4*k) for k in range(8)] + [q4(240 + 4*k, 'a') for k in range(4)]
def a_plan(npre, name):
    M = mfma_order()
    fu = {}; lu = {}; wl = {}
    for g, (h, i, t, j, d, f) in enumerate(M):
        fu.setdefault((h, i, t), g); lu[h, i, t] = g; wl[i, j] = g
    GR = sorted(fu, key=lambda x: fu[x])
    areg = {}; agap = {}
    free = [(q4(RING + 32 + 4*k), -1, CFG.get('v_end', 330)) for k in range(4)] + [(q4(AB + 40 + 4*k), -1, 270) for k in range(10)]
    free += [(q4(20*i + 4*j, 'a'), wl[i, j], 999) for i in range(7) for j in range(5)]
    prev = CFG.get('a_first_' + name, 4 if name == 'ff' else 14) - CFG.get('a_pace', 4)
    for n, gr in enumerate(GR):
        if n < 12: reg, av, lim = PRE[n], -1, (999 if n >= 8 else CFG.get('v_end', 330))
        else:
            cand = sorted((x for x in free if x[2] > lu[gr]), key=lambda x: x[1])
            reg, av, lim = cand[0]; free.remove(cand[0])
        if n >= npre:
            la = CFG.get('la1', 56) if n <= 16 else CFG.get('la2', 75)
            if n == 56: la = CFG.get('la_y', 66)
            g = max(prev + CFG.get('a_pace', 4), fu[gr] - la, av)
            agap[gr] = g; prev = g
            assert g + 16 < fu[gr], (gr, g, fu[gr])
        areg[gr] = reg
        free.append((reg, lu[gr], lim))
    return M, GR, fu, areg, agap
def a_load(areg, gr, n):
    h, i, t = gr
    g = [f's_add_u32 s{t1}, s{sAown if h else sA}, {4096*i}'] if (n >= 16 or t == 0) else []
    if i == 6: g.append(f's_or_b32 s{t1}, s{t1}, s3')
    return g + [f'buffer_load_dwordx4 {areg[gr]}, v{1+t}, {q(WS)}, s{t1} offen sc1']
def p2_first(name, npre):
    M, GR, fu, areg, agap = a_plan(npre, name)
    return (fl_check(name, 0) if name == 'ff' else check_s('sy_a01', fl_load(0), list(range(FB, FB + (4 if npre > 8 else 2))))) + ST('a0'), [tuple(a_load(areg, GR[n], n)) for n in range(npre)]

def phase2(name, npre, WL, flags):
    P = []; A = P.append
    M, GR, fu, areg, agap = a_plan(npre, name)
    NG = 40 * NS
    SK = 224; RAW = 244
    def unpack(dst, src, n): return [x for k in range(n) for x in (f'v_lshlrev_b32 v{dst+2*k}, 16, v{src+k}', f'v_and_b32 v{dst+2*k+1}, 0xffff0000, v{src+k}')]
    nw0 = len(WL) - 25
    if name == 'ff' and CFG.get('stg', 'tail') == 'p2': P += stage_small(224)
    P += WL[:nw0]; WL = WL[nw0:]
    k0 = 1 if npre <= 8 else 2
    def x_read(dst, va): return [f'ds_read_b64 {pr(dst+4*j+2)}, v{va} offset:{32*j}' for j in range(5)]
    def x_unp(dst, j): a = dst + 4*j; return [f'v_lshlrev_b32 v{a}, 16, v{a+2}', f'v_and_b32 v{a+1}, 0xffff0000, v{a+2}', f'v_lshlrev_b32 v{a+2}, 16, v{a+3}', f'v_and_b32 v{a+3}, 0xffff0000, v{a+3}']
    sl = [f'buffer_load_dwordx2 v[254:255], v12, {q(WS)}, s{sSTO} offen sc1']
    EN = ['v_and_b32 v12, 15, v0', 'v_lshrrev_b32 v11, 4, v0', 'v_lshlrev_b32 v11, 3, v11', f's_mul_i32 s{r0}, s{sW}, 3072', f's_add_u32 s{r0}, s{r0}, {XL}', f'v_add_u32 v8, s{r0}, v11',
          'v_mul_u32_u24 v5, 160, v12', 'v_add_u32 v6, v5, v8', 'v_lshlrev_b32 v12, 3, v12', f'v_add_u32 v254, s{r0}, v12', Wait('xd'), 'ds_read_b64 v[254:255], v254 offset:2880'] + x_read(SK, 6)
    EN += [f'ds_read_b64 {pr(AB+4*j+2)}, v8 offset:{2720 + 32*j}' for j in range(5)] + [f'ds_read_b64 {pr(RAW+2*j)}, v8 offset:{2560 + 32*j}' for j in range(5)]
    pl = [f's_buffer_load_dwordx4 s[{FB+8+4*k}:{FB+11+4*k}], {q(WS)}, s{sPFy} offset:{256*k} glc' for k in range(2)] + [f's_buffer_load_dword s{sHA+k}, {q(WS)}, s{sPFy} offset:{256*k+16} glc' for k in range(2)]
    kp = CFG.get('kp_' + name, 3 if name == 'ff' else 2)
    if kp == k0: P += pl
    P += ([fl_load(k0)] + flat(flags[0]) + EN if (name == 'sy' or CFG.get('stg', 'tail') == 'p2') else EN + [fl_load(k0)] + flat(flags[0])) + ST('a1')
    flags = flags[1:]
    G = Gaps3(2, 2)
    last_of = {}
    for g, (h, i, t, j, d, first) in enumerate(M):
        c = q4(d) if (not first or (h, i) == (1, 0)) else (q4(SK + 4*j) if (h, i) == (1, 7) else '0')
        G.add(f'v_mfma_f32_16x16x32_bf16 {q4(d)}, {q4(20*i+4*j, "a")}, {areg[h, i, t]}, {c}')
        if g % 20 == 0: G.fixed(g, ST(f's{g//20}'))
        last_of[h, i >= 7, t, j] = g
    for n, gr in enumerate(GR):
        h, i, t = gr
        if n < 28:
            if fu[gr] > 0: G.need(fu[gr] - 1, Need(areg[gr] + ' ' + q4(20*i+16, 'a')))
        elif i in (0, 7): G.need(fu[gr] - 1, Need(areg[h, 6 if i == 0 else 11, t] + ' ' + q4(236 if i == 7 else 0, 'a')))
    pg = -1
    for n, gr in enumerate(GR):
        if gr not in agap: continue
        g = agap[gr]; L = a_load(areg, gr, n)
        if len(L) == 3: G.fixed(g - 1, L[:2], 'post')
        elif len(L) == 2: G.scalar_before(g, L[0], pg)
        G.fixed(g, L[-1:]); pg = g
    ph = 0; win = {}
    for k in (3, 4, 5):
        h, a, b = STAGES[k]; n = b - a
        tid = str(k) in CFG.get('tid', '')
        for p in range(3):
            for j in range(5):
                e = last_of[h, a >= 7, 3 - p, j]; off = 20480 * (ph & 1) + 1024 * j
                src = SETS[k][p & 1] + 4*j; dst = SETS[k][(p + 1) & 1] + 4*j
                if tid:
                    W = [I(f'ds_write_addtid_b32 v{src+r} offset:{off + 256*r}', tag=f'sw{ph}{j}') for r in range(4)]
                    R = [f'ds_read2st64_b32 {pr(dst+2*r)}, v6 offset0:{off//256 + 2*r} offset1:{off//256 + 2*r + 1}' for r in range(2)]
                else:
                    W = [I(f'ds_write_b128 v11, {q4(src)} offset:{off}', tag=f'sw{ph}{j}')]
                    R = [f'ds_read_b128 {q4(dst)}, v7 offset:{off}']
                gw, left = G.place(W, e + CFG.get('sy_w', 4)); assert not left
                gb = gw + CFG.get('sy_b', 3 if tid else 4)
                if CFG.get('bar_split', True):
                    gb += 1
                    while G.g[gb]['mem'] or G.g[gb]['used'] > 0 or G.g[gb]['fs'] or G.g[gb-1]['first']: gb += 1
                    G.need(gb - 1, Wait(f'sw{ph}{j}')); G.g[gb]['first'].append('s_barrier'); G.g[gb]['fs'] = True; G.g[gb]['used'] += 1; G.g[gb]['nomem'] = True
                else:
                    while G.g[gb]['used'] > 0: gb += 1
                    G.need(gb, Wait(f'sw{ph}{j}')); G.fixed(gb, ['s_barrier'], 'pre'); G.g[gb]['used'] = 2
                gr_, left = G.place(R, gb + 1); assert not left
                use = e + 1 + 4 * n
                assert gr_ + 4 < use, (k, p, j, gr_, use)
                G.need(min(use - 1, gr_ + 7) if (p, j) == (2, 4) else use - 1, Need(q4(dst)))
                if (p, j) == (2, 4): win[k] = [gr_ + 8]
                if (p, j) == (0, 0) and k > 3: win[k-1].append(gb - 2)
            ph += 1
    first_of = lambda k: min(g for (h, i, t), g in agap.items() if h == STAGES[k][0] and STAGES[k][1] <= i < STAGES[k][2])
    for fl, gf in zip(flags, CFG.get('f2_gaps', (30, 58))):
        gf, left = G.place(fl, gf, budget=3); assert not left and gf < first_of(4) - 20
    pchk = -1
    for k in range(k0, 4):
        gl = first_of(k)
        ck = fl_check(name, k)
        g0 = max(0, gl - 3 - int(1.6 * len(ck)))
        assert g0 > pchk, (k, g0, pchk)
        if k > k0:
            gq = max(pchk + 1, g0 - CFG.get('fl_lead', 28))
            for z, x in enumerate(fl_load(k)): G.fixed(gq + z // 2, [x])
            if k == kp: G.fixed(gq, pl[:1]); G.fixed(gq + 1, pl[1:])
        pchk, left = G.place(ck, g0, budget=2); assert not left and pchk < gl, (k, pchk, gl)
        if k == k0: g_k0 = pchk
        if k == kp:
            ch, last_ = chain(list(range(FB + 8, FB + 16)) + [sHA, sHA + 1])
            w0, left = G.place(gate(f'{name}_py', pl, ch + [last_]), pchk + 1, budget=2); assert not left
    gl = first_of(4)
    g_yfl = gl - 8 - CFG.get('yfl_lead', 34)
    if name == 'sy' or CFG.get('yf_vec'):
        g, left = G.place([f'buffer_load_dword v9, v9, {q(WS)}, 0 offen offset:{7 << afm()[1]} sc1'], g_yfl); assert not left
        G.need(gl - 7, Need('v9')); g, left = G.place([f'v_cmp_ne_u32 vcc, s{sTAG}, v9'], gl - 7); assert not left
        assert g + 1 < gl
        G.fixed(gl - 1, [f's_cbranch_vccnz L_spin_{name}_yf', f'L_ret_{name}_yf:'], 'post')
    else:
        G.fixed(gl - 1, [f's_branch L_spin_{name}_yf', f'L_ret_{name}_yf:'], 'post')
    ch, last_ = chain(list(range(FB, FB + 5)) + list(range(FB + 8, FB + 13)))
    SPINS.append([f'L_spin_{name}_yf:', f's_mov_b32 s{t5}, 0', f'L_spinl_{name}_yf:', *fl_load(4), *fl_load(5), 's_waitcnt lgkmcnt(0)', f's_add_u32 s{t5}, s{t5}, 1', f's_cmp_gt_u32 s{t5}, {SPIN_MAX*2}',
                  f's_cbranch_scc1 L_ret_{name}_yf'] + flat(ch) + [last_, f's_cbranch_scc0 L_spinl_{name}_yf', f's_branch L_ret_{name}_yf'])
    gi = w0 + 1
    for m, w in enumerate(WL):
        k = int(w[-1].tag[1:])
        gi, left = G.place([w], gi, budget=2); assert not left
        assert gi + CFG.get('w_marg', 36) < (280 if k >= 35 else fu[0, k // 5, 0 if k < 20 else 1]), ('weight load too late', k, gi)
        gi += max(2, min(CFG.get('p2_wstep', 14), (CFG.get('w_end', 236) - gi) // max(1, len(WL) - m - 1)))
    S = [f's_add_u32 s{r1}, s{sW}, 1', f's_and_b32 s{r1}, s{r1}, 3', f's_mul_i32 s{r0}, s{r1}, 3072', f's_add_u32 s{r0}, s{r0}, {XL}', f'v_add3_u32 v5, v5, v11, s{r0}',
         f's_sub_u32 s{r1}, s{sW}, 1', f's_and_b32 s{r1}, s{r1}, 3',
         *(['v_mul_u32_u24 v10, 160, v12', f'v_add3_u32 v10, v10, v11, s{sOO}', 'v_lshlrev_b32 v10, 1, v10'] if not CFG.get('otr', True) else []),
         f's_mul_i32 s{r0}, s{r1}, 5120', f'v_add_u32 v7, s{r0}, v14', f'v_lshl_add_u32 v6, v0, 2, s{r0}', f's_mul_i32 m0, s{sW}, 5120', 'v_add_u32 v11, m0, v14',
         'v_and_b32 v9, 7, v0', 'v_min_u32 v9, 4, v9', f'v_lshl_add_u32 v9, v9, {afm()[1]}, s{sFL}', 'v_and_b32 v8, 8, v0', f'v_lshlrev_b32 v8, {afm()[0]}, v8', 'v_xor_b32 v9, v9, v8',
         f's_mul_i32 s{r0}, s{sW}, 15360', f'v_add_u32 v8, s{r0}, v14',
         f's_mov_b32 s{r2_}, 0x07060100', f's_add_u32 s{r1}, s{sXI}, 3072', f's_add_u32 s{r4}, s{sXO}, 3072', f's_mov_b32 s{t2}, {fbits(-LOG2E)}', f's_mov_b32 s{t3}, {fbits(-LOG2E)}']
    nxt, left = G.place(S, 0); assert not left and nxt < g_yfl
    nxt = max(nxt, g_k0 + 1)
    g_b0, left = G.place(['s_barrier'], CFG.get('bar0', 86)); assert not left
    g = g_b0 + 1.0; gcb = {}
    for t in range(1, 4):
        for j in range(5):
            g = max(g, last_of[0, False, t, j] + 5)
            nx2, left = G.place([I(f'ds_write_b128 v8, {q4(AA + 20*t + 4*j)} offset:{CLS + (t-1)*5120 + 1024*j}', tag=f'cw{t}')], int(g)); assert not left
            g = max(g, nx2) + CFG.get('red_step', 2.0)
        if t > 1:
            gb = nx2 + 5
            while G.g[gb]['used'] > 0: gb += 1
            G.need(gb, Wait(f'cw{t}')); G.fixed(gb, ['s_barrier'], 'pre'); G.g[gb]['used'] = 2; gcb[t] = gb
    gcb[1] = gcb[2]; g_b1 = gcb[3]
    S = check(f'{name}_st', sl, [], [f'v_cmp_ne_u32 vcc, s{sTAG}, v255'])
    S += ['v_and_b32 v255, 0xffff0000, v254', 'v_rcp_f32 v255, v255', 'v_lshlrev_b32 v254, 16, v254', 'v_mul_f32 v254, v254, v255']
    for j in range(5): S += x_unp(SK, j) + [f'v_fma_f32 v{SK+4*j+r}, v{SK+4*j+r}, v255, v254' for r in range(4)]
    for k in range(20): S += [f'v_and_b32 v12, 0xffff0000, v{RAW+k//2}' if k & 1 else f'v_lshlrev_b32 v12, 16, v{RAW+k//2}', f'v_mul_f32 v{SK+k}, v{SK+k}, v12']
    g_sk, left = G.place(sum((x_unp(AB, j) for j in range(5)), []) + S, nxt); assert not left and g_sk < 134, g_sk
    g2 = g_sk; gr = {}
    for t in range(1, 4):
        g2, left = G.place([f's_sub_u32 s{r0}, s{sW}, {t}', f's_and_b32 s{r0}, s{r0}, 3', f's_mul_i32 s{r0}, s{r0}, 15360', f'v_add_u32 v{252+t}, s{r0}, v14'], g2); assert not left
    for t in range(1, 4):
        g2, left = G.place([f'ds_read_b128 {q4(AA + 20*t + 4*j)}, v{252+t} offset:{CLS + (t-1)*5120 + 1024*j}' for j in range(5)], max(g2, gcb[t] + 1)); assert not left
        gr[t] = g2
    def pack(a):
        L = []
        for g in range(3):
            gl = [f'v_cvt_pk_bf16_f32 v{AA+4*g+k}, v{a+7*g+2*k}, v{a+7*g+2*k+1}' for k in range(3)]
            if g < 2: gl += [f'v_cvt_pk_bf16_f32 v{AA+4*g+3}, v{a+7*g+6}, v{a+7*g+6}', f'v_perm_b32 v{AA+4*g+3}, v{AA+4*g+3}, v13, s{r2_}']
            else: gl += [f'v_mov_b32 v{AA+11}, v13']
            L.append(gl)
        return L
    st = lambda g, so: f'buffer_store_dwordx4 {q4(AA+4*g)}, v14, {q(WS)}, s{so} offen offset:{1024*g} sc1'
    g, left = G.place([Need(q4(AA + 56))] + [f'v_add_f32 v{AA+20+k}, v{AA+20+k}, v{AA+40+k}' for k in range(20)], gr[2] + 4); assert not left
    g, left = G.place([f'v_add_f32 v{AA+k}, v{AA+k}, v{AA+20+k}' for k in range(20)], max(g, 144)); assert not left
    g, left = G.place([Need(q4(AA + 76))] + [f'v_add_f32 v{AA+k}, v{AA+k}, v{AA+60+k}' for k in range(20)], max(g, gr[3] + 4)); assert not left
    g, left = G.place(sum(pack(AA), []), g); assert not left
    g_f, left = G.place([st(k, sXO) for k in range(3)], g + 1, step=CFG.get('x_step', 12)); assert not left
    pk = pack(SETS[4][1]); g_y = g_f
    for k, j in enumerate((1, 3, 4)):
        g_y, left = G.place(pk[k] + [st(k, r4)], max(g_y, last_of[0, True, 0, j] + 4)); assert not left
    FT, XU, T, YU = SETS[3][1], AA + 20, AA + 40, AA + 60
    def xch(b, so): return [f'buffer_load_dwordx4 {q4(b+4*g)}, v14, {q(WS)}, s{so} offen offset:{1024*g} sc1' for g in range(3)]
    def recv_check(nm, b, ld): return check(f'{name}_{nm}', ld, tagacc(8, [b + 3, b + 7, b + 11]) + ['v_and_b32 v8, 0xffff, v8'], ['v_cmp_ne_u32 vcc, 0, v8'])
    def run(d, k, b=RAW):
        g, e = divmod(k, 7); r = b + 4 * g + e // 2
        return f'v_and_b32 v{d}, 0xffff0000, v{r}' if (e & 1 or e == 6) else f'v_lshlrev_b32 v{d}, 16, v{r}'
    for k, nm, off, msk in ((3, 'gf', 12, True), (4, 'gy', 6144, False)):
        if nm[1] not in CFG.get('xg', 'fy'): continue
        l_ = I(f's_buffer_load_dword s24, {q(WS)}, s{sXI} offset:{off} glc', tag='async')
        tst = ([f's_xor_b32 s24, s24, s{sTAG}', 's_and_b32 s24, s24, 0xffff', 's_cmp_eq_u32 s24, 0'] if msk else [f's_cmp_eq_u32 s24, s{sTAG}'])
        G.fixed(win[k][0], [l_], 'post'); G.need(win[k][1], 's_waitcnt lgkmcnt(0)'); G.fixed(win[k][1], flat(gate(f'{name}_{nm}', [l_], tst)), 'post')
    g_hb, left = G.place([f's_add_u32 s{r3}, s{sXO}, 6144', flag_store(r3)], CFG.get('hb_gap', 326), budget=3); assert not left
    ly = xch(RAW, r1)
    g_ly, left = G.place(ly, win[4][0] + g_y - g_hb + CFG.get('y_ld', 12), step=2); assert not left
    lf = xch(YU, sXI)
    g_lf, left = G.place(lf, max(win[3][1] + 1, win[3][0] + 2 * CFG.get('x_step', 12) + CFG.get('f_ld', 10)), step=3); assert not left
    g, left = G.place(x_read(XU, 5) + [Need(pr(XU + 18))], max(g, g_sk)); assert not left and g < win[3][0], g
    g, left = G.place(sum((x_unp(XU, j) for j in range(5)), []), g); assert not left
    g_fr, left = G.place(recv_check('xf', YU, lf) + [run(T + k, k, YU) for k in range(20)], max(g, g_lf + CFG.get('f_wait', 28))); assert not left
    g_fu = g_fr
    for j in range(5):
        g_fr, left = G.place([f'v_add_f32 v{FT+k}, v{FT+k}, v{T+k}' for k in range(4*j, 4*j + 4)], max(g_fr, last_of[1, False, 0, j] + 5)); assert not left
    if CFG.get('otr', True):
        S = [f's_mul_i32 s{r0}, s{sW}, 6400', f's_add_u32 s{r0}, s{r0}, {CLS}', 'v_and_b32 v9, 15, v0', 'v_mul_u32_u24 v9, 80, v9', 'v_and_b32 v12, 48, v0', f'v_add3_u32 v9, v9, v12, s{r0}',
             'v_lshrrev_b32 v10, 2, v0', 'v_mul_u32_u24 v15, 80, v10', 'v_and_b32 v12, 48, v14', f'v_add3_u32 v15, v15, v12, s{r0}',
             f's_lshl_b32 s{r0}, s{sOO}, 1', 'v_mul_u32_u24 v10, 2560, v10', f'v_add3_u32 v10, v10, v12, s{r0}']
        g, left = G.place(S, 262); assert not left
    g = g_fr; done = 0; vleft = []
    while done < 5 and g < NG - CFG.get('silu_stop', 10):
        a = T + 4*done; f = FT + 4*done
        S = [f'v_mul_f32 v{a+r}, s{t2}, v{f+r}' for r in range(4)] + [f'v_exp_f32 v{a+r}, v{a+r}' for r in range(4)] + [f'v_add_f32 v{a+r}, 1.0, v{a+r}' for r in range(4)] + \
            [f'v_rcp_f32 v{a+r}, v{a+r}' for r in range(4)] + [f'v_mul_f32 v{a+r}, v{a+r}, v{f+r}' for r in range(4)]
        g, vleft = G.place(S, g); done += 1
    def silu(j):
        f = FT + 4*j; t = T + 4*j
        return [f'v_pk_mul_f32 {pr(t+2*h)}, {pr(f+2*h)}, s[{t2}:{t3}]' for h in range(2)] + [f'v_exp_f32 v{t+r}, v{t+r}' for r in range(4)] + \
               [f'v_pk_add_f32 {pr(t+2*h)}, {pr(t+2*h)}, 1.0 op_sel_hi:[1,0]' for h in range(2)] + [f'v_rcp_f32 v{t+r}, v{t+r}' for r in range(4)] + \
               [f'v_pk_mul_f32 {pr(t+2*h)}, {pr(t+2*h)}, {pr(f+2*h)}' for h in range(2)]
    print(name, 'w left', len(WL), 'w0', w0, 'bars', g_b0, g_b1, 'win', win, 'hb', g_hb, 'skip', g_sk, 'last a load', max(agap.values()), 'f sent', g_f, 'f recv', g_lf, g_fu, g_fr, 'y sent', g_y, 'y ld', g_ly, 'silu', done, g, 'left', len(vleft), file=sys.stderr)
    body = []
    for x in G.emit():
        if not isinstance(x, PSEUDO):
            y = mk(x); d = CFG.get('drop', '')
            if 'A' in d and y.op == 'buffer_load_dwordx4' and f's{t1} offen' in y.text: continue
            if 'W' in d and y.op == 'buffer_load_dwordx4' and (f's{t0} offen' in y.text or f's{sWB} offen' in y.text): continue
            if 'L' in d and (y.kind == 'ds' or y.op == 's_barrier'): continue
            if 'B' in d and y.op == 's_barrier': continue
            if 'V' in d and y.kind == 'valu' and not y.op.startswith('v_cmp') and min(r[1] for r in y.defs) >= 16: continue
            if 'X' in d and ((y.kind == 'vmem' and y.wide_store) or 'spin_' + name + '_xf' in y.text): continue
            if 'F' in d and y.op.startswith('s_cbranch') and ('_a' in y.text or '_yf' in y.text): continue
            if 'S' in d and y.kind == 'smem' and 'glc' in y.text: continue
        body.append(x)
    if CFG.get('silu_first', True):
        body += ST('p2end') + vleft + sum((silu(j) for j in range(done, 5)), []); vleft = []; done = 5
    P += body + (ST('p2end') if not CFG.get('silu_first', True) else []) + ST('xw') + (recv_check('xy', RAW, ly) if not CFG.get('drop') else []) + ST('xok')
    Y = SETS[5][1]
    for j in range(5):
        if j == done - 1: P += vleft
        if j >= done: P += silu(j)
        P += [run(YU + 4*j + r, 4*j + r) for r in range(4)]
        P += [f'v_pk_add_f32 {pr(Y+4*j+2*h)}, {pr(Y+4*j+2*h)}, {pr(YU+4*j+2*h)}' for h in range(2)]
        P += [f'v_pk_fma_f32 {pr(T+4*j+2*h)}, {pr(T+4*j+2*h)}, {pr(Y+4*j+2*h)}, {pr(XU+4*j+2*h)}' for h in range(2)]
        if CFG.get('otr', True):
            P += [f'ds_write_b128 v9, {q4(T+4*j)} offset:{1280*j}', f'ds_read_b128 {q4(T+4*j)}, v15 offset:{1280*j}']
            for jj in ([j - 1] if 0 < j < 4 else [3, 4] if j == 4 else []): A(f'global_store_dwordx4 v10, {q4(T+4*jj)}, {sp(pOUT)} offset:{64*jj} sc1')
        else:
            A(f'global_store_dwordx4 v10, {q4(T+4*j)}, {sp(pOUT)} offset:{64*j} sc1')
    if name == 'sy':
        P += [f's_lshl_b32 s{t4}, s{sW}, 8', f's_or_b32 s{t4}, s{t4}, s2', f's_cmp_eq_u32 s{t4}, 191', f's_mov_b32 s{t4}, {EPO}', f's_cselect_b32 s{t4}, s{t4}, {OOB}', flag_store(t4)]
    P += ST('fin') + ST_dump() + ['s_endpgm']
    return P

def with_state(segs):
    vm, lg = [], []
    out = []
    for s in segs:
        out.append(add_waits(flat(s), vm, lg))
    return out, vm, lg

def diag(seq):
    out = []
    for x in seq:
        if CFG.get('no_r1') and not isinstance(x, PSEUDO) and (mk(x).tag == 'cs' or 'global_load_dwordx2 v[24' in mk(x).text or q(TSRD) + ', 0 offen' in mk(x).text): continue
        if isinstance(x, I) and ((x.tag == 'rl' and CFG.get('no_rl_ld')) or (x.tag == 'rls' and CFG.get('no_rl_st')) or (x.tag == 'ext' and CFG.get('no_ext'))): continue
        if isinstance(x, str) and CFG.get('no_ext') and ('L_spin_ext' in x and 'branch' in x): continue
        out.append(x)
    return out

def build():
    del SPINS[:]; del NOPSTATS[:]
    ent, late = entry()
    fp = ffn_prologue(late); fm, fWL = ffn_main(None)
    sp_ = s5_prologue(late); sm, sWL_, sfl = s5_main(p2_first('sy', CFG.get('npre_s', 8)))
    vm0, lg0 = [], []
    ent = add_waits(diag(flat(ent)), vm0, lg0)
    vm, lg = list(vm0), list(lg0)
    a_fp = add_waits(diag(flat(fp)), vm, lg)
    tl, wl, fl = ffn_tail(fWL, [fl_load(0)])
    a_fm = add_waits(diag(flat(fm)) + flat(tl + sum(p2_first('ff', 8), []) + phase2('ff', 8, wl, fl)), vm, lg)
    vm, lg = list(vm0), list(lg0)
    a_sp = add_waits(diag(flat(sp_)), vm, lg)
    a_sm = add_waits(diag(flat(sm)) + flat(phase2('sy', CFG.get('npre_s', 8), sWL_, sfl)), vm, lg)
    code = add_nops([mk(x) for x in ent], NOPSTATS) + add_nops(a_fp, NOPSTATS) + add_nops(a_sp, NOPSTATS) + add_nops(a_fm, NOPSTATS) + add_nops(a_sm, NOPSTATS)
    code.append(mk('L_spins:'))
    for blk in SPINS: code += add_nops([mk('s_nop 4')] * 0 + [mk(x) for x in blk])
    code.append(mk('L_end:'))
    pend = None
    for x in code:
        if ('vcc', 0) in x.uses or x.op.startswith('s_cbranch_vcc'): pend = None
        if ('vcc', 0) in x.defs:
            assert pend is None or CFG.get('drop'), (pend.text, x.text)
            pend = x
    if CFG.get('align', True):
        code, a, b = align_runs(code, CFG.get('minrun', 6)); print('aligned', a, b, file=sys.stderr)
    return kg.single(render(code), 256, 256, 163840, 512, accum=256)

if __name__ == '__main__':
    out = sys.argv[1] if len(sys.argv) > 1 else 'v2.s'
    for kv in sys.argv[2:]:
        k, v = kv.split('='); CFG[k] = eval(v)
    open(out, 'w').write(build())
    from collections import Counter
    print('nops inserted:', len(NOPSTATS), 'states', sum(p for p, _ in NOPSTATS), Counter(t.split()[0] for p, t in NOPSTATS).most_common(8), file=sys.stderr)
```
